```python
import torch

def _softmax(x, axis=-1):
    return torch.softmax(x, dim=axis)
def _gelu(x):
    return torch.nn.functional.gelu(x, approximate="tanh")
def _silu(x):
    return torch.nn.functional.silu(x)
def _sigmoid(x):
    return torch.sigmoid(x)
def _layernorm(x, axis=-1, eps=1e-5):
    m = x.mean(dim=axis, keepdim=True)
    v = x.var(dim=axis, keepdim=True, unbiased=False)
    return (x - m) / torch.sqrt(v + eps)
def _scatter_add(tgt, idx, src, axis=0):
    return tgt.clone().index_add_(axis, idx, src)
def _segment_sum(src, seg, n):
    out = torch.zeros((n,) + src.shape[1:], dtype=src.dtype)
    return out.index_add_(0, seg, src)
def _pad(x, pw):
    flat = tuple(v for pair in reversed(pw) for v in pair)
    return torch.nn.functional.pad(x, flat)

kernel_name = 'gated_mix__sliding_local_dilated__spectral_fnet__prompt'

def setup_inputs():

    _w = (lambda a: (lambda t: t.to(torch.bfloat16) if t.is_floating_point() else t)(torch.as_tensor(a)))
    def _A_setup():
        B, S, D = 1, 2048, 1024
        return {
            "x": _w((lambda *s: torch.randn(*s, dtype=torch.bfloat16) * 0.05)(B, S, D)),
            "wqkv": _w((lambda *s: torch.randn(*s, dtype=torch.bfloat16) * 1.6)(D, 3 * D)),
            "wo": _w((lambda *s: torch.randn(*s, dtype=torch.bfloat16) * 0.2)(D, D)),
        }
    _A_in = _A_setup()

    def _B_setup():
        B, S, D = 1, 2048, 1024
        ns = torch.arange(S)[:, None] * torch.arange(S)[None, :]
        nd = torch.arange(D)[:, None] * torch.arange(D)[None, :]
        Ws_re = torch.cos(-2.0 * torch.pi * ns / S).to(float)
        Ws_im = torch.sin(-2.0 * torch.pi * ns / S).to(float)
        Wd_re = torch.cos(-2.0 * torch.pi * nd / D).to(float)
        Wd_im = torch.sin(-2.0 * torch.pi * nd / D).to(float)
        return {
            "x": _w((lambda *s: torch.randn(*s, dtype=torch.bfloat16) * 0.05)(B, S, D)),
            "dft_seq_re": _w(Ws_re),
            "dft_seq_im": _w(Ws_im),
            "dft_hid_re": _w(Wd_re),
            "dft_hid_im": _w(Wd_im),
        }
    _B_in = _B_setup()

    return {
        "A_x": _A_in["x"],
        "A_wqkv": _A_in["wqkv"],
        "A_wo": _A_in["wo"],
        "B_x": _B_in["x"],
        "B_dft_seq_re": _B_in["dft_seq_re"],
        "B_dft_seq_im": _B_in["dft_seq_im"],
        "B_dft_hid_re": _B_in["dft_hid_re"],
        "B_dft_hid_im": _B_in["dft_hid_im"],
        "gate_w": _w((lambda *s: torch.randn(*s, dtype=torch.bfloat16) * 0.05)(1024) * 16.0),
    }

def reference(A_x, A_wqkv, A_wo, B_x, B_dft_seq_re, B_dft_seq_im, B_dft_hid_re, B_dft_hid_im, gate_w):
    def _A_ref(x, wqkv, wo):
        B, S, D = x.shape
        H = 32; Dh = D // H
        W, dil = 8, 2
        qkv = (lambda x, *d: x.permute(*d))((x @ wqkv).reshape(B, S, 3, H, Dh), 2, 0, 3, 1, 4)
        q, k, v = qkv[0], qkv[1], qkv[2]
        scale = Dh ** -0.5
        pos = torch.arange(S)
        off = torch.arange(W) * dil
        idx = pos[:, None] - off[None, :]
        mask = idx >= 0
        idx_c = torch.where(mask, idx, 0).reshape(-1)
        kg = k[:, :, idx_c, :].reshape(B, H, S, W, Dh)
        vg = v[:, :, idx_c, :].reshape(B, H, S, W, Dh)
        logits = torch.einsum("bhsd,bhswd->bhsw", q, kg) * scale
        logits = torch.where(mask[None, None, :, :], logits, -1e9)
        attn = _softmax(logits, axis=-1)
        o = torch.einsum("bhsw,bhswd->bhsd", attn, vg)
        return (lambda x, *d: x.permute(*d))(o, 0, 2, 1, 3).reshape(B, S, D) @ wo

    def _B_ref(x, dft_seq_re, dft_seq_im, dft_hid_re, dft_hid_im):
        a = torch.einsum("bsd,ed->bse", x, dft_hid_re)
        b = torch.einsum("bsd,ed->bse", x, dft_hid_im)
        y = torch.einsum("ts,bse->bte", dft_seq_re, a) - torch.einsum("ts,bse->bte", dft_seq_im, b)
        return y

    x = A_x
    g = _sigmoid((x * gate_w).sum(-1, keepdims=True))
    a = _A_ref(x, A_wqkv, A_wo)
    b = _B_ref(x, B_dft_seq_re, B_dft_seq_im, B_dft_hid_re, B_dft_hid_im)
    return g * a + (1 - g) * b
```

```python
import struct

def f32bits(x):
    return struct.unpack('<I', struct.pack('<f', x))[0]

class Regs:
    def __init__(self, start, limit, name):
        self.next = start; self.limit = limit; self.name = name; self.hi = start
    def alloc(self, n=1, align=1):
        r = (self.next + align - 1) // align * align
        self.next = r + n
        self.hi = max(self.hi, self.next)
        assert self.next <= self.limit, f"out of {self.name} regs: {self.next} > {self.limit}"
        return r
    def mark(self): return self.next
    def release(self, m): self.next = m

def v(r, n=1):
    return f"v{r}" if n == 1 else f"v[{r}:{r+n-1}]"
def s(r, n=1):
    return f"s{r}" if n == 1 else f"s[{r}:{r+n-1}]"

class Asm:
    def __init__(self):
        self.lines = []
    def __call__(self, txt):
        for l in txt.split('\n'):
            l = l.strip()
            if l:
                self.lines.append("    " + l)
    def label(self, name):
        self.lines.append(name + ":")
    def raw(self, txt):
        self.lines.append(txt)
    def comment(self, txt):
        self.lines.append("    ; " + txt)
    def text(self):
        return "\n".join(self.lines) + "\n"

    def mfma(self, d, a, b, c):
        cs = "0" if c is None else v(c, 4)
        self(f"v_mfma_f32_16x16x32_bf16 {v(d,4)}, {v(a,4)}, {v(b,4)}, {cs}")
    def srd(self, d, base, nbytes):
        self(f"s_mov_b32 s{d}, s{base}")
        self(f"s_and_b32 s{d+1}, s{base+1}, 0xffff")
        self(f"s_mov_b32 s{d+2}, {nbytes}")
        self(f"s_mov_b32 s{d+3}, 0x00020000")
    def srd_off(self, d, base, off, nbytes):
        self(f"s_add_u32 s{d}, s{base}, {off}")
        self(f"s_addc_u32 s{d+1}, s{base+1}, 0")
        self(f"s_and_b32 s{d+1}, s{d+1}, 0xffff")
        self(f"s_mov_b32 s{d+2}, {nbytes}")
        self(f"s_mov_b32 s{d+3}, 0x00020000")

def interleave(main, fill, start=0, every=1):
    out = []
    fi = 0
    for i, m in enumerate(main):
        out.append(m)
        if i >= start and (i - start) % every == 0 and fi < len(fill):
            out.append(fill[fi]); fi += 1
    out.extend(fill[fi:])
    return out

def kernel_header(name):
    return f""".globl {name}
.p2align 8
.type {name},@function
{name}:"""

def kernel_desc(name, vgpr, sgpr):
    acc = (vgpr + 3) // 4 * 4
    return f""".p2align 6
.amdhsa_kernel {name}
  .amdhsa_next_free_vgpr {vgpr}
  .amdhsa_next_free_sgpr {sgpr}
  .amdhsa_accum_offset {acc}
  .amdhsa_group_segment_fixed_size 0
  .amdhsa_kernarg_size 96
  .amdhsa_user_sgpr_count 2
  .amdhsa_user_sgpr_kernarg_segment_ptr 1
  .amdhsa_system_sgpr_workgroup_id_x 1
.end_amdhsa_kernel"""
```

```python
from asmlib import *

WS_O = 0
WS_U = 4 << 20
WS_G = 12 << 20

K1_CH = 10752
K1_STAGE = 4 * K1_CH
K1_XCH = 3 * K1_STAGE
K1_LDS = K1_XCH + 10240
NEG_BIG = f32bits(-1.0e30)
SCALE = f32bits(32 ** -0.5)
LOG2E = f32bits(1.4426950408889634)

def gen_k1(name="k1_kernel", opt=None):
    opt = opt or {}
    a = Asm()
    a.raw(kernel_header(name))
    L = lambda x: f"{name}_{x}"
    sX, sW, sWS = 4, 6, 8
    SRDX, SRDW, SRDO = 12, 16, 20
    sWave, sMB, sHP, sM0, sT0, sT1, sT2 = 24, 25, 26, 27, 28, 29, 30
    sKA, sKB, sLM, sCnt, sStg, sLW = 31, 32, 33, 34, 35, 36
    sH, sHF, s64K = 37, 38, 39
    sScale, sLog2e = 40, 41
    a(f"""
    s_cmp_ge_u32 s2, 256
    s_cbranch_scc1 {L('end')}
    s_load_dwordx4 s[4:7], s[0:1], 0
    s_load_dwordx2 s[8:9], s[0:1], 88
    v_lshrrev_b32 v1, 6, v0
    v_and_b32 v0, 63, v0
    s_nop 0
    v_readfirstlane_b32 s{sWave}, v1
    s_and_b32 s{sT0}, s2, 7
    s_lshr_b32 s{sT1}, s2, 3
    s_and_b32 s{sMB}, s{sT0}, 1
    s_lshl_b32 s{sMB}, s{sMB}, 3
    s_and_b32 s{sT2}, s{sT1}, 7
    s_add_u32 s{sMB}, s{sMB}, s{sT2}
    s_lshr_b32 s{sHP}, s{sT0}, 1
    s_lshl_b32 s{sHP}, s{sHP}, 2
    s_lshr_b32 s{sT2}, s{sT1}, 3
    s_add_u32 s{sHP}, s{sHP}, s{sT2}
    s_lshl_b32 s{sM0}, s{sMB}, 7
    s_waitcnt lgkmcnt(0)
    """)
    a.srd(SRDX, sX, 2048 * 1024 * 2)
    a.srd(SRDW, sW, 1024 * 3072 * 2)
    a.srd_off(SRDO, sWS, WS_O, 2048 * 1024 * 2)
    a(f"""
    s_cmp_lt_u32 s{sWave}, 4
    s_cbranch_scc1 {L('compute')}
    """)
    V = Regs(1, 256, 'v')
    vLR, vP, vT, vT2 = V.alloc(), V.alloc(), V.alloc(), V.alloc()
    vA = [V.alloc() for _ in range(4)]
    vB = [V.alloc() for _ in range(6)]
    vH = V.alloc()
    a(f"""
    s_sub_u32 s{sLW}, s{sWave}, 4
    v_lshrrev_b32 v{vLR}, 3, v0
    v_and_b32 v{vP}, 7, v0
    s_lshr_b32 s{sT0}, s{sLW}, 1
    s_lshl_b32 s{sT0}, s{sT0}, 6
    s_and_b32 s{sT1}, s{sLW}, 1
    s_add_u32 s{sT0}, s{sT0}, s{sT1}
    s_add_u32 s{sT0}, s{sT0}, s{sM0}
    v_lshlrev_b32 v{vT}, 1, v{vLR}
    v_add_u32 v{vT}, s{sT0}, v{vT}
    v_lshlrev_b32 v{vT}, 11, v{vT}
    v_xor_b32 v{vT2}, v{vP}, v{vLR}
    v_lshl_add_u32 v{vA[0]}, v{vT2}, 4, v{vT}
    """)
    for u in range(1, 4):
        a(f"v_add_u32 v{vA[u]}, {u*16*2048 - u*1024}, v{vA[0]}")
    a(f"""
    s_lshl_b32 s{sT0}, s{sLW}, 4
    v_add_u32 v{vT}, s{sT0}, v{vLR}
    v_mul_u32_u24 v{vT}, 6144, v{vT}
    s_lshl_b32 s{sT0}, s{sHP}, 7
    v_add_u32 v{vT}, s{sT0}, v{vT}
    v_and_b32 v{vT2}, 2, v{vLR}
    v_xor_b32 v{vT2}, v{vT2}, v{vP}
    v_lshl_add_u32 v{vB[0]}, v{vT2}, 4, v{vT}
    v_xor_b32 v{vT2}, 4, v{vT2}
    v_lshl_add_u32 v{vB[1]}, v{vT2}, 4, v{vT}
    v_add_u32 v{vB[1]}, {8*6144 - 1024}, v{vB[1]}
    """)
    immB = [0, 1024, 2048, 3072, 0, 1024]
    for n in range(2, 6):
        seg, uo = n >> 1, n & 1
        delta = seg * 2048 - immB[n] + immB[uo]
        a(f"v_add_u32 v{vB[n]}, {delta}, v{vB[uo]}")
    a(f"""
    s_and_b32 s{sT0}, s{sLW}, 1
    s_lshl_b32 s{sT1}, s{sT0}, 3
    s_lshr_b32 s{sT2}, s{sLW}, 1
    s_add_u32 s{sT1}, s{sT1}, s{sT2}
    s_add_u32 s{sT1}, s{sT1}, s{sM0}
    s_sub_u32 s{sT1}, s{sT1}, 17
    v_lshlrev_b32 v{vT}, 1, v{vLR}
    v_add_u32 v{vT}, s{sT1}, v{vT}
    v_lshlrev_b32 v{vT}, 11, v{vT}
    s_lshl_b32 s{sT0}, s{sT0}, 2
    v_add_u32 v{vT2}, s{sT0}, v{vLR}
    v_and_b32 v{vT2}, 7, v{vT2}
    v_xor_b32 v{vT2}, v{vT2}, v{vP}
    v_lshl_add_u32 v{vH}, v{vT2}, 4, v{vT}
    s_mul_i32 s{sLM}, s{sLW}, {K1_CH}
    s_mov_b32 s{sKA}, 0
    s_mov_b32 s{sKB}, 0
    s_mov_b32 s{sStg}, 0
    """)
    def issue_stage():
        a(f"s_add_u32 m0, s{sLM}, s{sStg}")
        a(f"s_add_u32 s{sT0}, s{sLM}, s{sStg}")
        for u in range(4):
            a(f"buffer_load_dwordx4 v{vA[u]}, {s(SRDX,4)}, s{sKA} offen offset:{u*1024} lds")
        a(f"s_add_u32 m0, s{sT0}, 4096")
        a("s_nop 0")
        for n in range(4):
            a(f"buffer_load_dwordx4 v{vB[n]}, {s(SRDW,4)}, s{sKB} offen offset:{immB[n]} lds")
        a(f"s_add_u32 m0, s{sT0}, 8192")
        a("s_nop 0")
        for n in range(4, 6):
            a(f"buffer_load_dwordx4 v{vB[n]}, {s(SRDW,4)}, s{sKB} offen offset:{immB[n]} lds")
        a("s_mov_b64 exec, 0xffffffff")
        a(f"buffer_load_dwordx4 v{vH}, {s(SRDX,4)}, s{sKA} offen offset:2048 lds")
        a("s_mov_b64 exec, -1")
        a(f"""
        s_add_u32 s{sKA}, s{sKA}, 128
        s_add_u32 s{sKB}, s{sKB}, {64*6144}
        s_add_u32 s{sStg}, s{sStg}, {K1_STAGE}
        s_cmp_eq_u32 s{sStg}, {3*K1_STAGE}
        s_cselect_b32 s{sStg}, 0, s{sStg}
        """)
    for _ in range(3):
        issue_stage()
    a(f"""
    s_waitcnt vmcnt(22)
    s_barrier
    s_mov_b32 s{sCnt}, 0
    """)
    a.label(L('lloop'))
    a("s_waitcnt vmcnt(11)")
    a("s_barrier")
    issue_stage()
    a(f"""
    s_add_u32 s{sCnt}, s{sCnt}, 1
    s_cmp_lt_u32 s{sCnt}, 13
    s_cbranch_scc1 {L('lloop')}
    s_waitcnt vmcnt(11)
    s_barrier
    s_waitcnt vmcnt(0)
    s_barrier
    s_barrier
    s_barrier
    s_branch {L('end')}
    """)
    a.label(L('compute'))
    V = Regs(1, 256, 'v')
    vI, vG, vT, vT2, vT3 = [V.alloc() for _ in range(5)]
    bA = [V.alloc(), V.alloc()]; bH = [V.alloc(), V.alloc()]; bB = [V.alloc(), V.alloc()]
    cA = [V.alloc(), V.alloc()]; cH = [V.alloc(), V.alloc()]; cB = [V.alloc(), V.alloc()]
    vO = V.alloc(); vXW = V.alloc()
    mCur = V.alloc(2, 2); mPrev = V.alloc(2, 2); mFirst = [V.alloc(2, 2), V.alloc(2, 2)]
    biasCur = V.alloc(4, 4); biasPrev = V.alloc(4, 4); biasFirst = [V.alloc(4, 4), V.alloc(4, 4)]
    QT = [[[V.alloc(4, 4) for db in range(2)] for b in range(2)] for par in range(2)]
    KT = [[[V.alloc(4, 4) for db in range(2)] for b in range(2)] for par in range(2)]
    VV = [[[V.alloc(4, 4) for db in range(2)] for b in range(2)] for par in range(2)]
    HH = [V.alloc(4, 4) for db in range(2)]
    acc0 = QT[0][0][0]; accN = HH[1] + 4
    fr0 = V.mark()
    F = []
    for f in range(2):
        F.append(dict(XA=[[V.alloc(4, 4) for b in range(2)] for par in range(2)], XH=V.alloc(4, 4),
                      WB=[[V.alloc(4, 4) for db in range(2)] for seg in range(3)]))
    frN = V.mark()
    a(f"""
    s_and_b32 s{sH}, s{sWave}, 1
    s_lshr_b32 s{sHF}, s{sWave}, 1
    s_mov_b32 s{s64K}, 65536
    s_mov_b32 s{sScale}, {SCALE}
    s_mov_b32 s{sLog2e}, {LOG2E}
    v_and_b32 v{vI}, 15, v0
    v_lshrrev_b32 v{vG}, 4, v0
    v_and_b32 v{vT}, 7, v{vI}
    v_xor_b32 v{vT}, v{vT}, v{vG}
    v_lshlrev_b32 v{vT}, 4, v{vT}
    s_mul_i32 s{sT0}, s{sHF}, {2*K1_CH}
    v_lshl_add_u32 v{bA[0]}, v{vI}, 7, v{vT}
    v_add_u32 v{bA[0]}, s{sT0}, v{bA[0]}
    v_xor_b32 v{bA[1]}, 64, v{bA[0]}
    v_lshrrev_b32 v{vT2}, 2, v{vI}
    v_mul_u32_u24 v{bH[0]}, {K1_CH}, v{vT2}
    v_and_b32 v{vT3}, 3, v{vI}
    v_lshl_add_u32 v{bH[0]}, v{vT3}, 7, v{bH[0]}
    v_add_u32 v{bH[0]}, v{bH[0]}, v{vT}
    v_add_u32 v{bH[0]}, 10240, v{bH[0]}
    v_xor_b32 v{bH[1]}, 64, v{bH[0]}
    v_lshrrev_b32 v{vT}, 1, v{vG}
    v_mul_u32_u24 v{bB[0]}, {K1_CH}, v{vT}
    v_and_b32 v{vT}, 1, v{vG}
    v_lshl_add_u32 v{bB[1]}, v{vT}, 3, v{vT2}
    v_lshl_add_u32 v{bB[0]}, v{bB[1]}, 7, v{bB[0]}
    v_lshlrev_b32 v{vT}, 2, v{vT}
    v_and_b32 v{bB[1]}, 2, v{vT2}
    v_or_b32 v{vT}, v{vT}, v{bB[1]}
    v_lshrrev_b32 v{bB[1]}, 1, v{vT3}
    s_lshl_b32 s{sT0}, s{sH}, 2
    v_add_u32 v{bB[1]}, s{sT0}, v{bB[1]}
    v_xor_b32 v{vT}, v{vT}, v{bB[1]}
    v_lshl_add_u32 v{bB[0]}, v{vT}, 4, v{bB[0]}
    v_and_b32 v{vT}, 1, v{vT3}
    v_lshl_add_u32 v{bB[0]}, v{vT}, 3, v{bB[0]}
    v_add_u32 v{bB[0]}, 4096, v{bB[0]}
    v_xor_b32 v{bB[1]}, 32, v{bB[0]}
    s_lshl_b32 s{sT0}, s{sHF}, 6
    s_add_u32 s{sT0}, s{sT0}, s{sM0}
    v_lshlrev_b32 v{vO}, 1, v{vI}
    v_add_u32 v{vO}, s{sT0}, v{vO}
    v_lshlrev_b32 v{vO}, 11, v{vO}
    s_lshl_b32 s{sT0}, s{sHP}, 1
    s_add_u32 s{sT0}, s{sT0}, s{sH}
    s_lshl_b32 s{sT0}, s{sT0}, 6
    v_lshl_add_u32 v{vO}, v{vG}, 3, v{vO}
    v_add_u32 v{vO}, s{sT0}, v{vO}
    s_mul_i32 s{sT0}, s{sH}, 5120
    s_add_u32 s{sT0}, s{sT0}, {K1_XCH}
    v_mov_b32 v{vXW}, s{sT0}
    """)
    a(f"v_lshlrev_b32 v{vT}, 2, v{vG}")
    a(f"v_sub_u32 v{vT}, v{vI}, v{vT}")
    a(f"v_mov_b32 v{vT3}, {NEG_BIG}")
    for r in range(4):
        a(f"v_subrev_u32 v{vT2}, {r}, v{vT}")
        a(f"v_cmp_gt_u32 vcc, 8, v{vT2}")
        a("s_nop 1")
        a(f"v_cndmask_b32 v{biasCur+r}, v{vT3}, 0, vcc" if False else f"v_cndmask_b32_e64 v{biasCur+r}, v{vT3}, 0, vcc")
        a(f"v_cmp_gt_i32 vcc, -8, v{vT2}")
        a("s_nop 1")
        a(f"v_cndmask_b32_e64 v{biasPrev+r}, v{vT3}, 0, vcc")
        a(f"v_mov_b32 v{biasFirst[1]+r}, v{biasPrev+r}")
        a(f"v_mov_b32 v{biasFirst[0]+r}, v{biasPrev+r}")
    a(f"""
    s_cmp_lg_u32 s{sHF}, 0
    s_cbranch_scc1 {L('maskdone')}
    """)
    for r in range(4):
        a(f"v_subrev_u32 v{vT2}, {r}, v{vT}")
        a(f"v_cmp_gt_i32 vcc, 0, v{vT2}")
        a(f"v_cmp_gt_u32 s[42:43], 2, v{vG}")
        a("s_nop 1")
        a("s_and_b64 vcc, vcc, s[42:43]")
        a("s_nop 1")
        a(f"v_cndmask_b32_e64 v{biasFirst[0]+r}, v{vT3}, 0, vcc")
    a(f"""
    s_cmp_lg_u32 s{sMB}, 0
    s_cbranch_scc1 {L('maskdone')}
    """)
    for r in range(4):
        a(f"v_mov_b32 v{biasFirst[0]+r}, v{vT3}")
        a(f"v_mov_b32 v{biasFirst[1]+r}, v{vT3}")
    a.label(L('maskdone'))
    def mk_mask(m, bias):
        for h2 in range(2):
            a(f"v_cmp_eq_u32 vcc, 0, v{bias+2*h2}")
            a("s_nop 1")
            a(f"v_cndmask_b32_e64 v{vT}, 0, -1, vcc")
            a(f"v_cmp_eq_u32 vcc, 0, v{bias+2*h2+1}")
            a("s_nop 1")
            a(f"v_cndmask_b32_e64 v{vT2}, 0, -1, vcc")
            a(f"v_and_b32 v{vT}, 0xffff, v{vT}")
            a(f"v_and_b32 v{vT2}, 0xffff0000, v{vT2}")
            a(f"v_or_b32 v{m+h2}, v{vT}, v{vT2}")
    mk_mask(mCur, biasCur); mk_mask(mPrev, biasPrev); mk_mask(mFirst[0], biasFirst[0]); mk_mask(mFirst[1], biasFirst[1])
    for r in range(acc0, accN):
        a(f"v_mov_b32 v{r}, 0")

    def reads(f, kh, aA, aH, aB):
        out = []
        fs = F[f]
        def rb(seg, db):
            r = fs['WB'][seg][db]
            for half in range(2):
                out.append(f"ds_read_b64_tr_b16 {v(r+2*half,2)}, v{aB[db]} offset:{kh*2*K1_CH + seg*2048 + half*512}")
        def ra(par, b):
            out.append(f"ds_read_b128 {v(fs['XA'][par][b],4)}, v{aA} offset:{par*K1_CH + b*2048}")
        ra(0, 0); rb(0, 0); rb(0, 1); ra(0, 1); ra(1, 0); ra(1, 1)
        rb(1, 0); rb(1, 1)
        out.append(f"ds_read_b128 {v(fs['XH'],4)}, v{aH}")
        rb(2, 0); rb(2, 1)
        return out
    def mfmas(f, hf):
        out = []
        fs = F[f]
        def m(d, x, y): out.append(f"v_mfma_f32_16x16x32_bf16 {v(d,4)}, {v(x,4)}, {v(y,4)}, {v(d,4)}")
        for par in range(2):
            for b in range(2):
                for db in range(2):
                    m(QT[par][b][db], fs['WB'][0][db], fs['XA'][par][b])
        for par in range(2):
            for b in range(2):
                for db in range(2):
                    m(KT[par][b][db], fs['WB'][1][db], fs['XA'][par][b])
        if hf == 0:
            for db in range(2): m(HH[db], fs['WB'][1][db], fs['XH'])
        for par in range(2):
            for b in range(2):
                for db in range(2):
                    m(VV[par][b][db], fs['XA'][par][b], fs['WB'][2][db])
        if hf == 1:
            for db in range(2): m(HH[db], fs['XH'], fs['WB'][2][db])
        return out

    a("s_barrier")
    for l in reads(0, 0, bA[0], bH[0], bB): a(l)
    a(f"""
    v_mov_b32 v{cA[1]}, v{bA[1]}
    v_mov_b32 v{cH[1]}, v{bH[1]}
    v_mov_b32 v{cB[0]}, v{bB[0]}
    v_mov_b32 v{cB[1]}, v{bB[1]}
    s_mov_b32 s{sStg}, 0
    s_mov_b32 s{sCnt}, 0
    s_waitcnt lgkmcnt(0)
    s_cmp_eq_u32 s{sHF}, 0
    s_cbranch_scc0 {L('loop1')}
    """)
    P = Regs(fr0, frN, 'pk')
    Qp = [[P.alloc(4, 4) for b in range(2)] for par in range(2)]
    Kp = [[P.alloc(4, 4) for sl in range(3)] for par in range(2)]
    Vp = [[P.alloc(6, 2) for db in range(2)] for par in range(2)]
    VHp = P.alloc(4, 2)
    vLane16 = P.alloc(); vLane8 = P.alloc()
    def pk(d, src):
        a(f"v_cvt_pk_bf16_f32 v{d}, v{src}, v{src+1}")
        a(f"v_cvt_pk_bf16_f32 v{d+1}, v{src+2}, v{src+3}")
    for hf in range(2):
        a.label(L(f'loop{hf}'))
        body = interleave(mfmas(0, hf), reads(1, 1, cA[1], cH[1], cB))
        for l in body: a(l)
        a(f"""
        s_add_u32 s{sStg}, s{sStg}, {K1_STAGE}
        s_cmp_eq_u32 s{sStg}, {3*K1_STAGE}
        s_cselect_b32 s{sStg}, 0, s{sStg}
        v_add_u32 v{cA[0]}, s{sStg}, v{bA[0]}
        v_add_u32 v{cH[0]}, s{sStg}, v{bH[0]}
        v_add_u32 v{cB[0]}, s{sStg}, v{bB[0]}
        v_add_u32 v{cB[1]}, s{sStg}, v{bB[1]}
        v_add_u32 v{cA[1]}, s{sStg}, v{bA[1]}
        v_add_u32 v{cH[1]}, s{sStg}, v{bH[1]}
        s_waitcnt lgkmcnt(0)
        s_barrier
        """)
        body = interleave(mfmas(1, hf), reads(0, 0, cA[0], cH[0], cB))
        for l in body: a(l)
        a(f"""
        s_add_u32 s{sCnt}, s{sCnt}, 1
        s_cmp_lt_u32 s{sCnt}, 16
        s_waitcnt lgkmcnt(0)
        s_cbranch_scc1 {L(f'loop{hf}')}
        s_nop 7
        s_nop 3
        """)
        a(f"v_lshl_add_u32 v{vLane16}, v0, 4, v{vXW}")
        a(f"v_lshl_add_u32 v{vLane8}, v0, 3, v{vXW}")
        if hf == 0:
            for par in range(2):
                for db in range(2):
                    pk(Kp[par][2] + 2*db, KT[par][1][db])
                    pk(Vp[par][db] + 4, VV[par][1][db])
            for par in range(2):
                a(f"ds_write_b128 v{vLane16}, {v(Kp[par][2],4)} offset:{par*1024}")
                for db in range(2):
                    a(f"ds_write_b64 v{vLane8}, {v(Vp[par][db]+4,2)} offset:{2048 + (par*2+db)*512}")
            for par in range(2):
                for db in range(2):
                    pk(Kp[par][0] + 2*db, HH[db])
        else:
            for db in range(2):
                pk(VHp + 2*db, HH[db])
                a(f"ds_write_b64 v{vLane8}, {v(VHp+2*db,2)} offset:{4096 + db*512}")
            for par in range(2):
                for db in range(2):
                    pk(Kp[par][2] + 2*db, KT[par][1][db])
                    pk(Vp[par][db] + 4, VV[par][1][db])
        for par in range(2):
            for db in range(2):
                pk(Kp[par][1] + 2*db, KT[par][0][db])
                pk(Vp[par][db] + 2, VV[par][0][db])
                for b in range(2):
                    pk(Qp[par][b] + 2*db, QT[par][b][db])
        a("s_waitcnt lgkmcnt(0)")
        a("s_barrier")
        if hf == 0:
            for par in range(2):
                for db in range(2):
                    a(f"ds_read_b64 {v(Vp[par][db],2)}, v{vLane8} offset:{4096 + db*512}")
            a(f"s_branch {L('attn')}")
        else:
            for par in range(2):
                a(f"ds_read_b128 {v(Kp[par][0],4)}, v{vLane16} offset:{par*1024}")
                for db in range(2):
                    a(f"ds_read_b64 {v(Vp[par][db],2)}, v{vLane8} offset:{2048 + (par*2+db)*512}")
    a.label(L('attn'))
    A = Regs(acc0, accN, 'acc')
    combos = [(par, b) for par in range(2) for b in range(2)]
    Sp = {c: A.alloc(4, 4) for c in combos}
    Sc = {c: A.alloc(4, 4) for c in combos}
    Pp = {c: A.alloc(4, 4) for c in combos}
    OT = {c: [A.alloc(4, 4) for db in range(2)] for c in combos}
    mx = {c: A.alloc() for c in combos}
    tt = {c: A.alloc() for c in combos}
    for (par, b) in combos:
        a.mfma(Sc[(par, b)], Kp[par][b+1], Qp[par][b], biasCur)
    for par in range(2):
        a.mfma(Sp[(par, 1)], Kp[par][1], Qp[par][1], biasPrev)
    a("s_waitcnt lgkmcnt(0)")
    for par in range(2):
        a.mfma(Sp[(par, 0)], Kp[par][0], Qp[par][0], biasFirst[par])
    a("s_nop 7")
    order = [(0, 1), (1, 1), (0, 0), (1, 0)]
    for c in order:
        for r in range(4):
            a(f"v_max_f32 v{Sc[c]+r}, v{Sc[c]+r}, v{Sp[c]+r}")
        for r in range(4):
            a(f"v_cvt_pk_bf16_f32 v{Sc[c]+r}, 0, v{Sc[c]+r}")
        for r in range(4):
            a(f"v_mul_f32 v{Sc[c]+r}, s{sScale}, v{Sc[c]+r}")
        for r in range(4):
            a(f"v_cvt_pk_bf16_f32 v{Sc[c]+r}, 0, v{Sc[c]+r}")
        a(f"v_max_f32 v{mx[c]}, v{Sc[c]}, v{Sc[c]+1}")
        a(f"v_max3_f32 v{mx[c]}, v{Sc[c]+2}, v{Sc[c]+3}, v{mx[c]}")
    def allreduce(val, op):
        for sw in ("v_permlane32_swap_b32", "v_permlane16_swap_b32"):
            for c in order: a(f"v_mov_b32 v{tt[c]}, v{val[c]}")
            a("s_nop 1")
            for c in order: a(f"{sw} v{val[c]}, v{tt[c]}")
            a("s_nop 1")
            for c in order: a(f"{op} v{val[c]}, v{val[c]}, v{tt[c]}")
    allreduce(mx, "v_max_f32")
    for c in order:
        a(f"v_mul_f32 v{mx[c]}, s{sLog2e}, v{mx[c]}")
    for c in order:
        for r in range(4):
            a(f"v_fma_f32 v{Sc[c]+r}, v{Sc[c]+r}, s{sLog2e}, -v{mx[c]}")
        for r in range(4):
            a(f"v_exp_f32 v{Sc[c]+r}, v{Sc[c]+r}")
    a("s_nop 0")
    for c in order:
        a(f"v_add_f32 v{mx[c]}, v{Sc[c]}, v{Sc[c]+1}")
        a(f"v_add_f32 v{tt[c]}, v{Sc[c]+2}, v{Sc[c]+3}")
        a(f"v_add_f32 v{mx[c]}, v{mx[c]}, v{tt[c]}")
    allreduce(mx, "v_add_f32")
    for c in order:
        a(f"v_rcp_f32 v{mx[c]}, v{mx[c]}")
    a("s_nop 0")
    for c in order:
        par, b = c
        for r in range(4):
            a(f"v_mul_f32 v{Sc[c]+r}, v{Sc[c]+r}, v{mx[c]}")
        pk(Sp[c], Sc[c])
        mp = mPrev if b == 1 else mFirst[par]
        a(f"v_and_b32 v{Pp[c]}, v{Sp[c]}, v{mp}")
        a(f"v_and_b32 v{Pp[c]+1}, v{Sp[c]+1}, v{mp+1}")
        a(f"v_and_b32 v{Pp[c]+2}, v{Sp[c]}, v{mCur}")
        a(f"v_and_b32 v{Pp[c]+3}, v{Sp[c]+1}, v{mCur+1}")
    a("s_nop 1")
    for c in order:
        par, b = c
        for db in range(2):
            a.mfma(OT[c][db], Vp[par][db] + 2*b, Pp[c], None)
    a("s_nop 7")
    for c in order:
        par, b = c
        for db in range(2):
            pk(OT[c][db], OT[c][db])
            so = f"s{s64K}" if b == 1 else "0"
            a(f"buffer_store_dwordx2 {v(OT[c][db],2)}, v{vO}, {s(SRDO,4)}, {so} offen offset:{par*2048 + db*32}")
    a.label(L('end'))
    a("s_endpgm")
    return a.text(), V.hi, 48
```

```python
from asmlib import *
from k1 import WS_O, WS_U, WS_G

K2_STAGE = 24576
K2_NBUF = 6
K2_SPARE = K2_NBUF * K2_STAGE
K2_LDS = K2_SPARE + 16384

def gen_k2(name="k2_kernel"):
    a = Asm()
    a.raw(kernel_header(name))
    L = lambda x: f"{name}_{x}"
    sWO, sCS, sSS, sOUT, sWS = 4, 6, 8, 10, 12
    SRDO, SRDWO, SRDCS, SRDSS, SRDU, SRDG, SRDOUT = 16, 20, 24, 28, 32, 36, 40
    sWave, sCP, sCB, sT0, sT1, sT2, sLW, sKA, sKB, sStg, sCnt, sU0 = range(44, 56)
    sCLS, sCH = 56, 57
    a(f"""
    s_cmp_ge_u32 s2, 256
    s_cbranch_scc1 {L('end')}
    s_load_dwordx2 s[4:5], s[0:1], 16
    s_load_dwordx4 s[6:9], s[0:1], 32
    s_load_dwordx2 s[10:11], s[0:1], 72
    s_load_dwordx2 s[12:13], s[0:1], 88
    v_lshrrev_b32 v1, 6, v0
    v_and_b32 v0, 63, v0
    s_nop 0
    v_readfirstlane_b32 s{sWave}, v1
    s_and_b32 s{sT0}, s2, 7
    s_lshr_b32 s{sT1}, s2, 3
    s_and_b32 s{sCP}, s{sT0}, 3
    s_lshl_b32 s{sCP}, s{sCP}, 2
    s_and_b32 s{sT2}, s{sT1}, 3
    s_add_u32 s{sCP}, s{sCP}, s{sT2}
    s_lshr_b32 s{sCB}, s{sT0}, 2
    s_lshl_b32 s{sCB}, s{sCB}, 3
    s_lshr_b32 s{sT2}, s{sT1}, 2
    s_add_u32 s{sCB}, s{sCB}, s{sT2}
    s_waitcnt lgkmcnt(0)
    """.replace("s_load_dwordx4 s[6:9], s[0:1], 32", "s_load_dwordx2 s[6:7], s[0:1], 32\ns_load_dwordx2 s[8:9], s[0:1], 40"))
    a.srd_off(SRDO, sWS, WS_O, 4 << 20)
    a.srd(SRDWO, sWO, 2 << 20)
    a.srd(SRDCS, sCS, 8 << 20)
    a.srd(SRDSS, sSS, 8 << 20)
    a.srd_off(SRDU, sWS, WS_U, 8 << 20)
    a.srd_off(SRDG, sWS, WS_G, 2048 * 4)
    a.srd(SRDOUT, sOUT, 4 << 20)
    a(f"""
    s_cmp_lt_u32 s{sWave}, 4
    s_cbranch_scc1 {L('compute')}
    """)
    V = Regs(1, 256, 'v')
    vLR, vP, vT, vT2 = [V.alloc() for _ in range(4)]
    vA = [V.alloc() for _ in range(4)]
    vY = [V.alloc() for _ in range(4)]
    vB = [V.alloc() for _ in range(2)]
    a(f"""
    s_sub_u32 s{sLW}, s{sWave}, 4
    v_lshrrev_b32 v{vLR}, 3, v0
    v_and_b32 v{vP}, 7, v0
    s_lshl_b32 s{sT0}, s{sCP}, 1
    s_lshr_b32 s{sT1}, s{sLW}, 1
    s_add_u32 s{sT0}, s{sT0}, s{sT1}
    s_and_b32 s{sT1}, s{sLW}, 1
    s_lshl_b32 s{sT1}, s{sT1}, 10
    s_add_u32 s{sT0}, s{sT0}, s{sT1}
    v_lshlrev_b32 v{vT}, 5, v{vLR}
    v_add_u32 v{vT}, s{sT0}, v{vT}
    v_xor_b32 v{vT2}, v{vP}, v{vLR}
    v_lshlrev_b32 v{vT2}, 4, v{vT2}
    v_lshl_add_u32 v{vA[0]}, v{vT}, 11, v{vT2}
    v_lshl_add_u32 v{vY[0]}, v{vT}, 12, v{vT2}
    """)
    for u in range(1, 4):
        a(f"v_add_u32 v{vA[u]}, {u*256*2048 - u*1024}, v{vA[0]}")
        a(f"v_add_u32 v{vY[u]}, {u*256*4096 - u*1024}, v{vY[0]}")
    a(f"""
    s_lshl_b32 s{sT0}, s{sLW}, 4
    v_add_u32 v{vT}, s{sT0}, v{vLR}
    v_lshlrev_b32 v{vT}, 11, v{vT}
    s_lshl_b32 s{sT0}, s{sCB}, 7
    v_add_u32 v{vT}, s{sT0}, v{vT}
    v_and_b32 v{vT2}, 2, v{vLR}
    v_xor_b32 v{vT2}, v{vT2}, v{vP}
    v_lshl_add_u32 v{vB[0]}, v{vT2}, 4, v{vT}
    v_xor_b32 v{vT2}, 4, v{vT2}
    v_lshl_add_u32 v{vB[1]}, v{vT2}, 4, v{vT}
    v_add_u32 v{vB[1]}, {8*2048 - 1024}, v{vB[1]}
    s_lshl_b32 s{sU0}, s{sCP}, 19
    s_lshl_b32 s{sT1}, s{sLW}, 12
    s_lshl_b32 s{sT2}, s{sLW}, 11
    """)
    for y in range(2):
        srd = SRDCS if y == 0 else SRDSS
        a(f"s_add_u32 m0, s{sT1}, {y*K2_STAGE}")
        a("s_nop 0")
        for u in range(4):
            a(f"buffer_load_dwordx4 v{vY[u]}, {s(srd,4)}, 0 offen offset:{u*1024} lds")
        for cls in range(2):
            dst = (y*K2_STAGE + 16384) if cls == 0 else (K2_SPARE + y*8192)
            a(f"s_add_u32 m0, s{sT2}, {dst}")
            a(f"s_add_u32 s{sT0}, s{sU0}, {(cls*2 + y)*131072}")
            for uo in range(2):
                a(f"buffer_load_dwordx4 v{vB[uo]}, {s(SRDU,4)}, s{sT0} offen offset:{uo*1024} lds")
    a(f"""
    s_mov_b32 s{sKA}, 0
    s_mov_b32 s{sKB}, 0
    s_mov_b32 s{sStg}, {2*K2_STAGE}
    s_add_u32 s{sT2}, s{sT2}, 16384
    """)
    def issue_stage():
        a(f"s_add_u32 m0, s{sT1}, s{sStg}")
        a("s_nop 0")
        for u in range(4):
            a(f"buffer_load_dwordx4 v{vA[u]}, {s(SRDO,4)}, s{sKA} offen offset:{u*1024} lds")
        a(f"s_add_u32 m0, s{sT2}, s{sStg}")
        a(f"s_add_u32 s{sKA}, s{sKA}, 128")
        for uo in range(2):
            a(f"buffer_load_dwordx4 v{vB[uo]}, {s(SRDWO,4)}, s{sKB} offen offset:{uo*1024} lds")
        a(f"""
        s_add_u32 s{sKB}, s{sKB}, {64*2048}
        s_add_u32 s{sStg}, s{sStg}, {K2_STAGE}
        s_cmp_eq_u32 s{sStg}, {K2_NBUF*K2_STAGE}
        s_cselect_b32 s{sStg}, 0, s{sStg}
        """)
    for _ in range(4):
        issue_stage()
    a("s_waitcnt vmcnt(32)")
    a("s_barrier")
    a("s_waitcnt vmcnt(24)")
    a("s_barrier")
    issue_stage()
    a(f"s_mov_b32 s{sCnt}, 1")
    a.label(L('lloop'))
    a("s_waitcnt vmcnt(24)")
    a("s_barrier")
    issue_stage()
    a(f"""
    s_add_u32 s{sCnt}, s{sCnt}, 1
    s_cmp_lt_u32 s{sCnt}, 12
    s_cbranch_scc1 {L('lloop')}
    """)
    for st in range(12, 18):
        rem = max(0, 17 - (st + 1))
        a(f"s_waitcnt vmcnt({6*rem})")
        a("s_barrier")
    a(f"s_branch {L('end')}")
    a.label(L('compute'))
    V = Regs(1, 256, 'v')
    vI, vG, vR, vC, vT, vT2 = [V.alloc() for _ in range(6)]
    bA = [V.alloc(), V.alloc()]; bB = [V.alloc(), V.alloc()]
    cA = [V.alloc(), V.alloc()]; cB = [V.alloc(), V.alloc()]
    yB = [V.alloc(), V.alloc()]
    vOut = V.alloc()
    gv = V.alloc(4); og = V.alloc(4)
    accA = [[V.alloc(4, 4) for db in range(2)] for rb in range(4)]
    accY = [[V.alloc(4, 4) for db in range(2)] for rb in range(4)]
    F = [dict(XA=[V.alloc(4, 4) for rb in range(4)], WB=[V.alloc(4, 4) for db in range(2)]) for f in range(2)]
    a(f"""
    s_lshr_b32 s{sCLS}, s{sWave}, 1
    s_and_b32 s{sCH}, s{sWave}, 1
    v_and_b32 v{vI}, 15, v0
    v_lshrrev_b32 v{vG}, 4, v0
    v_lshrrev_b32 v{vR}, 2, v{vI}
    v_and_b32 v{vC}, 3, v{vI}
    s_lshl_b32 s{sT0}, s{sCP}, 1
    s_add_u32 s{sT0}, s{sT0}, s{sCLS}
    v_lshlrev_b32 v{vT}, 5, v{vI}
    v_add_u32 v{vT}, s{sT0}, v{vT}
    v_lshlrev_b32 v{vT2}, 2, v{vT}
    """)
    for rb in range(4):
        if rb < 2:
            a(f"buffer_load_dword v{gv+rb}, v{vT2}, {s(SRDG,4)}, 0 offen offset:{rb*2048}")
        else:
            a(f"s_mov_b32 s{sT1}, {rb*2048}")
            a(f"buffer_load_dword v{gv+rb}, v{vT2}, {s(SRDG,4)}, s{sT1} offen")
    a(f"""
    v_lshlrev_b32 v{vOut}, 11, v{vT}
    v_lshl_add_u32 v{vOut}, v{vG}, 3, v{vOut}
    s_lshl_b32 s{sT0}, s{sCB}, 7
    s_lshl_b32 s{sT1}, s{sCH}, 6
    s_add_u32 s{sT0}, s{sT0}, s{sT1}
    v_add_u32 v{vOut}, s{sT0}, v{vOut}
    v_and_b32 v{vT}, 7, v{vI}
    v_xor_b32 v{vT}, v{vT}, v{vG}
    v_lshlrev_b32 v{vT}, 4, v{vT}
    v_lshl_add_u32 v{bA[0]}, v{vI}, 7, v{vT}
    s_lshl_b32 s{sT0}, s{sCLS}, 13
    v_add_u32 v{bA[0]}, s{sT0}, v{bA[0]}
    v_xor_b32 v{bA[1]}, 64, v{bA[0]}
    v_lshl_add_u32 v{bB[0]}, v{vG}, 3, v{vR}
    v_lshlrev_b32 v{bB[0]}, 7, v{bB[0]}
    v_and_b32 v{vT}, 1, v{vG}
    v_lshlrev_b32 v{vT}, 2, v{vT}
    v_and_b32 v{vT2}, 2, v{vR}
    v_or_b32 v{vT}, v{vT}, v{vT2}
    v_lshrrev_b32 v{vT2}, 1, v{vC}
    s_lshl_b32 s{sT0}, s{sCH}, 2
    v_add_u32 v{vT2}, s{sT0}, v{vT2}
    v_xor_b32 v{vT}, v{vT}, v{vT2}
    v_lshl_add_u32 v{bB[0]}, v{vT}, 4, v{bB[0]}
    v_and_b32 v{vT}, 1, v{vC}
    v_lshl_add_u32 v{bB[0]}, v{vT}, 3, v{bB[0]}
    v_xor_b32 v{bB[1]}, 32, v{bB[0]}
    s_cmp_eq_u32 s{sCLS}, 0
    s_mov_b32 s{sT0}, {K2_SPARE}
    s_mov_b32 s{sT1}, 8192
    s_cselect_b32 s{sT0}, 16384, s{sT0}
    s_cselect_b32 s{sT1}, {K2_STAGE}, s{sT1}
    v_add_u32 v{yB[0]}, s{sT0}, v{bB[0]}
    v_add_u32 v{yB[1]}, s{sT0}, v{bB[1]}
    v_add_u32 v{bB[0]}, 16384, v{bB[0]}
    v_add_u32 v{bB[1]}, 16384, v{bB[1]}
    """)
    for rb in range(4):
        for db in range(2):
            for r in range(4):
                a(f"v_mov_b32 v{accA[rb][db]+r}, 0")
                a(f"v_mov_b32 v{accY[rb][db]+r}, 0")
    def reads(f, kh, aA, aB):
        out = []
        fs = F[f]
        for db in range(2):
            for half in range(2):
                out.append(f"ds_read_b64_tr_b16 {v(fs['WB'][db]+2*half,2)}, v{aB[db]} offset:{kh*4096 + half*512}")
            if db == 0:
                out.append(f"ds_read_b128 {v(fs['XA'][0],4)}, v{aA}")
        for rb in range(1, 4):
            out.append(f"ds_read_b128 {v(fs['XA'][rb],4)}, v{aA} offset:{rb*2048}")
        return out
    def mfmas(f, acc):
        fs = F[f]
        return [f"v_mfma_f32_16x16x32_bf16 {v(acc[rb][db],4)}, {v(fs['WB'][db],4)}, {v(fs['XA'][rb],4)}, {v(acc[rb][db],4)}"
                for rb in range(4) for db in range(2)]
    def il2(main, fill):
        out = []
        fi = 0
        for m in main:
            out.append(m)
            for _ in range(2):
                if fi < len(fill):
                    out.append(fill[fi]); fi += 1
        return out
    a("s_barrier")
    for l in reads(0, 0, bA[0], yB): a(l)
    a("s_waitcnt lgkmcnt(0)")
    for l in il2(mfmas(0, accY), reads(1, 1, bA[1], yB)): a(l)
    a(f"""
    v_add_u32 v{cA[0]}, {K2_STAGE}, v{bA[0]}
    v_add_u32 v{cA[1]}, {K2_STAGE}, v{bA[1]}
    v_add_u32 v{yB[0]}, s{sT1}, v{yB[0]}
    v_add_u32 v{yB[1]}, s{sT1}, v{yB[1]}
    s_waitcnt lgkmcnt(0)
    s_barrier
    """)
    for l in il2(mfmas(1, accY), reads(0, 0, cA[0], yB)): a(l)
    a("s_waitcnt lgkmcnt(0)")
    for l in il2(mfmas(0, accY), reads(1, 1, cA[1], yB)): a(l)
    a(f"""
    s_mov_b32 s{sStg}, {2*K2_STAGE}
    v_add_u32 v{cA[0]}, s{sStg}, v{bA[0]}
    v_add_u32 v{cA[1]}, s{sStg}, v{bA[1]}
    v_add_u32 v{cB[0]}, s{sStg}, v{bB[0]}
    v_add_u32 v{cB[1]}, s{sStg}, v{bB[1]}
    s_waitcnt lgkmcnt(0)
    s_barrier
    """)
    for l in il2(mfmas(1, accY), reads(0, 0, cA[0], cB)): a(l)
    a(f"s_mov_b32 s{sCnt}, 0")
    a("s_waitcnt lgkmcnt(0)")
    a.label(L('cloop'))
    for l in il2(mfmas(0, accA), reads(1, 1, cA[1], cB)): a(l)
    a(f"""
    s_add_u32 s{sStg}, s{sStg}, {K2_STAGE}
    s_cmp_eq_u32 s{sStg}, {K2_NBUF*K2_STAGE}
    s_cselect_b32 s{sStg}, 0, s{sStg}
    v_add_u32 v{cA[0]}, s{sStg}, v{bA[0]}
    v_add_u32 v{cA[1]}, s{sStg}, v{bA[1]}
    v_add_u32 v{cB[0]}, s{sStg}, v{bB[0]}
    v_add_u32 v{cB[1]}, s{sStg}, v{bB[1]}
    s_waitcnt lgkmcnt(0)
    s_barrier
    """)
    for l in il2(mfmas(1, accA), reads(0, 0, cA[0], cB)): a(l)
    a(f"""
    s_add_u32 s{sCnt}, s{sCnt}, 1
    s_cmp_lt_u32 s{sCnt}, 16
    s_waitcnt lgkmcnt(0)
    s_cbranch_scc1 {L('cloop')}
    s_waitcnt vmcnt(0)
    """)
    for rb in range(4):
        a(f"v_sub_f32 v{og+rb}, 1.0, v{gv+rb}")
        a(f"v_cvt_pk_bf16_f32 v{og+rb}, 0, v{og+rb}")
    a("s_nop 7")
    for rb in range(4):
        if rb:
            a(f"s_mov_b32 s{sT0}, {rb*512*2048}")
        for db in range(2):
            A_, Y_ = accA[rb][db], accY[rb][db]
            for r in range(4):
                a(f"v_cvt_pk_bf16_f32 v{A_+r}, 0, v{A_+r}")
                a(f"v_cvt_pk_bf16_f32 v{Y_+r}, 0, v{Y_+r}")
                a(f"v_mul_f32 v{A_+r}, v{A_+r}, v{gv+rb}")
                a(f"v_mul_f32 v{Y_+r}, v{Y_+r}, v{og+rb}")
                a(f"v_cvt_pk_bf16_f32 v{A_+r}, 0, v{A_+r}")
                a(f"v_cvt_pk_bf16_f32 v{Y_+r}, 0, v{Y_+r}")
                a(f"v_add_f32 v{A_+r}, v{A_+r}, v{Y_+r}")
            a(f"v_cvt_pk_bf16_f32 v{Y_}, v{A_}, v{A_+1}")
            a(f"v_cvt_pk_bf16_f32 v{Y_+1}, v{A_+2}, v{A_+3}")
            so = f"s{sT0}" if rb else "0"
            a(f"buffer_store_dwordx2 {v(Y_,2)}, v{vOut}, {s(SRDOUT,4)}, {so} offen offset:{db*32}")
    a.label(L('end'))
    a("s_endpgm")
    return a.text(), V.hi, 64
```

```python
from asmlib import *
from k1 import WS_O, WS_U, WS_G, LOG2E

KF_CB = 65536
KF_CROW = 2056
KF_LDS = KF_CB + 16 * KF_CROW

def gen_kf(name="kf_kernel"):
    a = Asm()
    a.raw(kernel_header(name))
    L = lambda x: f"{name}_{x}"
    sX, sGW, sWS = 4, 6, 8
    SRDX, SRDGW, SRDU, SRDG = 12, 16, 20, 24
    sWave, sS2, sQ, sT0, sT1, sT2, sRI = 28, 29, 30, 31, 32, 33, 34
    a(f"""
    s_cmp_ge_u32 s2, 256
    s_cbranch_scc1 {L('end')}
    s_load_dwordx2 s[4:5], s[0:1], 0
    s_load_dwordx2 s[6:7], s[0:1], 64
    s_load_dwordx2 s[8:9], s[0:1], 88
    v_lshrrev_b32 v1, 6, v0
    v_and_b32 v0, 63, v0
    s_nop 0
    v_readfirstlane_b32 s{sWave}, v1
    s_and_b32 s{sS2}, s2, 63
    s_lshr_b32 s{sQ}, s2, 6
    s_mov_b32 s{sRI}, 131072
    s_waitcnt lgkmcnt(0)
    """)
    a.srd(SRDX, sX, 2048 * 1024 * 2)
    a.srd(SRDGW, sGW, 2048)
    a.srd_off(SRDU, sWS, WS_U, 8 << 20)
    a.srd_off(SRDG, sWS, WS_G, 2048 * 4)
    V = Regs(1, 256, 'v')
    vI, vG, vR, vC, vT, vT2, vT3 = [V.alloc() for _ in range(7)]
    vL = [V.alloc() for _ in range(4)]
    a(f"""
    v_lshrrev_b32 v{vT}, 1, v0
    v_and_b32 v{vT2}, 1, v0
    v_lshlrev_b32 v{vT2}, 4, v{vT2}
    s_and_b32 s{sT0}, s{sWave}, 1
    s_lshl_b32 s{sT0}, s{sT0}, 2
    s_lshl_b32 s{sT1}, s{sWave}, 8
    s_add_u32 s{sT1}, s{sT1}, s{sS2}
    s_lshl_b32 s{sT1}, s{sT1}, 11
    """)
    for rr in range(4):
        a(f"""
        s_add_u32 s{sT2}, s{sT0}, {rr}
        v_xor_b32 v{vT3}, s{sT2}, v{vT}
        v_lshl_add_u32 v{vL[rr]}, v{vT3}, 5, v{vT2}
        s_add_u32 s{sT2}, s{sT1}, {rr*64*2048 - (rr&1)*2048}
        v_add_u32 v{vL[rr]}, s{sT2}, v{vL[rr]}
        """)
    a(f"s_lshl_b32 s{sT0}, s{sWave}, 13")
    for pr in range(2):
        a(f"s_add_u32 m0, s{sT0}, {pr*4096}")
        a("s_nop 0")
        for rr in (2*pr, 2*pr+1):
            for hh in range(2):
                a(f"buffer_load_dwordx4 v{vL[rr]}, {s(SRDX,4)}, 0 offen offset:{(rr&1)*2048 + hh*1024} lds")
    GW = V.alloc(8, 4)
    a(f"""
    v_xor_b32 v{vT}, s{sWave}, v0
    v_lshlrev_b32 v{vT}, 5, v{vT}
    buffer_load_dwordx4 {v(GW,4)}, v{vT}, {s(SRDGW,4)}, 0 offen
    buffer_load_dwordx4 {v(GW+4,4)}, v{vT}, {s(SRDGW,4)}, 0 offen offset:16
    """)
    a(f"""
    v_and_b32 v{vI}, 15, v0
    v_lshrrev_b32 v{vG}, 4, v0
    v_lshrrev_b32 v{vR}, 2, v{vI}
    v_and_b32 v{vC}, 3, v{vI}
    """)
    kkf = [V.alloc() for _ in range(8)]
    a(f"v_lshlrev_b32 v{vT}, 2, v{vG}")
    a(f"v_cvt_f32_u32 v{kkf[0]}, v{vT}")
    for j in range(1, 8):
        kk = j if j < 4 else 16 + (j - 4)
        a(f"v_add_f32 v{kkf[j]}, {f32bits(float(kk))}, v{kkf[0]}")
    ef = [V.alloc(), V.alloc()]
    a(f"""
    v_lshl_add_u32 v{vT}, v{vR}, 3, v{vC}
    v_cvt_f32_u32 v{ef[0]}, v{vT}
    v_add_f32 v{ef[1]}, 4.0, v{ef[0]}
    """)
    B0 = V.alloc(4, 4)
    COS = [V.alloc(4, 4) for _ in range(2)]
    SIN = [V.alloc(4, 4) for _ in range(2)]
    NSIN = [V.alloc(4, 4) for _ in range(2)]
    TWC = [[V.alloc(4) for eb in range(2)] for db2 in range(2)]
    TWS = [[V.alloc(4) for eb in range(2)] for db2 in range(2)]
    tmp = V.alloc(16, 4)
    a(f"""
    v_lshrrev_b32 v{vT}, 1, v{vI}
    s_lshl_b32 s{sT0}, s{sQ}, 3
    v_add_u32 v{vT}, s{sT0}, v{vT}
    v_cvt_f32_u32 v{vT}, v{vT}
    v_mul_f32 v{vT}, {f32bits(1/32)}, v{vT}
    v_and_b32 v{vT2}, 1, v{vI}
    v_cvt_f32_u32 v{vT2}, v{vT2}
    v_mul_f32 v{vT2}, {f32bits(0.25)}, v{vT2}
    """)
    for j in range(8):
        a(f"v_fma_f32 v{tmp+j}, v{vT}, v{kkf[j]}, v{vT2}")
    for j in range(8):
        a(f"v_cos_f32 v{tmp+j}, v{tmp+j}")
    a("s_nop 0")
    for j in range(4):
        a(f"v_cvt_pk_bf16_f32 v{B0+j}, v{tmp+2*j}, v{tmp+2*j+1}")
    for eb in range(2):
        a(f"v_mul_f32 v{vT}, {f32bits(1/32)}, v{ef[eb]}")
        for j in range(8):
            a(f"v_mul_f32 v{tmp+j}, v{vT}, v{kkf[j]}")
        for j in range(8):
            a(f"v_sin_f32 v{tmp+8+j}, v{tmp+j}")
        for j in range(8):
            a(f"v_cos_f32 v{tmp+j}, v{tmp+j}")
        a("s_nop 0")
        for j in range(4):
            a(f"v_cvt_pk_bf16_f32 v{SIN[eb]+j}, v{tmp+8+2*j}, v{tmp+8+2*j+1}")
            a(f"v_cvt_pk_bf16_f32 v{COS[eb]+j}, v{tmp+2*j}, v{tmp+2*j+1}")
            a(f"v_xor_b32 v{NSIN[eb]+j}, 0x80008000, v{SIN[eb]+j}")
    for eb in range(2):
        a(f"v_mul_f32 v{vT}, {f32bits(1/1024)}, v{ef[eb]}")
        for db2 in range(2):
            for r in range(4):
                a(f"v_mul_f32 v{TWC[db2][eb]+r}, v{vT}, v{kkf[4*db2+r]}")
            for r in range(4):
                a(f"v_sin_f32 v{TWS[db2][eb]+r}, v{TWC[db2][eb]+r}")
            for r in range(4):
                a(f"v_cos_f32 v{TWC[db2][eb]+r}, v{TWC[db2][eb]+r}")
    a0 = V.alloc(); aW = [V.alloc(), V.alloc()]; a1 = [V.alloc(), V.alloc()]; aU = V.alloc(); aG = V.alloc()
    a(f"""
    v_lshl_add_u32 v{vT}, v{vG}, 2, v{vR}
    v_lshlrev_b32 v{a0}, 11, v{vT}
    v_and_b32 v{vT2}, 7, v{vT}
    v_lshl_add_u32 v{a0}, v{vT2}, 5, v{a0}
    v_lshl_add_u32 v{a0}, v{vC}, 3, v{a0}
    s_lshl_b32 s{sT0}, s{sWave}, 8
    v_add_u32 v{a0}, s{sT0}, v{a0}
    v_mul_u32_u24 v{aW[0]}, {KF_CROW}, v{vI}
    v_lshl_add_u32 v{aW[0]}, v{vG}, 3, v{aW[0]}
    s_and_b32 s{sT1}, s{sWave}, 1
    s_lshl_b32 s{sT1}, s{sT1}, 5
    s_add_u32 s{sT0}, s{sT0}, {KF_CB}
    s_add_u32 s{sT2}, s{sT0}, s{sT1}
    s_xor_b32 s{sT1}, s{sT1}, 32
    s_add_u32 s{sT1}, s{sT0}, s{sT1}
    v_add_u32 v{aW[1]}, s{sT1}, v{aW[0]}
    v_add_u32 v{aW[0]}, s{sT2}, v{aW[0]}
    v_lshlrev_b32 v{a1[0]}, 6, v{vT}
    v_lshl_add_u32 v{a1[0]}, v{vC}, 3, v{a1[0]}
    v_and_b32 v{vT2}, 1, v{vG}
    v_lshl_add_u32 v{a1[0]}, v{vT2}, 5, v{a1[0]}
    v_xor_b32 v{a1[1]}, 32, v{a1[0]}
    s_mul_i32 s{sT0}, s{sWave}, {2*KF_CROW}
    s_add_u32 s{sT0}, s{sT0}, {KF_CB}
    v_add_u32 v{a1[0]}, s{sT0}, v{a1[0]}
    v_add_u32 v{a1[1]}, s{sT0}, v{a1[1]}
    s_lshl_b32 s{sT0}, s{sQ}, 3
    s_add_u32 s{sT0}, s{sT0}, s{sWave}
    s_lshl_b32 s{sT1}, s{sT0}, 7
    s_add_u32 s{sT1}, s{sT1}, s{sS2}
    s_lshl_b32 s{sT1}, s{sT1}, 11
    v_lshl_add_u32 v{aU}, v{vR}, 3, v{vC}
    v_lshlrev_b32 v{aU}, 6, v{aU}
    v_lshl_add_u32 v{aU}, v{vG}, 4, v{aU}
    v_add_u32 v{aU}, s{sT1}, v{aU}
    s_lshl_b32 s{sT1}, s{sT0}, 11
    v_lshlrev_b32 v{aG}, 5, v0
    v_add_u32 v{aG}, s{sT1}, v{aG}
    s_lshl_b32 s{sT2}, s{sT0}, 6
    s_add_u32 s{sT2}, s{sT2}, s{sS2}
    s_lshl_b32 s{sT2}, s{sT2}, 2
    s_waitcnt vmcnt(0)
    s_barrier
    """)
    XA = [V.alloc(4, 4) for _ in range(8)]
    D0 = [V.alloc(4, 4) for _ in range(8)]
    GX = V.alloc(8, 4)
    for i in range(8):
        if i == 0:
            ad = a0
        else:
            a(f"v_xor_b32 v{vT}, {i*32}, v{a0}")
            ad = vT
        for half in range(2):
            a(f"ds_read_b64_tr_b16 {v(XA[i]+2*half,2)}, v{ad} offset:{half*32768}")
    a(f"ds_read_b128 {v(GX,4)}, v{aG}")
    a(f"ds_read_b128 {v(GX+4,4)}, v{aG} offset:16")
    for i in range(8):
        a(f"s_waitcnt lgkmcnt({min(15, 2*(7-i)+2)})")
        a.mfma(D0[i], XA[i], B0, None)
    a("s_nop 7")
    for i in range(8):
        a(f"v_cvt_pk_bf16_f32 v{D0[i]}, v{D0[i]}, v{D0[i]+1}")
        a(f"v_cvt_pk_bf16_f32 v{D0[i]+1}, v{D0[i]+2}, v{D0[i]+3}")
        a(f"ds_write_b64 v{aW[i&1]}, {v(D0[i],2)} offset:{(i>>1)*64}")
    acc = V.alloc()
    a(f"v_mov_b32 v{acc}, 0")
    a(f"v_mov_b32 v{vT3}, 0x3f803f80")
    for j in range(8):
        a(f"""
        v_lshlrev_b32 v{tmp}, 16, v{GX+j}
        v_and_b32 v{tmp+1}, 0xffff0000, v{GX+j}
        v_lshlrev_b32 v{tmp+2}, 16, v{GW+j}
        v_and_b32 v{tmp+3}, 0xffff0000, v{GW+j}
        v_mul_f32 v{tmp}, v{tmp}, v{tmp+2}
        v_mul_f32 v{tmp+1}, v{tmp+1}, v{tmp+3}
        v_cvt_pk_bf16_f32 v{tmp+4}, 0, v{tmp}
        v_cvt_pk_bf16_f32 v{tmp+5}, 0, v{tmp+1}
        v_add_f32 v{acc}, v{acc}, v{tmp+4}
        v_add_f32 v{acc}, v{acc}, v{tmp+5}
        """)
    for n in (8, 4, 2, 1):
        a("s_nop 1")
        a(f"v_add_f32_dpp v{acc}, v{acc}, v{acc} row_ror:{n} row_mask:0xf bank_mask:0xf")
    for sw in ("v_permlane32_swap_b32", "v_permlane16_swap_b32"):
        a(f"v_mov_b32 v{tmp}, v{acc}")
        a("s_nop 1")
        a(f"{sw} v{acc}, v{tmp}")
        a("s_nop 1")
        a(f"v_add_f32 v{acc}, v{acc}, v{tmp}")
    a(f"""
    v_cvt_pk_bf16_f32 v{acc}, 0, v{acc}
    v_mul_f32 v{acc}, {f32bits(-1.4426950408889634)}, v{acc}
    v_exp_f32 v{acc}, v{acc}
    s_nop 0
    v_add_f32 v{acc}, 1.0, v{acc}
    v_rcp_f32 v{acc}, v{acc}
    s_nop 0
    v_cvt_pk_bf16_f32 v{acc}, 0, v{acc}
    v_mov_b32 v{tmp}, s{sT2}
    s_mov_b64 exec, 1
    buffer_store_dword v{acc}, v{tmp}, {s(SRDG,4)}, 0 offen
    s_mov_b64 exec, -1
    s_waitcnt lgkmcnt(0)
    s_barrier
    """)
    Cf = [[XA[0], XA[1]], [XA[2], XA[3]]]
    for ri in range(2):
        for db2 in range(2):
            for half in range(2):
                a(f"ds_read_b64_tr_b16 {v(Cf[ri][db2]+2*half,2)}, v{a1[db2]} offset:{half*1024 + ri*KF_CROW}")
    Tr = [[D0[0], D0[1]], [D0[2], D0[3]]]
    Ti = [[D0[4], D0[5]], [D0[6], D0[7]]]
    a("s_waitcnt lgkmcnt(4)")
    for db2 in range(2):
        for eb in range(2):
            a.mfma(Tr[db2][eb], Cf[0][db2], COS[eb], None)
            a.mfma(Ti[db2][eb], Cf[0][db2], NSIN[eb], None)
    a("s_waitcnt lgkmcnt(0)")
    for db2 in range(2):
        for eb in range(2):
            a.mfma(Tr[db2][eb], Cf[1][db2], SIN[eb], Tr[db2][eb])
            a.mfma(Ti[db2][eb], Cf[1][db2], COS[eb], Ti[db2][eb])
    a("s_nop 7")
    Ar = [XA[4], XA[5]]; nAi = [XA[6], XA[7]]
    for db2 in range(2):
        for eb in range(2):
            for r in range(4):
                tr, ti, c, sn = Tr[db2][eb]+r, Ti[db2][eb]+r, TWC[db2][eb]+r, TWS[db2][eb]+r
                a(f"v_mul_f32 v{tmp+r}, v{tr}, v{c}")
                a(f"v_mul_f32 v{tmp+4+r}, v{tr}, v{sn}")
                a(f"v_fma_f32 v{tmp+r}, v{ti}, v{sn}, v{tmp+r}")
                a(f"v_fma_f32 v{tmp+4+r}, -v{ti}, v{c}, v{tmp+4+r}")
            for h2 in range(2):
                a(f"v_cvt_pk_bf16_f32 v{Ar[eb]+2*db2+h2}, v{tmp+2*h2}, v{tmp+2*h2+1}")
                a(f"v_cvt_pk_bf16_f32 v{nAi[eb]+2*db2+h2}, v{tmp+4+2*h2}, v{tmp+4+2*h2+1}")
    a("s_nop 1")
    Wr = Tr; nWi = Ti
    for eb in range(2):
        for eb2 in range(2):
            a.mfma(Wr[eb][eb2], Ar[eb], COS[eb2], None)
            a.mfma(nWi[eb][eb2], Ar[eb], SIN[eb2], None)
    for eb in range(2):
        for eb2 in range(2):
            a.mfma(Wr[eb][eb2], nAi[eb], NSIN[eb2], Wr[eb][eb2])
            a.mfma(nWi[eb][eb2], nAi[eb], COS[eb2], nWi[eb][eb2])
    a("s_nop 7")
    k = 0
    for ri, W in enumerate((Wr, nWi)):
        for eb2 in range(2):
            o = XA[k]; k += 1
            for eb in range(2):
                a(f"v_cvt_pk_bf16_f32 v{o+2*eb}, v{W[eb][eb2]}, v{W[eb][eb2]+1}")
                a(f"v_cvt_pk_bf16_f32 v{o+2*eb+1}, v{W[eb][eb2]+2}, v{W[eb][eb2]+3}")
            so = f"s{sRI}" if ri else "0"
            a(f"buffer_store_dwordx4 {v(o,4)}, v{aU}, {s(SRDU,4)}, {so} offen offset:{eb2*256}")
    a.label(L('end'))
    a("s_endpgm")
    return a.text(), V.hi, 40
```

```python
import sys
from asmlib import *
import k1, kf, k2
NAME = "gated_mix__sliding_local_dilated__spectral_fnet__prompt"
def build(kernels):
    ref = open(f"cdna_kernels/{NAME}.s.ref").read().splitlines()
    head = [l for l in ref if l.startswith(';') and '@launch' not in l and 'Override launch' not in l and 'grid=ceil' not in l]
    out = head[:]
    for (nm, txt, vg, sg, lds, grid, blk) in kernels:
        out.append(f"; @launch kernel={nm} grid=({grid},1,1) block=({blk},1,1) lds={lds}")
    out.append('.amdgcn_target "amdgcn-amd-amdhsa--gfx950"')
    out.append('.text')
    for (nm, txt, vg, sg, lds, grid, blk) in kernels:
        out.append(txt)
    out.append('code_end:')
    out.append('.section .rodata,"a"')
    for (nm, txt, vg, sg, lds, grid, blk) in kernels:
        out.append(kernel_desc(nm, vg, sg))
    return "\n".join(out) + "\n"
if __name__ == "__main__":
    t1, v1, s1 = k1.gen_k1()
    tf, vf, sf = kf.gen_kf()
    t2, v2, s2 = k2.gen_k2()
    print("vgprs", v1, vf, v2)
    ks = [("k1_kernel", t1, v1, s1, k1.K1_LDS, 256, 512),
          ("kf_kernel", tf, vf, sf, kf.KF_LDS, 256, 512),
          ("k2_kernel", t2, v2, s2, k2.K2_LDS, 256, 512)]
    dst = sys.argv[1] if len(sys.argv) > 1 else f"cdna_kernels/{NAME}.s"
    open(dst, "w").write(build(ks))
```

```python
import struct

def f32bits(x):
    return struct.unpack('<I', struct.pack('<f', x))[0]

class Regs:
    def __init__(self, start, limit, name):
        self.next = start; self.limit = limit; self.name = name; self.hi = start
    def alloc(self, n=1, align=1):
        r = (self.next + align - 1) // align * align
        self.next = r + n
        self.hi = max(self.hi, self.next)
        assert self.next <= self.limit, f"out of {self.name} regs: {self.next} > {self.limit}"
        return r
    def mark(self): return self.next
    def release(self, m): self.next = m

def v(r, n=1):
    return f"v{r}" if n == 1 else f"v[{r}:{r+n-1}]"
def s(r, n=1):
    return f"s{r}" if n == 1 else f"s[{r}:{r+n-1}]"

class Asm:
    def __init__(self):
        self.lines = []
    def __call__(self, txt):
        for l in txt.split('\n'):
            l = l.strip()
            if l:
                self.lines.append("    " + l)
    def label(self, name):
        self.lines.append(name + ":")
    def raw(self, txt):
        self.lines.append(txt)
    def comment(self, txt):
        self.lines.append("    ; " + txt)
    def text(self):
        return "\n".join(self.lines) + "\n"

    def mfma(self, d, a, b, c):
        cs = "0" if c is None else v(c, 4)
        self(f"v_mfma_f32_16x16x32_bf16 {v(d,4)}, {v(a,4)}, {v(b,4)}, {cs}")
    def srd(self, d, base, nbytes):
        self(f"s_mov_b32 s{d}, s{base}")
        self(f"s_and_b32 s{d+1}, s{base+1}, 0xffff")
        self(f"s_mov_b32 s{d+2}, {nbytes}")
        self(f"s_mov_b32 s{d+3}, 0x00020000")
    def srd_off(self, d, base, off, nbytes):
        self(f"s_add_u32 s{d}, s{base}, {off}")
        self(f"s_addc_u32 s{d+1}, s{base+1}, 0")
        self(f"s_and_b32 s{d+1}, s{d+1}, 0xffff")
        self(f"s_mov_b32 s{d+2}, {nbytes}")
        self(f"s_mov_b32 s{d+3}, 0x00020000")

def interleave(main, fill, start=0, every=1):
    out = []
    fi = 0
    for i, m in enumerate(main):
        out.append(m)
        if i >= start and (i - start) % every == 0 and fi < len(fill):
            out.append(fill[fi]); fi += 1
    out.extend(fill[fi:])
    return out

def kernel_header(name):
    return f""".globl {name}
.p2align 8
.type {name},@function
{name}:"""

def kernel_desc(name, vgpr, sgpr):
    acc = (vgpr + 3) // 4 * 4
    return f""".p2align 6
.amdhsa_kernel {name}
  .amdhsa_next_free_vgpr {vgpr}
  .amdhsa_next_free_sgpr {sgpr}
  .amdhsa_accum_offset {acc}
  .amdhsa_group_segment_fixed_size 0
  .amdhsa_kernarg_size 96
  .amdhsa_user_sgpr_count 2
  .amdhsa_user_sgpr_kernarg_segment_ptr 1
  .amdhsa_system_sgpr_workgroup_id_x 1
.end_amdhsa_kernel"""


WS_DBG = 13 << 20
class Stamper:
    def __init__(self, a, base, srd, enabled):
        self.a = a; self.base = base; self.srd = srd; self.n = 0; self.en = enabled
    def init(self, sWS):
        if self.en:
            self.a.srd_off(self.srd, sWS, WS_DBG, 2 << 20)
    def stamp(self, idx, real=False):
        if self.en:
            r = self.base + 2 * idx
            self.a(f"{'s_memrealtime' if real else 's_memtime'} s[{r}:{r+1}]")
            self.n = max(self.n, idx + 1)
    def dump(self, n, sWave, vt, vt2):
        if not self.en: return
        a = self.a
        a("s_waitcnt lgkmcnt(0)")
        a(f"s_lshl_b32 s100, s2, 3")
        a(f"s_add_u32 s100, s100, s{sWave}")
        a(f"s_lshl_b32 s100, s100, 7")
        a(f"v_mov_b32 v{vt}, s100")
        a("s_mov_b64 exec, 1")
        for i in range(n):
            r = self.base + 2 * i
            a(f"v_mov_b32 v{vt2}, s{r}")
            a(f"v_mov_b32 v{vt2+1}, s{r+1}")
            a(f"buffer_store_dwordx2 v[{vt2}:{vt2+1}], v{vt}, s[{self.srd}:{self.srd+3}], 0 offen offset:{i*8}")
            a("s_nop 1")
        a("s_mov_b64 exec, -1")


class Span:
    def __init__(self, a, enabled, area):
        self.a = a; self.en = enabled; self.area = area
    def start(self):
        if self.en: self.a("s_memrealtime s[96:97]")
    def end(self, sWS, sWave):
        if not self.en: return
        a = self.a
        a("s_memrealtime s[98:99]")
        a.srd_off(92, sWS, WS_DBG + self.area, 1 << 16)
        a(f"""
        s_lshl_b32 s100, s2, 3
        s_add_u32 s100, s100, s{sWave}
        s_lshl_b32 s100, s100, 4
        s_waitcnt lgkmcnt(0)
        v_mov_b32 v1, s100
        v_mov_b32 v4, s96
        v_mov_b32 v5, s97
        v_mov_b32 v6, s98
        v_mov_b32 v7, s99
        s_mov_b64 exec, 1
        buffer_store_dwordx4 v[4:7], v1, s[92:95], 0 offen
        """)
```

```python
from asmlib import *

WS_O = 0
WS_U = 4 << 20
WS_G = 12 << 20

K1_CH = 10752
K1_STAGE = 4 * K1_CH
K1_XCH = 3 * K1_STAGE
K1_LDS = K1_XCH + 10240
NEG_BIG = f32bits(-1.0e30)
SCALE = f32bits(32 ** -0.5)
LOG2E = f32bits(1.4426950408889634)

def gen_k1(name="k1_kernel", opt=None):
    opt = opt or {}
    a = Asm()
    a.raw(kernel_header(name))
    L = lambda x: f"{name}_{x}"
    sX, sW, sWS = 4, 6, 8
    SRDX, SRDW, SRDO = 12, 16, 20
    sWave, sMB, sHP, sM0, sT0, sT1, sT2 = 24, 25, 26, 27, 28, 29, 30
    sKA, sKB, sLM, sCnt, sStg, sLW = 31, 32, 33, 34, 35, 36
    sH, sHF, s64K = 37, 38, 39
    sScale, sLog2e = 40, 41
    a(f"""
    s_cmp_ge_u32 s2, 256
    s_cbranch_scc1 {L('end')}
    s_load_dwordx4 s[4:7], s[0:1], 0
    s_load_dwordx2 s[8:9], s[0:1], 88
    v_lshrrev_b32 v1, 6, v0
    v_and_b32 v0, 63, v0
    s_nop 0
    v_readfirstlane_b32 s{sWave}, v1
    s_and_b32 s{sT0}, s2, 7
    s_lshr_b32 s{sT1}, s2, 3
    s_and_b32 s{sMB}, s{sT0}, 1
    s_lshl_b32 s{sMB}, s{sMB}, 3
    s_and_b32 s{sT2}, s{sT1}, 7
    s_add_u32 s{sMB}, s{sMB}, s{sT2}
    s_lshr_b32 s{sHP}, s{sT0}, 1
    s_lshl_b32 s{sHP}, s{sHP}, 2
    s_lshr_b32 s{sT2}, s{sT1}, 3
    s_add_u32 s{sHP}, s{sHP}, s{sT2}
    s_lshl_b32 s{sM0}, s{sMB}, 7
    s_waitcnt lgkmcnt(0)
    """)
    a.srd(SRDX, sX, 2048 * 1024 * 2)
    a.srd(SRDW, sW, 1024 * 3072 * 2)
    a.srd_off(SRDO, sWS, WS_O, 2048 * 1024 * 2)
    st = Stamper(a, 60, 48, opt.get('stamp'))
    st.init(sWS)
    st.stamp(0); st.stamp(1, True)
    sPX, sPW, sPD = 44, 45, 46
    def spf(n):
        for _ in range(n):
            a(f"""
            s_buffer_load_dword s{sPD}, {s(SRDX,4)}, s{sPX}
            s_buffer_load_dword s{sPD}, {s(SRDX,4)}, s{sPX} offset:2048
            s_buffer_load_dword s{sPD}, {s(SRDW,4)}, s{sPW}
            s_buffer_load_dword s{sPD}, {s(SRDW,4)}, s{sPW} offset:128
            s_buffer_load_dword s{sPD}, {s(SRDW,4)}, s{sPW} offset:256
            s_add_u32 s{sPX}, s{sPX}, 128
            s_add_u32 s{sPW}, s{sPW}, {64*6144}
            """)
    if opt.get('pf') == 4:
        D0 = opt.get('pfd', 3); NC = opt.get('pfnc', 3)
        a(f"""
        s_and_b32 s{sT0}, s{sWave}, 3
        s_lshl_b32 s{sT1}, s2, 2
        s_add_u32 s{sT1}, s{sT1}, s{sT0}
        s_lshl_b32 s{sPX}, s{sT1}, 12
        s_mul_i32 s{sPW}, s{sT1}, 384
        s_lshr_b32 s{sT0}, s{sWave}, 2
        s_mul_i32 s{sT0}, s{sT0}, {NC}
        s_add_u32 s{sT0}, s{sT0}, {D0}
        s_lshl_b32 s{sT1}, s{sT0}, 7
        s_add_u32 s{sPX}, s{sPX}, s{sT1}
        s_mul_i32 s{sT1}, s{sT0}, {64*6144}
        s_add_u32 s{sPW}, s{sPW}, s{sT1}
        """)
    a(f"""
    s_cmp_lt_u32 s{sWave}, 4
    s_cbranch_scc1 {L('compute')}
    """)
    V = Regs(1, 256, 'v')
    vLR, vP, vT, vT2 = V.alloc(), V.alloc(), V.alloc(), V.alloc()
    vA = [V.alloc() for _ in range(4)]
    vB = [V.alloc() for _ in range(6)]
    vH = V.alloc()
    a(f"""
    s_sub_u32 s{sLW}, s{sWave}, 4
    v_lshrrev_b32 v{vLR}, 3, v0
    v_and_b32 v{vP}, 7, v0
    s_lshr_b32 s{sT0}, s{sLW}, 1
    s_lshl_b32 s{sT0}, s{sT0}, 6
    s_and_b32 s{sT1}, s{sLW}, 1
    s_add_u32 s{sT0}, s{sT0}, s{sT1}
    s_add_u32 s{sT0}, s{sT0}, s{sM0}
    v_lshlrev_b32 v{vT}, 1, v{vLR}
    v_add_u32 v{vT}, s{sT0}, v{vT}
    v_lshlrev_b32 v{vT}, 11, v{vT}
    v_xor_b32 v{vT2}, v{vP}, v{vLR}
    v_lshl_add_u32 v{vA[0]}, v{vT2}, 4, v{vT}
    """)
    for u in range(1, 4):
        a(f"v_add_u32 v{vA[u]}, {u*16*2048 - u*1024}, v{vA[0]}")
    a(f"""
    s_lshl_b32 s{sT0}, s{sLW}, 4
    v_add_u32 v{vT}, s{sT0}, v{vLR}
    v_mul_u32_u24 v{vT}, 6144, v{vT}
    s_lshl_b32 s{sT0}, s{sHP}, 7
    v_add_u32 v{vT}, s{sT0}, v{vT}
    v_and_b32 v{vT2}, 2, v{vLR}
    v_xor_b32 v{vT2}, v{vT2}, v{vP}
    v_lshl_add_u32 v{vB[0]}, v{vT2}, 4, v{vT}
    v_xor_b32 v{vT2}, 4, v{vT2}
    v_lshl_add_u32 v{vB[1]}, v{vT2}, 4, v{vT}
    v_add_u32 v{vB[1]}, {8*6144 - 1024}, v{vB[1]}
    """)
    immB = [0, 1024, 2048, 3072, 0, 1024]
    for n in range(2, 6):
        seg, uo = n >> 1, n & 1
        delta = seg * 2048 - immB[n] + immB[uo]
        a(f"v_add_u32 v{vB[n]}, {delta}, v{vB[uo]}")
    a(f"""
    s_and_b32 s{sT0}, s{sLW}, 1
    s_lshl_b32 s{sT1}, s{sT0}, 3
    s_lshr_b32 s{sT2}, s{sLW}, 1
    s_add_u32 s{sT1}, s{sT1}, s{sT2}
    s_add_u32 s{sT1}, s{sT1}, s{sM0}
    s_sub_u32 s{sT1}, s{sT1}, 17
    v_lshlrev_b32 v{vT}, 1, v{vLR}
    v_add_u32 v{vT}, s{sT1}, v{vT}
    v_lshlrev_b32 v{vT}, 11, v{vT}
    s_lshl_b32 s{sT0}, s{sT0}, 2
    v_add_u32 v{vT2}, s{sT0}, v{vLR}
    v_and_b32 v{vT2}, 7, v{vT2}
    v_xor_b32 v{vT2}, v{vT2}, v{vP}
    v_lshl_add_u32 v{vH}, v{vT2}, 4, v{vT}
    s_mul_i32 s{sLM}, s{sLW}, {K1_CH}
    s_mov_b32 s{sKA}, 0
    s_mov_b32 s{sKB}, 0
    s_mov_b32 s{sStg}, 0
    """)
    PF5 = opt.get('pf') == 5
    SRDP, sPO, sPI = 52, 56, 57
    vPF5 = V.alloc(); vPFD = V.alloc()
    if PF5:
        D0 = 3
        a(f"""
        s_cmp_eq_u32 s{sLW}, 0
        s_cselect_b32 s{SRDP}, s{SRDX}, s{SRDW}
        s_cselect_b32 s{SRDP+1}, s{SRDX+1}, s{SRDW+1}
        s_cselect_b32 s{SRDP+2}, s{SRDX+2}, s{SRDW+2}
        s_mov_b32 s{SRDP+3}, 0x00020000
        s_mov_b32 s{sPI}, {64*6144}
        s_cselect_b32 s{sPI}, 128, s{sPI}
        s_mul_i32 s{sPO}, s{sPI}, {D0}
        s_mul_i32 s58, s{sPI}, 15
        s_lshl_b32 s{sT0}, s2, 3
        v_add_u32 v{vT}, s{sT0}, v0
        v_lshlrev_b32 v{vT}, 11, v{vT}
        s_mul_i32 s{sT0}, s2, 12
        s_lshl_b32 s{sT1}, s{sLW}, 2
        s_add_u32 s{sT0}, s{sT0}, s{sT1}
        s_sub_u32 s{sT0}, s{sT0}, 4
        v_add_u32 v{vT2}, s{sT0}, v0
        v_lshlrev_b32 v{vT2}, 7, v{vT2}
        s_cmp_eq_u32 s{sLW}, 0
        s_cselect_b64 vcc, -1, 0
        s_cselect_b32 s{sT0}, 8, 4
        v_cndmask_b32 v{vPF5}, v{vT2}, v{vT}, vcc
        v_cmp_gt_u32 vcc, s{sT0}, v0
        v_mov_b32 v{vT}, 0x7fffffff
        s_nop 1
        v_cndmask_b32 v{vPF5}, v{vT}, v{vPF5}, vcc
        """)
    def pf5(n=1):
        for _ in range(n):
            a(f"buffer_load_dword v{vPFD}, v{vPF5}, {s(SRDP,4)}, s{sPO} offen")
            a(f"s_add_u32 s{sPO}, s{sPO}, s{sPI}")
            a(f"s_min_u32 s{sPO}, s{sPO}, s58")
    def issue_stage():
        if opt.get('noload'): return
        a(f"s_add_u32 m0, s{sLM}, s{sStg}")
        a(f"s_add_u32 s{sT0}, s{sLM}, s{sStg}")
        for u in range(4):
            a(f"buffer_load_dwordx4 v{vA[u]}, {s(SRDX,4)}, s{sKA} offen offset:{u*1024} lds")
        a(f"s_add_u32 m0, s{sT0}, 4096")
        a("s_nop 0")
        for n in range(4):
            a(f"buffer_load_dwordx4 v{vB[n]}, {s(SRDW,4)}, s{sKB} offen offset:{immB[n]} lds")
        a(f"s_add_u32 m0, s{sT0}, 8192")
        a("s_nop 0")
        for n in range(4, 6):
            a(f"buffer_load_dwordx4 v{vB[n]}, {s(SRDW,4)}, s{sKB} offen offset:{immB[n]} lds")
        a("s_mov_b64 exec, 0xffffffff")
        a(f"buffer_load_dwordx4 v{vH}, {s(SRDX,4)}, s{sKA} offen offset:2048 lds")
        a("s_mov_b64 exec, -1")
        a(f"""
        s_add_u32 s{sKA}, s{sKA}, 128
        s_add_u32 s{sKB}, s{sKB}, {64*6144}
        s_add_u32 s{sStg}, s{sStg}, {K1_STAGE}
        s_cmp_eq_u32 s{sStg}, {3*K1_STAGE}
        s_cselect_b32 s{sStg}, 0, s{sStg}
        """)
    npre = 2
    PD = opt.get('pfd', 4)
    for _ in range(npre):
        issue_stage()
    st.stamp(2)
    a("s_waitcnt vmcnt(11)")
    st.stamp(3)
    a(f"""
    s_barrier
    s_mov_b32 s{sCnt}, 0
    """)
    if PF5:
        issue_stage()
        pf5(PD)
        a(f"s_waitcnt vmcnt({11 + PD})")
        a("s_barrier")
        issue_stage(); pf5()
        a(f"s_waitcnt vmcnt({12 + PD})")
        a("s_barrier")
        issue_stage(); pf5()
        a(f"s_mov_b32 s{sCnt}, 2")
        a.label(L('lloop'))
        a("s_waitcnt vmcnt(13)")
        if opt.get('stg'):
            a(f"s_memtime s[90:91]")
        a("s_barrier")
        if opt.get('stg'):
            a(f"s_memtime s[92:93]")
            a("s_waitcnt lgkmcnt(0)")
            a(f"s_mov_b32 m0, s{sCnt}")
            a("s_nop 1")
            a(f"v_writelane_b32 v30, s90, m0")
            a(f"v_writelane_b32 v31, s92, m0")
        issue_stage(); pf5()
        a(f"""
        s_add_u32 s{sCnt}, s{sCnt}, 1
        s_cmp_lt_u32 s{sCnt}, 13
        s_cbranch_scc1 {L('lloop')}
        s_waitcnt vmcnt(13)
        s_barrier
        s_waitcnt vmcnt(1)
        """)
    else:
        issue_stage()
        a.label(L('lloop'))
        a("s_waitcnt vmcnt(11)")
        if opt.get('stg'):
            a(f"s_memtime s[90:91]")
        a("s_barrier")
        if opt.get('stg'):
            a(f"s_memtime s[92:93]")
            a("s_waitcnt lgkmcnt(0)")
            a(f"s_mov_b32 m0, s{sCnt}")
            a("s_nop 1")
            a(f"v_writelane_b32 v30, s90, m0")
            a(f"v_writelane_b32 v31, s92, m0")
        issue_stage()
        a(f"""
        s_add_u32 s{sCnt}, s{sCnt}, 1
        s_cmp_lt_u32 s{sCnt}, 13
        s_cbranch_scc1 {L('lloop')}
        s_waitcnt vmcnt(11)
        s_barrier
        s_waitcnt vmcnt(0)
        """)
    st.stamp(4)
    a(f"""
    s_barrier
    s_barrier
    s_barrier
    """)
    st.stamp(5); st.stamp(6, True)
    st.dump(7, sWave, 1, 2)
    if opt.get('stg'):
        a(f"""
        v_lshlrev_b32 v2, 2, v0
        v_add_u32 v2, s100, v2
        v_add_u32 v2, {512<<10}, v2
        s_mov_b64 exec, 0xffff
        buffer_store_dword v30, v2, s[48:51], 0 offen
        buffer_store_dword v31, v2, s[48:51], 0 offen offset:64
        s_mov_b64 exec, -1
        """)
    a(f"""
    s_branch {L('end')}
    """)
    a.label(L('compute'))
    V = Regs(1, 256, 'v')
    vI, vG, vT, vT2, vT3 = [V.alloc() for _ in range(5)]
    bA = [V.alloc(), V.alloc()]; bH = [V.alloc(), V.alloc()]; bB = [V.alloc(), V.alloc()]
    cA = [V.alloc(), V.alloc()]; cH = [V.alloc(), V.alloc()]; cB = [V.alloc(), V.alloc()]
    vO = V.alloc(); vXW = V.alloc()
    mCur = V.alloc(2, 2); mPrev = V.alloc(2, 2); mFirst = [V.alloc(2, 2), V.alloc(2, 2)]
    biasCur = V.alloc(4, 4); biasPrev = V.alloc(4, 4); biasFirst = [V.alloc(4, 4), V.alloc(4, 4)]
    QT = [[[V.alloc(4, 4) for db in range(2)] for b in range(2)] for par in range(2)]
    KT = [[[V.alloc(4, 4) for db in range(2)] for b in range(2)] for par in range(2)]
    VV = [[[V.alloc(4, 4) for db in range(2)] for b in range(2)] for par in range(2)]
    HH = [V.alloc(4, 4) for db in range(2)]
    acc0 = QT[0][0][0]; accN = HH[1] + 4
    fr0 = V.mark()
    F = []
    for f in range(2):
        F.append(dict(XA=[[V.alloc(4, 4) for b in range(2)] for par in range(2)], XH=V.alloc(4, 4),
                      WB=[[V.alloc(4, 4) for db in range(2)] for seg in range(3)]))
    frN = V.mark()
    pf = opt.get('pf', 0)
    if pf == 4: spf(opt.get('pfnc', 3))
    if pf == 3:
        vPF = V.alloc(2); vPX = V.alloc(); vPW = V.alloc()
        D0 = opt.get('pfd', 3)
        a(f"""
        s_lshl_b32 s{sT0}, s2, 3
        v_add_u32 v{vPX}, s{sT0}, v0
        v_lshlrev_b32 v{vPX}, 11, v{vPX}
        s_lshl_b32 s{sT0}, s{sWave}, 7
        s_add_u32 s{sT0}, s{sT0}, {D0*128}
        v_add_u32 v{vPX}, s{sT0}, v{vPX}
        v_mov_b32 v{vT}, 0x7fffffff
        v_cmp_gt_u32 vcc, 8, v0
        s_nop 1
        v_cndmask_b32 v{vPX}, v{vT}, v{vPX}, vcc
        s_mul_i32 s{sT0}, s2, 12
        v_add_u32 v{vPW}, s{sT0}, v0
        v_lshlrev_b32 v{vPW}, 7, v{vPW}
        s_mul_i32 s{sT0}, s{sWave}, {64*6144}
        s_add_u32 s{sT0}, s{sT0}, {D0*64*6144}
        v_add_u32 v{vPW}, s{sT0}, v{vPW}
        v_cmp_gt_u32 vcc, 12, v0
        s_nop 1
        v_cndmask_b32 v{vPW}, v{vT}, v{vPW}, vcc
        buffer_load_dword v{vPF}, v{vPX}, {s(SRDX,4)}, 0 offen
        buffer_load_dword v{vPF+1}, v{vPW}, {s(SRDW,4)}, 0 offen
        """)
    if pf in (1, 2):
        vPF = V.alloc(4)
        SRDWO = 52
        sh = 6 if pf == 1 else 7
        a(f"""
        s_load_dwordx2 s[10:11], s[0:1], 16
        s_lshl_b32 s{sT0}, s2, 8
        s_lshl_b32 s{sT1}, s{sWave}, 6
        s_add_u32 s{sT0}, s{sT0}, s{sT1}
        v_add_u32 v{vT}, s{sT0}, v0
        v_lshlrev_b32 v{vT}, {sh}, v{vT}
        buffer_load_dword v{vPF}, v{vT}, {s(SRDW,4)}, 0 offen
        buffer_load_dword v{vPF+1}, v{vT}, {s(SRDX,4)}, 0 offen
        """)
        if pf == 1:
            a(f"""
            v_add_u32 v{vT2}, {4<<20}, v{vT}
            buffer_load_dword v{vPF+2}, v{vT2}, {s(SRDW,4)}, 0 offen
            v_subrev_u32 v{vT2}, {2<<20}, v{vT}
            """)
        else:
            a(f"v_subrev_u32 v{vT2}, {6<<20}, v{vT}")
        a("s_waitcnt lgkmcnt(0)")
        a.srd(SRDWO, 10, 2 << 20)
        a(f"buffer_load_dword v{vPF+3}, v{vT2}, {s(SRDWO,4)}, 0 offen")
    a(f"""
    s_and_b32 s{sH}, s{sWave}, 1
    s_lshr_b32 s{sHF}, s{sWave}, 1
    s_mov_b32 s{s64K}, 65536
    s_mov_b32 s{sScale}, {SCALE}
    s_mov_b32 s{sLog2e}, {LOG2E}
    v_and_b32 v{vI}, 15, v0
    v_lshrrev_b32 v{vG}, 4, v0
    v_and_b32 v{vT}, 7, v{vI}
    v_xor_b32 v{vT}, v{vT}, v{vG}
    v_lshlrev_b32 v{vT}, 4, v{vT}
    s_mul_i32 s{sT0}, s{sHF}, {2*K1_CH}
    v_lshl_add_u32 v{bA[0]}, v{vI}, 7, v{vT}
    v_add_u32 v{bA[0]}, s{sT0}, v{bA[0]}
    v_xor_b32 v{bA[1]}, 64, v{bA[0]}
    v_lshrrev_b32 v{vT2}, 2, v{vI}
    v_mul_u32_u24 v{bH[0]}, {K1_CH}, v{vT2}
    v_and_b32 v{vT3}, 3, v{vI}
    v_lshl_add_u32 v{bH[0]}, v{vT3}, 7, v{bH[0]}
    v_add_u32 v{bH[0]}, v{bH[0]}, v{vT}
    v_add_u32 v{bH[0]}, 10240, v{bH[0]}
    v_xor_b32 v{bH[1]}, 64, v{bH[0]}
    v_lshrrev_b32 v{vT}, 1, v{vG}
    v_mul_u32_u24 v{bB[0]}, {K1_CH}, v{vT}
    v_and_b32 v{vT}, 1, v{vG}
    v_lshl_add_u32 v{bB[1]}, v{vT}, 3, v{vT2}
    v_lshl_add_u32 v{bB[0]}, v{bB[1]}, 7, v{bB[0]}
    v_lshlrev_b32 v{vT}, 2, v{vT}
    v_and_b32 v{bB[1]}, 2, v{vT2}
    v_or_b32 v{vT}, v{vT}, v{bB[1]}
    v_lshrrev_b32 v{bB[1]}, 1, v{vT3}
    s_lshl_b32 s{sT0}, s{sH}, 2
    v_add_u32 v{bB[1]}, s{sT0}, v{bB[1]}
    v_xor_b32 v{vT}, v{vT}, v{bB[1]}
    v_lshl_add_u32 v{bB[0]}, v{vT}, 4, v{bB[0]}
    v_and_b32 v{vT}, 1, v{vT3}
    v_lshl_add_u32 v{bB[0]}, v{vT}, 3, v{bB[0]}
    v_add_u32 v{bB[0]}, 4096, v{bB[0]}
    v_xor_b32 v{bB[1]}, 32, v{bB[0]}
    s_lshl_b32 s{sT0}, s{sHF}, 6
    s_add_u32 s{sT0}, s{sT0}, s{sM0}
    v_lshlrev_b32 v{vO}, 1, v{vI}
    v_add_u32 v{vO}, s{sT0}, v{vO}
    v_lshlrev_b32 v{vO}, 11, v{vO}
    s_lshl_b32 s{sT0}, s{sHP}, 1
    s_add_u32 s{sT0}, s{sT0}, s{sH}
    s_lshl_b32 s{sT0}, s{sT0}, 6
    v_lshl_add_u32 v{vO}, v{vG}, 3, v{vO}
    v_add_u32 v{vO}, s{sT0}, v{vO}
    s_mul_i32 s{sT0}, s{sH}, 5120
    s_add_u32 s{sT0}, s{sT0}, {K1_XCH}
    v_mov_b32 v{vXW}, s{sT0}
    """)
    a(f"v_lshlrev_b32 v{vT}, 2, v{vG}")
    a(f"v_sub_u32 v{vT}, v{vI}, v{vT}")
    a(f"v_mov_b32 v{vT3}, {NEG_BIG}")
    for r in range(4):
        a(f"v_subrev_u32 v{vT2}, {r}, v{vT}")
        a(f"v_cmp_gt_u32 vcc, 8, v{vT2}")
        a("s_nop 1")
        a(f"v_cndmask_b32 v{biasCur+r}, v{vT3}, 0, vcc" if False else f"v_cndmask_b32_e64 v{biasCur+r}, v{vT3}, 0, vcc")
        a(f"v_cmp_gt_i32 vcc, -8, v{vT2}")
        a("s_nop 1")
        a(f"v_cndmask_b32_e64 v{biasPrev+r}, v{vT3}, 0, vcc")
        a(f"v_mov_b32 v{biasFirst[1]+r}, v{biasPrev+r}")
        a(f"v_mov_b32 v{biasFirst[0]+r}, v{biasPrev+r}")
    a(f"""
    s_cmp_lg_u32 s{sHF}, 0
    s_cbranch_scc1 {L('maskdone')}
    """)
    for r in range(4):
        a(f"v_subrev_u32 v{vT2}, {r}, v{vT}")
        a(f"v_cmp_gt_i32 vcc, 0, v{vT2}")
        a(f"v_cmp_gt_u32 s[42:43], 2, v{vG}")
        a("s_nop 1")
        a("s_and_b64 vcc, vcc, s[42:43]")
        a("s_nop 1")
        a(f"v_cndmask_b32_e64 v{biasFirst[0]+r}, v{vT3}, 0, vcc")
    a(f"""
    s_cmp_lg_u32 s{sMB}, 0
    s_cbranch_scc1 {L('maskdone')}
    """)
    for r in range(4):
        a(f"v_mov_b32 v{biasFirst[0]+r}, v{vT3}")
        a(f"v_mov_b32 v{biasFirst[1]+r}, v{vT3}")
    a.label(L('maskdone'))
    def mk_mask(m, bias):
        for h2 in range(2):
            a(f"v_cmp_eq_u32 vcc, 0, v{bias+2*h2}")
            a("s_nop 1")
            a(f"v_cndmask_b32_e64 v{vT}, 0, -1, vcc")
            a(f"v_cmp_eq_u32 vcc, 0, v{bias+2*h2+1}")
            a("s_nop 1")
            a(f"v_cndmask_b32_e64 v{vT2}, 0, -1, vcc")
            a(f"v_and_b32 v{vT}, 0xffff, v{vT}")
            a(f"v_and_b32 v{vT2}, 0xffff0000, v{vT2}")
            a(f"v_or_b32 v{m+h2}, v{vT}, v{vT2}")
    mk_mask(mCur, biasCur); mk_mask(mPrev, biasPrev); mk_mask(mFirst[0], biasFirst[0]); mk_mask(mFirst[1], biasFirst[1])
    for r in range(acc0, accN):
        a(f"v_mov_b32 v{r}, 0")

    def reads(f, kh, aA, aH, aB):
        out = []
        fs = F[f]
        def rb(seg, db):
            r = fs['WB'][seg][db]
            for half in range(2):
                out.append(f"ds_read_b64_tr_b16 {v(r+2*half,2)}, v{aB[db]} offset:{kh*2*K1_CH + seg*2048 + half*512}")
        def ra(par, b):
            out.append(f"ds_read_b128 {v(fs['XA'][par][b],4)}, v{aA} offset:{par*K1_CH + b*2048}")
        ra(0, 0); rb(0, 0); rb(0, 1); ra(0, 1); ra(1, 0); ra(1, 1)
        rb(1, 0); rb(1, 1)
        out.append(f"ds_read_b128 {v(fs['XH'],4)}, v{aH}")
        rb(2, 0); rb(2, 1)
        return out
    def mfmas(f, hf):
        out = []
        fs = F[f]
        def m(d, x, y): out.append(f"v_mfma_f32_16x16x32_bf16 {v(d,4)}, {v(x,4)}, {v(y,4)}, {v(d,4)}")
        for par in range(2):
            for b in range(2):
                for db in range(2):
                    m(QT[par][b][db], fs['WB'][0][db], fs['XA'][par][b])
        for par in range(2):
            for b in range(2):
                for db in range(2):
                    m(KT[par][b][db], fs['WB'][1][db], fs['XA'][par][b])
        if hf == 0:
            for db in range(2): m(HH[db], fs['WB'][1][db], fs['XH'])
        for par in range(2):
            for b in range(2):
                for db in range(2):
                    m(VV[par][b][db], fs['XA'][par][b], fs['WB'][2][db])
        if hf == 1:
            for db in range(2): m(HH[db], fs['XH'], fs['WB'][2][db])
        return out

    st.stamp(2)
    a("s_barrier")
    st.stamp(3)
    for l in reads(0, 0, bA[0], bH[0], bB): a(l)
    a(f"""
    v_mov_b32 v{cA[1]}, v{bA[1]}
    v_mov_b32 v{cH[1]}, v{bH[1]}
    v_mov_b32 v{cB[0]}, v{bB[0]}
    v_mov_b32 v{cB[1]}, v{bB[1]}
    s_mov_b32 s{sStg}, 0
    s_mov_b32 s{sCnt}, 0
    s_waitcnt lgkmcnt(0)
    s_cmp_eq_u32 s{sHF}, 0
    s_cbranch_scc0 {L('loop1')}
    """)
    P = Regs(fr0, frN, 'pk')
    Qp = [[P.alloc(4, 4) for b in range(2)] for par in range(2)]
    Kp = [[P.alloc(4, 4) for sl in range(3)] for par in range(2)]
    Vp = [[P.alloc(6, 2) for db in range(2)] for par in range(2)]
    VHp = P.alloc(4, 2)
    vLane16 = P.alloc(); vLane8 = P.alloc()
    def pk(d, src):
        a(f"v_cvt_pk_bf16_f32 v{d}, v{src}, v{src+1}")
        a(f"v_cvt_pk_bf16_f32 v{d+1}, v{src+2}, v{src+3}")
    for hf in range(2):
        a.label(L(f'loop{hf}'))
        body = interleave(mfmas(0, hf), reads(1, 1, cA[1], cH[1], cB))
        if opt.get('nocomp'): body = []
        if opt.get('nomfma'): body = reads(1, 1, cA[1], cH[1], cB)
        if opt.get('noread'): body = mfmas(0, hf)
        for l in body: a(l)
        a(f"""
        s_add_u32 s{sStg}, s{sStg}, {K1_STAGE}
        s_cmp_eq_u32 s{sStg}, {3*K1_STAGE}
        s_cselect_b32 s{sStg}, 0, s{sStg}
        v_add_u32 v{cA[0]}, s{sStg}, v{bA[0]}
        v_add_u32 v{cH[0]}, s{sStg}, v{bH[0]}
        v_add_u32 v{cB[0]}, s{sStg}, v{bB[0]}
        v_add_u32 v{cB[1]}, s{sStg}, v{bB[1]}
        v_add_u32 v{cA[1]}, s{sStg}, v{bA[1]}
        v_add_u32 v{cH[1]}, s{sStg}, v{bH[1]}
        s_waitcnt lgkmcnt(0)
        s_barrier
        """)
        body = interleave(mfmas(1, hf), reads(0, 0, cA[0], cH[0], cB))
        if opt.get('nocomp'): body = []
        if opt.get('nomfma'): body = reads(0, 0, cA[0], cH[0], cB)
        if opt.get('noread'): body = mfmas(1, hf)
        for l in body: a(l)
        if pf == 3:
            per = opt.get('pfper', 3)
            if per > 1:
                a(f"""
                s_mul_hi_u32 s{sT0}, s{sCnt}, {(2**32 + per - 1)//per}
                s_mul_i32 s{sT0}, s{sT0}, {per}
                s_cmp_lg_u32 s{sT0}, s{sCnt}
                s_cbranch_scc1 {L(f'nopf{hf}')}
                """)
            a(f"""
            v_add_u32 v{vPX}, 512, v{vPX}
            v_add_u32 v{vPW}, {4*64*6144}, v{vPW}
            s_cmp_ge_u32 s{sCnt}, {per*3}
            s_cbranch_scc1 {L(f'nopf{hf}')}
            buffer_load_dword v{vPF}, v{vPX}, {s(SRDX,4)}, 0 offen
            buffer_load_dword v{vPF+1}, v{vPW}, {s(SRDW,4)}, 0 offen
            """)
            a.label(L(f'nopf{hf}'))
        a(f"""
        s_add_u32 s{sCnt}, s{sCnt}, 1
        s_cmp_lt_u32 s{sCnt}, 16
        s_waitcnt lgkmcnt(0)
        s_cbranch_scc1 {L(f'loop{hf}')}
        s_nop 7
        s_nop 3
        """)
        st.stamp(4)
        a(f"v_lshl_add_u32 v{vLane16}, v0, 4, v{vXW}")
        a(f"v_lshl_add_u32 v{vLane8}, v0, 3, v{vXW}")
        if hf == 0:
            for par in range(2):
                for db in range(2):
                    pk(Kp[par][2] + 2*db, KT[par][1][db])
                    pk(Vp[par][db] + 4, VV[par][1][db])
            for par in range(2):
                a(f"ds_write_b128 v{vLane16}, {v(Kp[par][2],4)} offset:{par*1024}")
                for db in range(2):
                    a(f"ds_write_b64 v{vLane8}, {v(Vp[par][db]+4,2)} offset:{2048 + (par*2+db)*512}")
            for par in range(2):
                for db in range(2):
                    pk(Kp[par][0] + 2*db, HH[db])
        else:
            for db in range(2):
                pk(VHp + 2*db, HH[db])
                a(f"ds_write_b64 v{vLane8}, {v(VHp+2*db,2)} offset:{4096 + db*512}")
            for par in range(2):
                for db in range(2):
                    pk(Kp[par][2] + 2*db, KT[par][1][db])
                    pk(Vp[par][db] + 4, VV[par][1][db])
        for par in range(2):
            for db in range(2):
                pk(Kp[par][1] + 2*db, KT[par][0][db])
                pk(Vp[par][db] + 2, VV[par][0][db])
                for b in range(2):
                    pk(Qp[par][b] + 2*db, QT[par][b][db])
        a("s_waitcnt lgkmcnt(0)")
        a("s_barrier")
        if hf == 0:
            for par in range(2):
                for db in range(2):
                    a(f"ds_read_b64 {v(Vp[par][db],2)}, v{vLane8} offset:{4096 + db*512}")
            a(f"s_branch {L('attn')}")
        else:
            for par in range(2):
                a(f"ds_read_b128 {v(Kp[par][0],4)}, v{vLane16} offset:{par*1024}")
                for db in range(2):
                    a(f"ds_read_b64 {v(Vp[par][db],2)}, v{vLane8} offset:{2048 + (par*2+db)*512}")
    a.label(L('attn'))
    A = Regs(acc0, accN, 'acc')
    combos = [(par, b) for par in range(2) for b in range(2)]
    Sp = {c: A.alloc(4, 4) for c in combos}
    Sc = {c: A.alloc(4, 4) for c in combos}
    Pp = {c: A.alloc(4, 4) for c in combos}
    OT = {c: [A.alloc(4, 4) for db in range(2)] for c in combos}
    mx = {c: A.alloc() for c in combos}
    tt = {c: A.alloc() for c in combos}
    for (par, b) in combos:
        a.mfma(Sc[(par, b)], Kp[par][b+1], Qp[par][b], biasCur)
    for par in range(2):
        a.mfma(Sp[(par, 1)], Kp[par][1], Qp[par][1], biasPrev)
    a("s_waitcnt lgkmcnt(0)")
    for par in range(2):
        a.mfma(Sp[(par, 0)], Kp[par][0], Qp[par][0], biasFirst[par])
    a("s_nop 7")
    order = [(0, 1), (1, 1), (0, 0), (1, 0)]
    for c in order:
        for r in range(4):
            a(f"v_max_f32 v{Sc[c]+r}, v{Sc[c]+r}, v{Sp[c]+r}")
        for r in range(4):
            a(f"v_cvt_pk_bf16_f32 v{Sc[c]+r}, 0, v{Sc[c]+r}")
        for r in range(4):
            a(f"v_mul_f32 v{Sc[c]+r}, s{sScale}, v{Sc[c]+r}")
        for r in range(4):
            a(f"v_cvt_pk_bf16_f32 v{Sc[c]+r}, 0, v{Sc[c]+r}")
        a(f"v_max_f32 v{mx[c]}, v{Sc[c]}, v{Sc[c]+1}")
        a(f"v_max3_f32 v{mx[c]}, v{Sc[c]+2}, v{Sc[c]+3}, v{mx[c]}")
    def allreduce(val, op):
        for sw in ("v_permlane32_swap_b32", "v_permlane16_swap_b32"):
            for c in order: a(f"v_mov_b32 v{tt[c]}, v{val[c]}")
            a("s_nop 1")
            for c in order: a(f"{sw} v{val[c]}, v{tt[c]}")
            a("s_nop 1")
            for c in order: a(f"{op} v{val[c]}, v{val[c]}, v{tt[c]}")
    allreduce(mx, "v_max_f32")
    for c in order:
        a(f"v_mul_f32 v{mx[c]}, s{sLog2e}, v{mx[c]}")
    for c in order:
        for r in range(4):
            a(f"v_fma_f32 v{Sc[c]+r}, v{Sc[c]+r}, s{sLog2e}, -v{mx[c]}")
        for r in range(4):
            a(f"v_exp_f32 v{Sc[c]+r}, v{Sc[c]+r}")
    a("s_nop 0")
    for c in order:
        a(f"v_add_f32 v{mx[c]}, v{Sc[c]}, v{Sc[c]+1}")
        a(f"v_add_f32 v{tt[c]}, v{Sc[c]+2}, v{Sc[c]+3}")
        a(f"v_add_f32 v{mx[c]}, v{mx[c]}, v{tt[c]}")
    allreduce(mx, "v_add_f32")
    for c in order:
        a(f"v_rcp_f32 v{mx[c]}, v{mx[c]}")
    a("s_nop 0")
    for c in order:
        par, b = c
        for r in range(4):
            a(f"v_mul_f32 v{Sc[c]+r}, v{Sc[c]+r}, v{mx[c]}")
        pk(Sp[c], Sc[c])
        mp = mPrev if b == 1 else mFirst[par]
        a(f"v_and_b32 v{Pp[c]}, v{Sp[c]}, v{mp}")
        a(f"v_and_b32 v{Pp[c]+1}, v{Sp[c]+1}, v{mp+1}")
        a(f"v_and_b32 v{Pp[c]+2}, v{Sp[c]}, v{mCur}")
        a(f"v_and_b32 v{Pp[c]+3}, v{Sp[c]+1}, v{mCur+1}")
    a("s_nop 1")
    for c in order:
        par, b = c
        for db in range(2):
            a.mfma(OT[c][db], Vp[par][db] + 2*b, Pp[c], None)
    a("s_nop 7")
    for c in order:
        par, b = c
        for db in range(2):
            pk(OT[c][db], OT[c][db])
            so = f"s{s64K}" if b == 1 else "0"
            a(f"buffer_store_dwordx2 {v(OT[c][db],2)}, v{vO}, {s(SRDO,4)}, {so} offen offset:{par*2048 + db*32}")
    st.stamp(5); st.stamp(6, True)
    st.dump(7, sWave, 1, 2)
    a.label(L('end'))
    a("s_endpgm")
    return a.text(), V.hi, 102
```

```python
from asmlib import *

WS_O = 0
WS_U = 4 << 20
WS_G = 12 << 20

CH = 10752
STAGE = 4 * CH
XF = STAGE
CB = 3 * STAGE
CROW = 2056
K1_LDS = CB + 16 * CROW
NEG_BIG = f32bits(-1.0e30)
SCALE = f32bits(32 ** -0.5)
LOG2E = f32bits(1.4426950408889634)
CODE_LINES = 30

def gen_k1(name="k1_kernel", opt=None):
    opt = opt or {}
    a = Asm()
    a.raw(kernel_header(name))
    L = lambda x: f"{name}_{x}"
    sX, sW, sWO, sGW, sWS, sPC = 4, 6, 8, 10, 12, 14
    SRDX, SRDW, SRDO, SRDU, SRDP, SRDG, SRDC = 16, 20, 24, 28, 32, 36, 40
    (sWave, sMB, sHP, sM0, sT0, sT1, sT2, sT3, sKA, sKB, sLM, sCnt, sStg, sLW, sH, sHF, sS2, sQ,
     sScale, sLog2e, sRI, sXO, sKI) = range(44, 67)
    sMSK = 68
    st = Stamper(a, 76, 72, opt.get('stamp'))
    sp = Span(a, opt.get('span'), 0)
    sp.start()
    USC = " sc1" if opt.get('usc1', 1) else ""
    OSC = " sc1" if opt.get('osc1', 0) else ""
    FB = 52
    U = Regs(FB, 256, 'fft')
    vI, vG, vR, vC, vT, vT2, vT3 = 1, 2, 3, 4, 5, 6, 7
    DEAD = U.alloc(36, 4)
    kkf = [DEAD + j for j in range(8)]
    B0 = DEAD + 8
    a0 = DEAD + 12; aW = [DEAD + 13, DEAD + 14]; vXL = DEAD + 15
    a0x = [DEAD + 16 + j for j in range(7)]
    ef = [DEAD + 24, DEAD + 25]
    tmpB = DEAD + 28
    tmp0 = U.alloc(8, 4)
    vCP = 51
    a(f"""
    s_cmp_ge_u32 s2, 256
    s_cbranch_scc1 {L('end')}
    s_load_dwordx4 s[4:7], s[0:1], 0
    s_load_dwordx2 s[8:9], s[0:1], 16
    s_load_dwordx2 s[10:11], s[0:1], 64
    s_load_dwordx2 s[12:13], s[0:1], 88
    s_getpc_b64 s[14:15]
    """)
    a.label(L('pc'))
    a(f"""
    v_lshrrev_b32 v1, 6, v0
    v_and_b32 v0, 63, v0
    s_and_b32 s{sS2}, s2, 63
    v_readfirstlane_b32 s{sWave}, v1
    s_lshr_b32 s{sQ}, s2, 6
    s_mov_b32 s{SRDC}, s14
    s_and_b32 s{SRDC+1}, s15, 0xffff
    s_mov_b32 s{SRDC+2}, code_end - {L('pc')}
    s_mov_b32 s{SRDC+3}, 0x00020000
    """)
    def code_pf():
        a(f"""
        s_lshr_b32 s{sT0}, s2, 3
        s_and_b32 s{sT0}, s{sT0}, 7
        s_mul_i32 s{sT0}, s{sT0}, {CODE_LINES*128}
        v_lshlrev_b32 v{vCP}, 7, v0
        s_mov_b64 exec, {(1 << CODE_LINES) - 1}
        buffer_load_dword v{vCP}, v{vCP}, {s(SRDC,4)}, s{sT0} offen
        s_mov_b64 exec, -1
        """)
    CPF = 0 if opt.get('nocpf') else 1
    if CPF:
        a(f"s_cmp_lg_u32 s{sWave}, 7")
        a(f"s_cbranch_scc1 {L('nocpf')}")
        code_pf()
        a.label(L('nocpf'))
    a(f"""
    v_lshrrev_b32 v{vT}, 1, v0
    v_xor_b32 v{vT}, s{sWave}, v{vT}
    v_and_b32 v{vT2}, 1, v0
    v_lshlrev_b32 v{vT2}, 4, v{vT2}
    v_lshl_add_u32 v{vXL}, v{vT}, 5, v{vT2}
    s_waitcnt lgkmcnt(0)
    """)
    a.srd(SRDX, sX, 2048 * 1024 * 2)
    def xload(n):
        a(f"""
        s_add_u32 s{sT0}, s{sQ}, {n}
        s_and_b32 s{sT0}, s{sT0}, 3
        s_lshl_b32 s{sT0}, s{sT0}, 3
        s_add_u32 s{sT0}, s{sT0}, s{sWave}
        s_lshl_b32 s{sXO}, s{sT0}, 11
        s_add_u32 m0, s{sXO}, {XF}
        s_lshl_b32 s{sXO}, s{sT0}, 6
        s_add_u32 s{sXO}, s{sXO}, s{sS2}
        s_lshl_b32 s{sXO}, s{sXO}, 11
        buffer_load_dwordx4 v{vXL}, {s(SRDX,4)}, s{sXO} offen lds
        buffer_load_dwordx4 v{vXL}, {s(SRDX,4)}, s{sXO} offen offset:1024 lds
        """)
    for n in range(4): xload(n)
    st.init(sWS)
    st.stamp(0); st.stamp(1, True)
    a(f"""
    s_and_b32 s{sT0}, s2, 7
    s_lshr_b32 s{sT1}, s2, 3
    s_and_b32 s{sMB}, s{sT0}, 1
    s_lshl_b32 s{sMB}, s{sMB}, 3
    s_and_b32 s{sT2}, s{sT1}, 7
    s_add_u32 s{sMB}, s{sMB}, s{sT2}
    s_lshr_b32 s{sHP}, s{sT0}, 1
    s_lshl_b32 s{sHP}, s{sHP}, 2
    s_lshr_b32 s{sT2}, s{sT1}, 3
    s_add_u32 s{sHP}, s{sHP}, s{sT2}
    s_lshl_b32 s{sM0}, s{sMB}, 7
    """)
    tmp = tmpB
    assert tmp0 == tmpB + 8
    XA = [U.alloc(4, 4) for _ in range(8)]
    D0 = [U.alloc(4, 4) for _ in range(8)]
    umark = U.mark()
    def stage0_setup():
        a(f"""
        v_and_b32 v{vI}, 15, v0
        v_lshrrev_b32 v{vG}, 4, v0
        v_lshrrev_b32 v{vR}, 2, v{vI}
        v_and_b32 v{vC}, 3, v{vI}
        v_lshlrev_b32 v{vT}, 2, v{vG}
        v_cvt_f32_u32 v{kkf[0]}, v{vT}
        """)
        for j in range(1, 8):
            kk = j if j < 4 else 16 + (j - 4)
            a(f"v_add_f32 v{kkf[j]}, {f32bits(float(kk))}, v{kkf[0]}")
        a(f"""
        v_lshrrev_b32 v{vT}, 1, v{vI}
        s_lshl_b32 s{sT0}, s{sQ}, 3
        v_add_u32 v{vT}, s{sT0}, v{vT}
        v_cvt_f32_u32 v{vT}, v{vT}
        v_mul_f32 v{vT}, {f32bits(1/32)}, v{vT}
        v_and_b32 v{vT2}, 1, v{vI}
        v_cvt_f32_u32 v{vT2}, v{vT2}
        v_mul_f32 v{vT2}, {f32bits(0.25)}, v{vT2}
        """)
        for j in range(8):
            a(f"v_fma_f32 v{tmp+j}, v{vT}, v{kkf[j]}, v{vT2}")
        for j in range(8):
            a(f"v_cos_f32 v{tmp+j}, v{tmp+j}")
        a(f"""
        v_lshl_add_u32 v{vT}, v{vG}, 2, v{vR}
        v_lshlrev_b32 v{a0}, 11, v{vT}
        v_and_b32 v{vT2}, 7, v{vT}
        v_lshl_add_u32 v{a0}, v{vT2}, 5, v{a0}
        v_lshl_add_u32 v{a0}, v{vC}, 3, v{a0}
        s_lshl_b32 s{sT0}, s{sWave}, 8
        v_add_u32 v{a0}, s{sT0}, v{a0}
        v_mul_u32_u24 v{aW[0]}, {CROW}, v{vI}
        v_lshl_add_u32 v{aW[0]}, v{vG}, 3, v{aW[0]}
        s_and_b32 s{sT1}, s{sWave}, 1
        s_lshl_b32 s{sT1}, s{sT1}, 5
        s_add_u32 s{sT0}, s{sT0}, {CB}
        s_add_u32 s{sT2}, s{sT0}, s{sT1}
        s_xor_b32 s{sT1}, s{sT1}, 32
        s_add_u32 s{sT1}, s{sT0}, s{sT1}
        v_add_u32 v{aW[1]}, s{sT1}, v{aW[0]}
        v_add_u32 v{aW[0]}, s{sT2}, v{aW[0]}
        """)
        for j in range(4):
            a(f"v_cvt_pk_bf16_f32 v{B0+j}, v{tmp+2*j}, v{tmp+2*j+1}")
        a(f"v_add_u32 v{a0}, {XF}, v{a0}")
        for i in range(1, 8):
            a(f"v_xor_b32 v{a0x[i-1]}, {i*32}, v{a0}")
    def stage0(extra_reads=None, n_extra=0):
        for i in range(8):
            ad = a0 if i == 0 else a0x[i-1]
            for half in range(2):
                a(f"ds_read_b64_tr_b16 {v(XA[i]+2*half,2)}, v{ad} offset:{half*32768}")
        if extra_reads: extra_reads()
        for i in range(8):
            a(f"s_waitcnt lgkmcnt({min(15, 2*(7-i)+n_extra)})")
            a.mfma(D0[i], XA[i], B0, None)
        a("s_nop 3")
        for i in range(8):
            a(f"v_cvt_pk_bf16_f32 v{D0[i]}, v{D0[i]}, v{D0[i]+1}")
            a(f"v_cvt_pk_bf16_f32 v{D0[i]+1}, v{D0[i]+2}, v{D0[i]+3}")
            a(f"ds_write_b64 v{aW[i&1]}, {v(D0[i],2)} offset:{(i>>1)*64}")
    a(f"""
    s_cmp_lt_u32 s{sWave}, 4
    s_cbranch_scc1 {L('compute')}
    """)
    V = Regs(8, FB - 1, 'v')
    vLR, vP = V.alloc(), V.alloc()
    vA = [V.alloc() for _ in range(4)]
    vB = [V.alloc() for _ in range(6)]
    vH = V.alloc()
    aG = [V.alloc(), V.alloc()]
    gacc = [V.alloc(), V.alloc()]
    vPF = V.alloc(); vPFD = V.alloc(2)
    aU = V.alloc(); aSR = V.alloc()
    GW = U.alloc(8, 4); GX = [U.alloc(8, 4), U.alloc(8, 4)]
    a.srd(SRDW, sW, 1024 * 3072 * 2)
    immB = [0, 1024, 2048, 3072, 0, 1024]
    ROT = opt.get('rot', 0)
    a(f"""
    s_sub_u32 s{sLW}, s{sWave}, 4
    v_lshrrev_b32 v{vLR}, 3, v0
    v_and_b32 v{vP}, 7, v0
    s_lshl_b32 s{sT0}, s{sLW}, 4
    v_add_u32 v{vT}, s{sT0}, v{vLR}
    v_mul_u32_u24 v{vT}, 6144, v{vT}
    s_lshl_b32 s{sT0}, s{sHP}, 7
    v_add_u32 v{vT}, s{sT0}, v{vT}
    v_and_b32 v{vT2}, 2, v{vLR}
    v_xor_b32 v{vT2}, v{vT2}, v{vP}
    v_lshl_add_u32 v{vB[0]}, v{vT2}, 4, v{vT}
    v_xor_b32 v{vT2}, 4, v{vT2}
    v_lshl_add_u32 v{vB[1]}, v{vT2}, 4, v{vT}
    v_add_u32 v{vB[1]}, {8*6144 - 1024}, v{vB[1]}
    """)
    for n in range(2, 6):
        seg, uo = n >> 1, n & 1
        a(f"v_add_u32 v{vB[n]}, {seg * 2048 - immB[n] + immB[uo]}, v{vB[uo]}")
    if ROT:
        a(f"""
        s_and_b32 s{sT0}, s{sMB}, 7
        s_lshl_b32 s{sKI}, s{sT0}, 1
        s_lshr_b32 s{sT0}, s{sMB}, 3
        s_add_u32 s{sKI}, s{sKI}, s{sT0}
        s_lshl_b32 s{sT0}, s{sHP}, 2
        s_add_u32 s{sKI}, s{sKI}, s{sT0}
        s_and_b32 s{sKI}, s{sKI}, 15
        """)
    else:
        a(f"s_mov_b32 s{sKI}, 0")
    a(f"""
    s_lshl_b32 s{sKA}, s{sKI}, 7
    s_mul_i32 s{sKB}, s{sKI}, {64*6144}
    s_mul_i32 s{sLM}, s{sLW}, {CH}
    s_mov_b32 s{sStg}, 0
    """)
    def issue_B():
        a(f"s_add_u32 s{sT0}, s{sLM}, s{sStg}")
        a(f"s_add_u32 m0, s{sT0}, 4096")
        a("s_nop 0")
        for n in range(4):
            a(f"buffer_load_dwordx4 v{vB[n]}, {s(SRDW,4)}, s{sKB} offen offset:{immB[n]} lds")
        a(f"s_add_u32 m0, s{sT0}, 8192")
        a("s_nop 0")
        for n in range(4, 6):
            a(f"buffer_load_dwordx4 v{vB[n]}, {s(SRDW,4)}, s{sKB} offen offset:{immB[n]} lds")
    def issue_A(sep=False):
        if sep:
            a(f"s_add_u32 s{sT0}, s{sLM}, s{sStg}")
            a(f"s_add_u32 m0, s{sT0}, 8192")
        a("s_mov_b64 exec, 0xffffffff")
        a(f"buffer_load_dwordx4 v{vH}, {s(SRDX,4)}, s{sKA} offen offset:2048 lds")
        a("s_mov_b64 exec, -1")
        a(f"s_mov_b32 m0, s{sT0}")
        a(f"s_add_u32 s{sKI}, s{sKI}, 1")
        for u in range(4):
            a(f"buffer_load_dwordx4 v{vA[u]}, {s(SRDX,4)}, s{sKA} offen offset:{u*1024} lds")
        a(f"""
        s_and_b32 s{sKI}, s{sKI}, 15
        s_lshl_b32 s{sKA}, s{sKI}, 7
        s_mul_i32 s{sKB}, s{sKI}, {64*6144}
        s_add_u32 s{sStg}, s{sStg}, {STAGE}
        s_cmp_eq_u32 s{sStg}, {3*STAGE}
        s_cselect_b32 s{sStg}, 0, s{sStg}
        """)
    def issue_stage():
        issue_B(); issue_A()
    a.srd(SRDP, sGW, 2048)
    a.srd_off(SRDG, sWS, WS_G, 2048 * 4)
    a(f"""
    v_lshlrev_b32 v{vT}, 5, v0
    buffer_load_dwordx4 {v(GW,4)}, v{vT}, {s(SRDP,4)}, 0 offen
    buffer_load_dwordx4 {v(GW+4,4)}, v{vT}, {s(SRDP,4)}, 0 offen offset:16
    s_lshl_b32 s{sT0}, s{sQ}, 3
    s_lshl_b32 s{sT1}, s{sLW}, 1
    s_add_u32 s{sT3}, s{sT0}, s{sT1}
    v_xor_b32 v{vT}, s{sT1}, v0
    v_lshlrev_b32 v{aG[0]}, 5, v{vT}
    v_xor_b32 v{aG[1]}, 32, v{aG[0]}
    s_lshl_b32 s{sT0}, s{sT3}, 11
    s_add_u32 s{sT0}, s{sT0}, {XF}
    v_add_u32 v{aG[0]}, s{sT0}, v{aG[0]}
    s_add_u32 s{sT0}, s{sT0}, 2048
    v_add_u32 v{aG[1]}, s{sT0}, v{aG[1]}
    s_lshl_b32 s{sT3}, s{sT3}, 6
    s_add_u32 s{sT3}, s{sT3}, s{sS2}
    s_lshl_b32 s{sT3}, s{sT3}, 2
    ; A rows
    s_lshr_b32 s{sT0}, s{sLW}, 1
    s_lshl_b32 s{sT0}, s{sT0}, 6
    s_and_b32 s{sT1}, s{sLW}, 1
    s_add_u32 s{sT0}, s{sT0}, s{sT1}
    s_add_u32 s{sT0}, s{sT0}, s{sM0}
    v_lshlrev_b32 v{vT}, 1, v{vLR}
    v_add_u32 v{vT}, s{sT0}, v{vT}
    v_lshlrev_b32 v{vT}, 11, v{vT}
    v_xor_b32 v{vT2}, v{vP}, v{vLR}
    v_lshl_add_u32 v{vA[0]}, v{vT2}, 4, v{vT}
    """)
    for u in range(1, 4):
        a(f"v_add_u32 v{vA[u]}, {u*16*2048 - u*1024}, v{vA[0]}")
    a(f"""
    s_and_b32 s{sT0}, s{sLW}, 1
    s_lshl_b32 s{sT1}, s{sT0}, 3
    s_lshr_b32 s{sT2}, s{sLW}, 1
    s_add_u32 s{sT1}, s{sT1}, s{sT2}
    s_add_u32 s{sT1}, s{sT1}, s{sM0}
    s_sub_u32 s{sT1}, s{sT1}, 17
    v_lshlrev_b32 v{vT}, 1, v{vLR}
    v_add_u32 v{vT}, s{sT1}, v{vT}
    v_lshlrev_b32 v{vT}, 11, v{vT}
    s_lshl_b32 s{sT0}, s{sT0}, 2
    v_add_u32 v{vT2}, s{sT0}, v{vLR}
    v_and_b32 v{vT2}, 7, v{vT2}
    v_xor_b32 v{vT2}, v{vT2}, v{vP}
    v_lshl_add_u32 v{vH}, v{vT2}, 4, v{vT}
    s_lshr_b32 s{sT0}, s2, 3
    s_lshl_b32 s{sT0}, s{sT0}, 16
    s_lshl_b32 s{sT1}, s{sLW}, 14
    s_add_u32 s{sT0}, s{sT0}, s{sT1}
    v_lshlrev_b32 v{vPF}, 7, v0
    v_add_u32 v{vPF}, s{sT0}, v{vPF}
    """)
    a.srd_off(SRDU, sWS, WS_U, 8 << 20)
    a(f"""
    s_lshl_b32 s{sT0}, s{sQ}, 3
    s_lshl_b32 s{sT1}, s{sLW}, 1
    s_add_u32 s{sT0}, s{sT0}, s{sT1}
    s_lshl_b32 s{sT1}, s{sT0}, 7
    s_add_u32 s{sT1}, s{sT1}, s{sS2}
    s_lshl_b32 s{sT1}, s{sT1}, 11
    v_lshlrev_b32 v{aU}, 4, v0
    v_add_u32 v{aU}, s{sT1}, v{aU}
    s_mul_i32 s{sT0}, s{sLW}, {4*CROW}
    s_add_u32 s{sT0}, s{sT0}, {CB}
    v_bfe_u32 v{vT}, v0, 3, 1
    v_bfe_u32 v{vT2}, v0, 5, 1
    v_lshl_add_u32 v{vT}, v{vT2}, 1, v{vT}
    v_xor_b32 v{vT}, v{vT}, v0
    v_lshlrev_b32 v{aSR}, 4, v{vT}
    v_add_u32 v{aSR}, s{sT0}, v{aSR}
    """)
    stage0_setup()
    st.stamp(2)
    a("s_waitcnt vmcnt(2)")
    a("s_barrier")
    st.stamp(3)
    def gate():
        for n in range(2):
            a(f"v_mov_b32 v{gacc[n]}, 0")
        for j in range(8):
            a(f"v_lshlrev_b32 v{tmp+2}, 16, v{GW+j}")
            a(f"v_and_b32 v{tmp+3}, 0xffff0000, v{GW+j}")
            for n in range(2):
                t = tmp + 4 + 4*n
                a(f"""
                v_lshlrev_b32 v{t}, 16, v{GX[n]+j}
                v_and_b32 v{t+1}, 0xffff0000, v{GX[n]+j}
                v_mul_f32 v{t}, v{t}, v{tmp+2}
                v_mul_f32 v{t+1}, v{t+1}, v{tmp+3}
                v_cvt_pk_bf16_f32 v{t}, 0, v{t}
                v_cvt_pk_bf16_f32 v{t+1}, 0, v{t+1}
                v_add_f32 v{gacc[n]}, v{gacc[n]}, v{t}
                v_add_f32 v{gacc[n]}, v{gacc[n]}, v{t+1}
                """)
        for k in (8, 4, 2, 1):
            a("s_nop 1")
            for n in range(2):
                a(f"v_add_f32_dpp v{gacc[n]}, v{gacc[n]}, v{gacc[n]} row_ror:{k} row_mask:0xf bank_mask:0xf")
        for sw in ("v_permlane32_swap_b32", "v_permlane16_swap_b32"):
            for n in range(2): a(f"v_mov_b32 v{tmp+n}, v{gacc[n]}")
            a("s_nop 1")
            for n in range(2): a(f"{sw} v{gacc[n]}, v{tmp+n}")
            a("s_nop 1")
            for n in range(2): a(f"v_add_f32 v{gacc[n]}, v{gacc[n]}, v{tmp+n}")
        for n in range(2):
            a(f"""
            v_cvt_pk_bf16_f32 v{gacc[n]}, 0, v{gacc[n]}
            v_mul_f32 v{gacc[n]}, {f32bits(-1.4426950408889634)}, v{gacc[n]}
            v_exp_f32 v{gacc[n]}, v{gacc[n]}
            s_nop 0
            v_add_f32 v{gacc[n]}, 1.0, v{gacc[n]}
            v_rcp_f32 v{gacc[n]}, v{gacc[n]}
            s_nop 0
            v_cvt_pk_bf16_f32 v{gacc[n]}, 0, v{gacc[n]}
            """)
    def greads():
        for n in range(2):
            a(f"ds_read_b128 {v(GX[n],4)}, v{aG[n]}")
            a(f"ds_read_b128 {v(GX[n]+4,4)}, v{aG[n]} offset:16")
    if opt.get('stamp'): a("s_waitcnt lgkmcnt(0)")
    stage0(greads, 4)
    a("s_waitcnt lgkmcnt(0)")
    a("s_barrier")
    st.stamp(4)
    issue_stage()
    issue_stage()
    st.stamp(7)
    if opt.get('pre3', 0):
        issue_stage()
        a("s_waitcnt vmcnt(22)")
        st.stamp(8)
        a("s_barrier")
    else:
        a("s_waitcnt vmcnt(11)")
        st.stamp(8)
        a("s_barrier")
        issue_stage()
    a(f"s_mov_b32 s{sCnt}, 0")
    a.label(L('lloop'))
    a("s_waitcnt vmcnt(11)")
    a("s_barrier")
    issue_stage()
    a(f"""
    s_add_u32 s{sCnt}, s{sCnt}, 1
    s_cmp_lt_u32 s{sCnt}, 13
    s_cbranch_scc1 {L('lloop')}
    """)
    UD = [XA[i] for i in range(8)]
    def ureads():
        for p in range(8):
            a(f"ds_read_b128 {v(UD[p],4)}, v{aSR} offset:{p*1024}")
    def ustores(ps):
        for p in ps:
            a(f"s_mov_b32 s{sT0}, {(p >> 1)*131072}")
            a(f"buffer_store_dwordx4 {v(UD[p],4)}, v{aU}, {s(SRDU,4)}, s{sT0} offen offset:{(p & 1)*1024}{USC}")
        return len(ps)
    def wopf():
        n = 0
        mode = opt.get('wopf', 1)
        if mode:
            a.srd(SRDP, sWO, 2 << 20)
        if mode == 1:
            a(f"s_mov_b32 s{sT0}, 8192")
            a(f"buffer_load_dword v{vPFD}, v{vPF}, {s(SRDP,4)}, 0 offen")
            a(f"buffer_load_dword v{vPFD+1}, v{vPF}, {s(SRDP,4)}, s{sT0} offen")
            n = 2
        if mode == 2:
            a(f"""
            s_lshl_b32 s{sT0}, s2, 13
            s_lshl_b32 s{sT1}, s{sLW}, 11
            s_add_u32 s{sT0}, s{sT0}, s{sT1}
            v_lshlrev_b32 v{vPF}, 7, v0
            s_mov_b64 exec, 0xffff
            buffer_load_dword v{vPFD}, v{vPF}, {s(SRDP,4)}, s{sT0} offen
            s_mov_b64 exec, -1
            """)
            n = 1
        if CPF:
            code_pf(); n += 1
        return n
    ureads()
    a("s_waitcnt lgkmcnt(0)")
    n = 0
    if opt.get('wofirst', 0): n += wopf()
    n += ustores(range(0, 4))
    a(f"s_waitcnt vmcnt({11 + n})")
    a("s_barrier")
    n += ustores(range(4, 8))
    if not opt.get('wofirst', 0): n += wopf()
    a(f"s_waitcnt vmcnt({n})")
    a("s_barrier")
    gate()
    a(f"""
    v_mov_b32 v{tmp}, s{sT3}
    s_mov_b64 exec, 1
    buffer_store_dword v{gacc[0]}, v{tmp}, {s(SRDG,4)}, 0 offen
    buffer_store_dword v{gacc[1]}, v{tmp}, {s(SRDG,4)}, 0 offen offset:256
    s_mov_b64 exec, -1
    s_barrier
    s_barrier
    """)
    st.stamp(5); st.stamp(6, True)
    st.dump(12, sWave, 1, 2)
    sp.end(sWS, sWave)
    a(f"s_branch {L('end')}")
    a.label(L('compute'))
    U.release(umark)
    V = Regs(8, FB - 1, 'v')
    bA = [V.alloc(), V.alloc()]; bH = [V.alloc(), V.alloc()]; bB = [V.alloc(), V.alloc()]
    cA = [V.alloc(), V.alloc()]; cH = [V.alloc(), V.alloc()]; cB = [V.alloc(), V.alloc()]
    vO = V.alloc(); vLane16 = V.alloc(); vLane8 = V.alloc()
    mCur = V.alloc(2, 2); mPrev = V.alloc(2, 2); mFirst = [V.alloc(2, 2), V.alloc(2, 2)]
    biasCur = V.alloc(4, 4); biasPrev = V.alloc(4, 4); biasFirst = [V.alloc(4, 4), V.alloc(4, 4)]
    G = Regs(FB, 256, 'gemm')
    QT = [[[G.alloc(4, 4) for db in range(2)] for b in range(2)] for par in range(2)]
    KT = [[[G.alloc(4, 4) for db in range(2)] for b in range(2)] for par in range(2)]
    VV = [[[G.alloc(4, 4) for db in range(2)] for b in range(2)] for par in range(2)]
    HH = [G.alloc(4, 4) for db in range(2)]
    acc0 = QT[0][0][0]; accN = HH[1] + 4
    fr0 = G.mark()
    F = []
    for f in range(2):
        F.append(dict(XA=[[G.alloc(4, 4) for b in range(2)] for par in range(2)], XH=G.alloc(4, 4),
                      WB=[[G.alloc(4, 4) for db in range(2)] for seg in range(3)]))
    frN = G.mark()
    COS = [U.alloc(4, 4) for _ in range(2)]
    SIN = [U.alloc(4, 4) for _ in range(2)]
    NSIN = [U.alloc(4, 4) for _ in range(2)]
    TWC = [[U.alloc(4) for eb in range(2)] for db2 in range(2)]
    TWS = [[U.alloc(4) for eb in range(2)] for db2 in range(2)]
    a1 = [U.alloc(), U.alloc()]; aSW = U.alloc()
    WPF = opt.get('wpf', 1)
    vWP = V.alloc(); vWD = V.alloc()
    RA = opt.get('ra', 3)
    def wpf_setup():
        if WPF: a.srd(SRDW, sW, 1024 * 3072 * 2)
        if WPF == 1:
            a(f"""
            s_lshl_b32 s{sT0}, s{sWave}, 21
            s_lshl_b32 s{sT1}, s2, 13
            s_add_u32 s{sT0}, s{sT0}, s{sT1}
            v_lshlrev_b32 v{vWP}, 7, v0
            v_add_u32 v{vWP}, s{sT0}, v{vWP}
            """)
        if WPF == 2:
            a(f"""
            v_mul_u32_u24 v{vT}, 43, v0
            v_lshrrev_b32 v{vT}, 9, v{vT}
            v_mul_u32_u24 v{vT2}, 12, v{vT}
            v_sub_u32 v{vT2}, v0, v{vT2}
            v_mul_u32_u24 v{vWP}, 6144, v{vT}
            v_lshrrev_b32 v{vT}, 2, v{vT2}
            v_lshl_add_u32 v{vWP}, v{vT}, 11, v{vWP}
            v_and_b32 v{vT}, 3, v{vT2}
            v_lshl_add_u32 v{vWP}, v{vT}, 7, v{vWP}
            s_lshr_b32 s{sT0}, s2, 3
            s_lshl_b32 s{sT0}, s{sT0}, 2
            s_add_u32 s{sT0}, s{sT0}, s{sWave}
            s_mul_i32 s{sT0}, s{sT0}, {8*6144}
            s_lshr_b32 s{sT1}, s{sHP}, 2
            s_lshl_b32 s{sT1}, s{sT1}, 9
            s_add_u32 s{sT0}, s{sT0}, s{sT1}
            v_add_u32 v{vWP}, s{sT0}, v{vWP}
            """)
        if WPF == 3:
            a(f"""
            v_mul_u32_u24 v{vT}, 43, v0
            v_lshrrev_b32 v{vT}, 9, v{vT}
            v_mul_u32_u24 v{vT2}, 12, v{vT}
            v_sub_u32 v{vT2}, v0, v{vT2}
            v_mul_u32_u24 v{vWP}, 6144, v{vT}
            v_lshrrev_b32 v{vT}, 2, v{vT2}
            v_lshl_add_u32 v{vWP}, v{vT}, 11, v{vWP}
            v_and_b32 v{vT}, 3, v{vT2}
            v_lshl_add_u32 v{vWP}, v{vT}, 7, v{vWP}
            s_lshr_b32 s{sT1}, s{sHP}, 2
            s_lshl_b32 s{sT1}, s{sT1}, 9
            v_add_u32 v{vWP}, s{sT1}, v{vWP}
            s_lshr_b32 s{sT0}, s2, 3
            s_lshl_b32 s{sT1}, s{sT0}, 2
            s_add_u32 s{sT1}, s{sT1}, s{sWave}
            s_mul_i32 s{sKA}, s{sT1}, {RA*6144}
            s_mul_i32 s{sKB}, s{sT1}, {(8-RA)*6144}
            s_add_u32 s{sKB}, s{sKB}, {128*RA*6144}
            """)
    def wpfB():
        if WPF == 3:
            n = (8 - RA) * 12
            a(f"s_mov_b32 exec_hi, {(1 << (n - 32)) - 1}")
            a(f"buffer_load_dword v{vCP}, v{vWP}, {s(SRDW,4)}, s{sKB} offen")
            a("s_mov_b32 exec_hi, -1")
            if opt.get('womall', 1):
                a.srd(SRDP, sWO, 2 << 20)
                a(f"""
                s_lshl_b32 s{sT0}, s2, 13
                s_lshl_b32 s{sT1}, s{sWave}, 11
                s_add_u32 s{sT0}, s{sT0}, s{sT1}
                v_lshlrev_b32 v{vWP}, 7, v0
                s_mov_b64 exec, 0xffff
                buffer_load_dword v{vWD}, v{vWP}, {s(SRDP,4)}, s{sT0} offen
                s_mov_b64 exec, -1
                """)
    def wpf():
        if WPF == 3:
            n = RA * 12
            if n > 32:
                a(f"s_mov_b32 exec_hi, {(1 << (n - 32)) - 1}")
            else:
                a(f"s_mov_b64 exec, {(1 << n) - 1}")
            a(f"buffer_load_dword v{vWD}, v{vWP}, {s(SRDW,4)}, s{sKA} offen")
            a("s_mov_b64 exec, -1")
        if WPF == 1:
            a(f"buffer_load_dword v{vWD}, v{vWP}, {s(SRDW,4)}, 0 offen")
        if WPF == 2:
            a(f"""
            s_mov_b32 s{sT0}, {4*6144}
            s_mov_b32 exec_hi, 0xffff
            buffer_load_dword v{vWD}, v{vWP}, {s(SRDW,4)}, 0 offen
            buffer_load_dword v{vCP}, v{vWP}, {s(SRDW,4)}, s{sT0} offen
            s_mov_b32 exec_hi, -1
            """)
    wpf_setup()
    if opt.get('wpfpos', 3) == 0: wpf()
    stage0_setup()
    a.srd_off(SRDO, sWS, WS_O, 4 << 20)
    a(f"""
    s_mov_b32 s{sRI}, 131072
    v_lshl_add_u32 v{vT}, v{vR}, 3, v{vC}
    v_cvt_f32_u32 v{ef[0]}, v{vT}
    v_add_f32 v{ef[1]}, 4.0, v{ef[0]}
    """)
    for eb in range(2):
        a(f"v_mul_f32 v{vT}, {f32bits(1/32)}, v{ef[eb]}")
        for j in range(8):
            a(f"v_mul_f32 v{tmp+j}, v{vT}, v{kkf[j]}")
        for j in range(8):
            a(f"v_sin_f32 v{tmp+8+j}, v{tmp+j}")
        for j in range(8):
            a(f"v_cos_f32 v{tmp+j}, v{tmp+j}")
        a("s_nop 0")
        for j in range(4):
            a(f"v_cvt_pk_bf16_f32 v{SIN[eb]+j}, v{tmp+8+2*j}, v{tmp+8+2*j+1}")
            a(f"v_cvt_pk_bf16_f32 v{COS[eb]+j}, v{tmp+2*j}, v{tmp+2*j+1}")
            a(f"v_xor_b32 v{NSIN[eb]+j}, 0x80008000, v{SIN[eb]+j}")
    for eb in range(2):
        a(f"v_mul_f32 v{vT}, {f32bits(1/1024)}, v{ef[eb]}")
        for db2 in range(2):
            for r in range(4):
                a(f"v_mul_f32 v{TWC[db2][eb]+r}, v{vT}, v{kkf[4*db2+r]}")
            for r in range(4):
                a(f"v_sin_f32 v{TWS[db2][eb]+r}, v{TWC[db2][eb]+r}")
            for r in range(4):
                a(f"v_cos_f32 v{TWC[db2][eb]+r}, v{TWC[db2][eb]+r}")
    if opt.get('wpfpos', 3) == 1: wpf()
    a(f"""
    s_and_b32 s{sH}, s{sWave}, 1
    s_lshr_b32 s{sHF}, s{sWave}, 1
    s_mov_b32 s{sScale}, {SCALE}
    s_mov_b32 s{sLog2e}, {LOG2E}
    v_lshl_add_u32 v{vT}, v{vG}, 2, v{vR}
    v_lshlrev_b32 v{a1[0]}, 6, v{vT}
    v_lshl_add_u32 v{a1[0]}, v{vC}, 3, v{a1[0]}
    v_and_b32 v{vT2}, 1, v{vG}
    v_lshl_add_u32 v{a1[0]}, v{vT2}, 5, v{a1[0]}
    v_xor_b32 v{a1[1]}, 32, v{a1[0]}
    s_mul_i32 s{sT0}, s{sWave}, {4*CROW}
    s_add_u32 s{sT0}, s{sT0}, {CB}
    v_add_u32 v{a1[0]}, s{sT0}, v{a1[0]}
    v_add_u32 v{a1[1]}, s{sT0}, v{a1[1]}
    s_mul_i32 s{sT0}, s{sWave}, {4*CROW}
    s_add_u32 s{sT0}, s{sT0}, {CB}
    v_lshrrev_b32 v{vT}, 1, v{vC}
    v_and_b32 v{vT2}, 1, v{vR}
    v_lshl_add_u32 v{vT}, v{vT2}, 1, v{vT}
    v_xor_b32 v{vT}, v{vT}, v{vG}
    v_lshl_add_u32 v{aSW}, v{vR}, 3, v{vC}
    v_lshlrev_b32 v{aSW}, 6, v{aSW}
    v_lshl_add_u32 v{aSW}, v{vT}, 4, v{aSW}
    v_add_u32 v{aSW}, s{sT0}, v{aSW}
    v_and_b32 v{vT}, 7, v{vI}
    v_xor_b32 v{vT}, v{vT}, v{vG}
    v_lshlrev_b32 v{vT}, 4, v{vT}
    s_mul_i32 s{sT0}, s{sHF}, {2*CH}
    v_lshl_add_u32 v{bA[0]}, v{vI}, 7, v{vT}
    v_add_u32 v{bA[0]}, s{sT0}, v{bA[0]}
    v_xor_b32 v{bA[1]}, 64, v{bA[0]}
    v_mul_u32_u24 v{bH[0]}, {CH}, v{vR}
    v_lshl_add_u32 v{bH[0]}, v{vC}, 7, v{bH[0]}
    v_add_u32 v{bH[0]}, v{bH[0]}, v{vT}
    v_add_u32 v{bH[0]}, 10240, v{bH[0]}
    v_xor_b32 v{bH[1]}, 64, v{bH[0]}
    v_lshrrev_b32 v{vT}, 1, v{vG}
    v_mul_u32_u24 v{bB[0]}, {CH}, v{vT}
    v_and_b32 v{vT}, 1, v{vG}
    v_lshl_add_u32 v{bB[1]}, v{vT}, 3, v{vR}
    v_lshl_add_u32 v{bB[0]}, v{bB[1]}, 7, v{bB[0]}
    v_lshlrev_b32 v{vT}, 2, v{vT}
    v_and_b32 v{bB[1]}, 2, v{vR}
    v_or_b32 v{vT}, v{vT}, v{bB[1]}
    v_lshrrev_b32 v{bB[1]}, 1, v{vC}
    s_lshl_b32 s{sT0}, s{sH}, 2
    v_add_u32 v{bB[1]}, s{sT0}, v{bB[1]}
    v_xor_b32 v{vT}, v{vT}, v{bB[1]}
    v_lshl_add_u32 v{bB[0]}, v{vT}, 4, v{bB[0]}
    v_and_b32 v{vT}, 1, v{vC}
    v_lshl_add_u32 v{bB[0]}, v{vT}, 3, v{bB[0]}
    v_add_u32 v{bB[0]}, 4096, v{bB[0]}
    v_xor_b32 v{bB[1]}, 32, v{bB[0]}
    v_lshlrev_b32 v{vO}, 18, v{vI}
    v_and_b32 v{vT}, 1, v{vG}
    v_lshl_add_u32 v{vO}, v{vT}, 5, v{vO}
    v_lshrrev_b32 v{vT}, 1, v{vG}
    v_lshl_add_u32 v{vO}, v{vT}, 4, v{vO}
    s_lshl_b32 s{sT0}, s{sHP}, 13
    s_lshl_b32 s{sT1}, s{sMB}, 9
    s_add_u32 s{sT0}, s{sT0}, s{sT1}
    s_lshl_b32 s{sT1}, s{sHF}, 8
    s_add_u32 s{sT0}, s{sT0}, s{sT1}
    s_lshl_b32 s{sT1}, s{sH}, 6
    s_add_u32 s{sT0}, s{sT0}, s{sT1}
    v_add_u32 v{vO}, s{sT0}, v{vO}
    s_mul_i32 s{sT0}, s{sH}, 5120
    v_lshlrev_b32 v{vLane16}, 4, v0
    v_add_u32 v{vLane16}, s{sT0}, v{vLane16}
    v_lshlrev_b32 v{vLane8}, 3, v0
    v_add_u32 v{vLane8}, s{sT0}, v{vLane8}
    """)
    a(f"v_lshlrev_b32 v{vT}, 2, v{vG}")
    a(f"v_sub_u32 v{vT}, v{vI}, v{vT}")
    a(f"v_mov_b32 v{vT3}, {NEG_BIG}")
    MS = s(sMSK, 2)
    for r in range(4):
        a(f"v_subrev_u32 v{vT2}, {r}, v{vT}")
        a(f"v_cmp_gt_u32 vcc, 8, v{vT2}")
        a(f"v_cmp_gt_i32 {MS}, -8, v{vT2}")
        a("s_nop 0")
        a(f"v_cndmask_b32_e64 v{biasCur+r}, v{vT3}, 0, vcc")
        a(f"v_cndmask_b32_e64 v{biasPrev+r}, v{vT3}, 0, {MS}")
        a(f"v_mov_b32 v{biasFirst[1]+r}, v{biasPrev+r}")
        a(f"v_mov_b32 v{biasFirst[0]+r}, v{biasPrev+r}")
    a(f"""
    s_cmp_lg_u32 s{sHF}, 0
    s_cbranch_scc1 {L('maskdone')}
    v_cmp_gt_u32 {MS}, 2, v{vG}
    """)
    for r in range(4):
        a(f"v_subrev_u32 v{vT2}, {r}, v{vT}")
        a(f"v_cmp_gt_i32 vcc, 0, v{vT2}")
        a("s_nop 1")
        a(f"s_and_b64 vcc, vcc, {MS}")
        a("s_nop 1")
        a(f"v_cndmask_b32_e64 v{biasFirst[0]+r}, v{vT3}, 0, vcc")
    a(f"""
    s_cmp_lg_u32 s{sMB}, 0
    s_cbranch_scc1 {L('maskdone')}
    """)
    for r in range(4):
        a(f"v_mov_b32 v{biasFirst[0]+r}, v{vT3}")
        a(f"v_mov_b32 v{biasFirst[1]+r}, v{vT3}")
    a.label(L('maskdone'))
    def mk_mask(m, bias):
        for h2 in range(2):
            a(f"v_ashrrev_i32 v{vT}, 31, v{bias+2*h2}")
            a(f"v_ashrrev_i32 v{vT2}, 31, v{bias+2*h2+1}")
            a(f"v_and_b32 v{vT}, 0xffff, v{vT}")
            a(f"v_and_b32 v{vT2}, 0xffff0000, v{vT2}")
            a(f"v_or_b32 v{vT}, v{vT}, v{vT2}")
            a(f"v_not_b32 v{m+h2}, v{vT}")
    mk_mask(mCur, biasCur); mk_mask(mPrev, biasPrev); mk_mask(mFirst[0], biasFirst[0]); mk_mask(mFirst[1], biasFirst[1])
    if opt.get('wpfpos', 3) == 2: wpf()
    st.stamp(2)
    a(f"s_waitcnt vmcnt({WPF if opt.get('wpfpos', 3) < 3 else 0})")
    if opt.get('wpfpos', 3) == 3: wpf()
    a("s_barrier")
    if opt.get('wpfpos', 3) == 4: wpf()
    st.stamp(3)
    if opt.get('stamp'): a("s_waitcnt lgkmcnt(0)")
    stage0()
    a("s_waitcnt lgkmcnt(0)")
    a("s_barrier")
    st.stamp(4)
    if opt.get('stamp'): a("s_waitcnt lgkmcnt(0)")
    AR2 = [U.alloc(4, 4) for _ in range(4)]
    Cfs = [[[XA[0], XA[1]], [XA[2], XA[3]]], [[XA[4], XA[5]], [XA[6], XA[7]]]]
    for task in range(2):
        for ri in range(2):
            for db2 in range(2):
                for half in range(2):
                    a(f"ds_read_b64_tr_b16 {v(Cfs[task][ri][db2]+2*half,2)}, v{a1[db2]} offset:{half*1024 + (2*task+ri)*CROW}")
    TB = [DEAD + 4*j for j in range(8)]
    Ts = [D0, TB]
    As = [AR2, [XA[0], XA[1], XA[2], XA[3]]]
    Os = [[XA[4], XA[5], XA[6], XA[7]], AR2]
    def mf(d, x, y, c): return f"v_mfma_f32_16x16x32_bf16 {v(d,4)}, {v(x,4)}, {v(y,4)}, {'0' if c is None else v(c,4)}"
    def S1(task):
        T = Ts[task]; Cf = Cfs[task]; out = []
        for db2 in range(2):
            for eb in range(2):
                out.append(mf(T[2*db2+eb], Cf[0][db2], COS[eb], None))
                out.append(mf(T[4+2*db2+eb], Cf[0][db2], NSIN[eb], None))
        for db2 in range(2):
            for eb in range(2):
                out.append(mf(T[2*db2+eb], Cf[1][db2], SIN[eb], T[2*db2+eb]))
                out.append(mf(T[4+2*db2+eb], Cf[1][db2], COS[eb], T[4+2*db2+eb]))
        return out
    def TW(task):
        T = Ts[task]; A_ = As[task]; out = []
        for db2 in range(2):
            for eb in range(2):
                trb, tib = T[2*db2+eb], T[4+2*db2+eb]
                for r in range(4):
                    out.append(f"v_mul_f32 v{tmp0+r}, v{trb+r}, v{TWC[db2][eb]+r}")
                    out.append(f"v_mul_f32 v{tmp0+4+r}, v{trb+r}, v{TWS[db2][eb]+r}")
                for r in range(4):
                    out.append(f"v_fma_f32 v{tmp0+r}, v{tib+r}, v{TWS[db2][eb]+r}, v{tmp0+r}")
                    out.append(f"v_fma_f32 v{tmp0+4+r}, -v{tib+r}, v{TWC[db2][eb]+r}, v{tmp0+4+r}")
                for h2 in range(2):
                    out.append(f"v_cvt_pk_bf16_f32 v{A_[eb]+2*db2+h2}, v{tmp0+2*h2}, v{tmp0+2*h2+1}")
                    out.append(f"v_cvt_pk_bf16_f32 v{A_[2+eb]+2*db2+h2}, v{tmp0+4+2*h2}, v{tmp0+4+2*h2+1}")
        return out
    def S2(task):
        T = Ts[task]; A_ = As[task]; out = []
        for eb2 in range(2):
            for eb in range(2):
                out.append(mf(T[2*eb+eb2], A_[eb], COS[eb2], None))
                out.append(mf(T[4+2*eb+eb2], A_[eb], SIN[eb2], None))
        for eb2 in range(2):
            for eb in range(2):
                out.append(mf(T[2*eb+eb2], A_[2+eb], NSIN[eb2], T[2*eb+eb2]))
                out.append(mf(T[4+2*eb+eb2], A_[2+eb], COS[eb2], T[4+2*eb+eb2]))
        return out
    def OUT(task):
        T = Ts[task]; out = []; k = 0
        for eb2 in range(2):
            for ri in range(2):
                o = Os[task][k]; k += 1
                for eb in range(2):
                    w = T[4*ri+2*eb+eb2]
                    out.append(f"v_cvt_pk_bf16_f32 v{o+2*eb}, v{w}, v{w+1}")
                    out.append(f"v_cvt_pk_bf16_f32 v{o+2*eb+1}, v{w+2}, v{w+3}")
                out.append(f"ds_write_b128 v{aSW}, {v(o,4)} offset:{(2*task+ri)*2048 + eb2*256}")
        return out
    def iln(main, fill, n, skip=0):
        out = []; fi = 0
        for i, m in enumerate(main):
            out.append(m)
            if i >= skip:
                for _ in range(n):
                    if fi < len(fill):
                        out.append(fill[fi]); fi += 1
        return out + fill[fi:]
    a("s_waitcnt lgkmcnt(12)")
    s1a = S1(0)
    for l in s1a[:8]: a(l)
    a("s_waitcnt lgkmcnt(8)")
    for l in s1a[8:]: a(l)
    a("s_waitcnt lgkmcnt(0)")
    for l in iln(S1(1), TW(0), 6, 2): a(l)
    a("s_nop 1")
    for l in iln(S2(0), TW(1), 6, 2): a(l)
    a("s_nop 1")
    for l in iln(S2(1), OUT(0), 2, 4): a(l)
    a("s_nop 3")
    for l in OUT(1): a(l)
    st.stamp(7)

    def reads(f, kh, aA, aH, aB):
        out = []
        fs = F[f]
        def rb(seg, db):
            r = fs['WB'][seg][db]
            for half in range(2):
                out.append(f"ds_read_b64_tr_b16 {v(r+2*half,2)}, v{aB[db]} offset:{kh*2*CH + seg*2048 + half*512}")
        def ra(par, b):
            out.append(f"ds_read_b128 {v(fs['XA'][par][b],4)}, v{aA} offset:{par*CH + b*2048}")
        ra(0, 0); rb(0, 0); rb(0, 1); ra(0, 1); ra(1, 0); ra(1, 1)
        rb(1, 0); rb(1, 1)
        out.append(f"ds_read_b128 {v(fs['XH'],4)}, v{aH}")
        rb(2, 0); rb(2, 1)
        return out
    def mfmas(f, hf, first=False):
        out = []
        fs = F[f]
        def m(d, x, y): out.append(f"v_mfma_f32_16x16x32_bf16 {v(d,4)}, {v(x,4)}, {v(y,4)}, {'0' if first else v(d,4)}")
        for par in range(2):
            for b in range(2):
                for db in range(2):
                    m(QT[par][b][db], fs['WB'][0][db], fs['XA'][par][b])
        for par in range(2):
            for b in range(2):
                for db in range(2):
                    m(KT[par][b][db], fs['WB'][1][db], fs['XA'][par][b])
        if hf == 0:
            for db in range(2): m(HH[db], fs['WB'][1][db], fs['XH'])
        for par in range(2):
            for b in range(2):
                for db in range(2):
                    m(VV[par][b][db], fs['XA'][par][b], fs['WB'][2][db])
        if hf == 1:
            for db in range(2): m(HH[db], fs['XH'], fs['WB'][2][db])
        return out
    if opt.get('rbpos', 1) == 0: wpfB()
    a("s_waitcnt lgkmcnt(0)")
    a("s_barrier")
    st.stamp(8)
    if opt.get('stamp'): a("s_waitcnt lgkmcnt(0)")
    for l in reads(0, 0, bA[0], bH[0], bB): a(l)
    if opt.get('rbpos', 1) == 1: wpfB()
    a(f"""
    v_mov_b32 v{cA[1]}, v{bA[1]}
    v_mov_b32 v{cH[1]}, v{bH[1]}
    v_mov_b32 v{cB[0]}, v{bB[0]}
    v_mov_b32 v{cB[1]}, v{bB[1]}
    s_mov_b32 s{sStg}, 0
    s_mov_b32 s{sCnt}, 0
    s_waitcnt lgkmcnt(0)
    s_cmp_eq_u32 s{sHF}, 0
    s_cbranch_scc0 {L('first1')}
    """)
    P = Regs(fr0, frN, 'pk')
    Qp = [[P.alloc(4, 4) for b in range(2)] for par in range(2)]
    Kp = [[P.alloc(4, 4) for sl in range(3)] for par in range(2)]
    Vp = [[P.alloc(6, 2) for db in range(2)] for par in range(2)]
    VHp = P.alloc(4, 2)
    def pk(d, src):
        a(f"v_cvt_pk_bf16_f32 v{d}, v{src}, v{src+1}")
        a(f"v_cvt_pk_bf16_f32 v{d+1}, v{src+2}, v{src+3}")
    upd = [f"s_add_u32 s{sStg}, s{sStg}, {STAGE}",
           f"s_cmp_eq_u32 s{sStg}, {3*STAGE}",
           f"s_cselect_b32 s{sStg}, 0, s{sStg}"]
    upd2 = [f"v_add_u32 v{cA[0]}, s{sStg}, v{bA[0]}",
            f"v_add_u32 v{cH[0]}, s{sStg}, v{bH[0]}",
            f"v_add_u32 v{cB[0]}, s{sStg}, v{bB[0]}",
            f"v_add_u32 v{cB[1]}, s{sStg}, v{bB[1]}",
            f"v_add_u32 v{cA[1]}, s{sStg}, v{bA[1]}",
            f"v_add_u32 v{cH[1]}, s{sStg}, v{bH[1]}"]
    for hf in range(2):
        a.label(L(f'first{hf}'))
        for l in interleave(mfmas(0, hf, True), reads(1, 1, cA[1], cH[1], cB) + upd + upd2): a(l)
        a(f"s_branch {L(f'mid{hf}')}")
        a.label(L(f'loop{hf}'))
        for l in interleave(mfmas(0, hf), reads(1, 1, cA[1], cH[1], cB) + upd + upd2): a(l)
        a.label(L(f'mid{hf}'))
        a("s_waitcnt lgkmcnt(0)")
        a("s_barrier")
        for l in interleave(mfmas(1, hf), reads(0, 0, cA[0], cH[0], cB) + [f"s_add_u32 s{sCnt}, s{sCnt}, 1", f"s_cmp_lt_u32 s{sCnt}, 16"]): a(l)
        a(f"""
        s_waitcnt lgkmcnt(0)
        s_cbranch_scc1 {L(f'loop{hf}')}
        """)
        st.stamp(9)
        if hf == 0:
            for par in range(2):
                for db in range(2):
                    pk(Kp[par][2] + 2*db, KT[par][1][db])
                a(f"ds_write_b128 v{vLane16}, {v(Kp[par][2],4)} offset:{par*1024}")
            for par in range(2):
                for db in range(2):
                    pk(Vp[par][db] + 4, VV[par][1][db])
                    a(f"ds_write_b64 v{vLane8}, {v(Vp[par][db]+4,2)} offset:{2048 + (par*2+db)*512}")
            for par in range(2):
                for db in range(2):
                    pk(Kp[par][0] + 2*db, HH[db])
        else:
            for par in range(2):
                for db in range(2):
                    pk(Kp[par][2] + 2*db, KT[par][1][db])
            for db in range(2):
                pk(VHp + 2*db, HH[db])
                a(f"ds_write_b64 v{vLane8}, {v(VHp+2*db,2)} offset:{4096 + db*512}")
            for par in range(2):
                for db in range(2):
                    pk(Vp[par][db] + 4, VV[par][1][db])
        for par in range(2):
            for db in range(2):
                pk(Kp[par][1] + 2*db, KT[par][0][db])
                for b in range(2):
                    pk(Qp[par][b] + 2*db, QT[par][b][db])
        a("s_waitcnt lgkmcnt(0)")
        a("s_barrier")
        if hf == 0:
            for par in range(2):
                for db in range(2):
                    a(f"ds_read_b64 {v(Vp[par][db],2)}, v{vLane8} offset:{4096 + db*512}")
            a(f"s_branch {L('attn')}")
        else:
            for par in range(2):
                a(f"ds_read_b128 {v(Kp[par][0],4)}, v{vLane16} offset:{par*1024}")
            for par in range(2):
                for db in range(2):
                    a(f"ds_read_b64 {v(Vp[par][db],2)}, v{vLane8} offset:{2048 + (par*2+db)*512}")
    a.label(L('attn'))
    A = Regs(acc0, VV[0][0][0], 'acc')
    combos = [(par, b) for par in range(2) for b in range(2)]
    Sp = {c: A.alloc(4, 4) for c in combos}
    Sc = {c: A.alloc(4, 4) for c in combos}
    Pp = {c: A.alloc(4, 4) for c in combos}
    mx = {c: A.alloc() for c in combos}
    tt = {c: A.alloc() for c in combos}
    OT = {(par, b): VV[par][b] for (par, b) in combos}
    for (par, b) in combos:
        a.mfma(Sc[(par, b)], Kp[par][b+1], Qp[par][b], biasCur)
    for par in range(2):
        a.mfma(Sp[(par, 1)], Kp[par][1], Qp[par][1], biasPrev)
    for par in range(2):
        for db in range(2):
            pk(Vp[par][db] + 2, VV[par][0][db])
    a("s_waitcnt lgkmcnt(4)")
    st.stamp(10)
    for par in range(2):
        a.mfma(Sp[(par, 0)], Kp[par][0], Qp[par][0], biasFirst[par])
    order = [(0, 1), (1, 1), (0, 0), (1, 0)]
    for c in order:
        for r in range(4):
            a(f"v_max_f32 v{Sc[c]+r}, v{Sc[c]+r}, v{Sp[c]+r}")
        for r in range(4):
            a(f"v_cvt_pk_bf16_f32 v{Sc[c]+r}, 0, v{Sc[c]+r}")
        for r in range(4):
            a(f"v_mul_f32 v{Sc[c]+r}, s{sScale}, v{Sc[c]+r}")
        for r in range(4):
            a(f"v_cvt_pk_bf16_f32 v{Sc[c]+r}, 0, v{Sc[c]+r}")
        a(f"v_max_f32 v{mx[c]}, v{Sc[c]}, v{Sc[c]+1}")
        a(f"v_max3_f32 v{mx[c]}, v{Sc[c]+2}, v{Sc[c]+3}, v{mx[c]}")
    def allreduce(val, op):
        for sw in ("v_permlane32_swap_b32", "v_permlane16_swap_b32"):
            for c in order: a(f"v_mov_b32 v{tt[c]}, v{val[c]}")
            a("s_nop 0")
            for c in order: a(f"{sw} v{val[c]}, v{tt[c]}")
            for c in order: a(f"{op} v{val[c]}, v{val[c]}, v{tt[c]}")
    allreduce(mx, "v_max_f32")
    for c in order:
        a(f"v_mul_f32 v{mx[c]}, s{sLog2e}, v{mx[c]}")
    for c in order:
        for r in range(4):
            a(f"v_fma_f32 v{Sc[c]+r}, v{Sc[c]+r}, s{sLog2e}, -v{mx[c]}")
        for r in range(4):
            a(f"v_exp_f32 v{Sc[c]+r}, v{Sc[c]+r}")
    a("s_nop 0")
    for c in order:
        a(f"v_add_f32 v{mx[c]}, v{Sc[c]}, v{Sc[c]+1}")
        a(f"v_add_f32 v{tt[c]}, v{Sc[c]+2}, v{Sc[c]+3}")
        a(f"v_add_f32 v{mx[c]}, v{mx[c]}, v{tt[c]}")
    allreduce(mx, "v_add_f32")
    for c in order:
        a(f"v_rcp_f32 v{mx[c]}, v{mx[c]}")
    a("s_waitcnt lgkmcnt(0)")
    st.stamp(11)
    for c in order:
        par, b = c
        for r in range(4):
            a(f"v_mul_f32 v{Sc[c]+r}, v{Sc[c]+r}, v{mx[c]}")
        pk(Sp[c], Sc[c])
        mp = mPrev if b == 1 else mFirst[par]
        a(f"v_and_b32 v{Pp[c]}, v{Sp[c]}, v{mp}")
        a(f"v_and_b32 v{Pp[c]+1}, v{Sp[c]+1}, v{mp+1}")
        a(f"v_and_b32 v{Pp[c]+2}, v{Sp[c]}, v{mCur}")
        a(f"v_and_b32 v{Pp[c]+3}, v{Sp[c]+1}, v{mCur+1}")
        a("s_nop 1")
        for db in range(2):
            a.mfma(OT[c][db], Vp[par][db] + 2*b, Pp[c], None)
    for n, c in enumerate(order):
        par, b = c
        if n == 3: a("s_nop 1")
        o = Sc[c]
        for db in range(2):
            pk(o + 2*db, OT[c][db])
        a("s_nop 1")
        a(f"v_permlane16_swap_b32 v{o}, v{o+2}")
        a(f"v_permlane16_swap_b32 v{o+1}, v{o+3}")
        so = f"s{sRI}" if par == 1 else "0"
        a(f"buffer_store_dwordx4 {v(o,4)}, v{vO}, {s(SRDO,4)}, {so} offen offset:{b*128}{OSC}")
    st.stamp(5); st.stamp(6, True)
    st.dump(12, sWave, 1, 2)
    sp.end(sWS, sWave)
    a.label(L('end'))
    a("s_endpgm")
    return a.text(), max(U.hi, G.hi), 102
```

```python
from asmlib import *
from k1 import WS_O, WS_U, WS_G

K2_STAGE = 24576
K2_NBUF = 6
K2_SPARE = K2_NBUF * K2_STAGE
K2_LDS = K2_SPARE + 16384

def gen_k2(name="k2_kernel", opt=None):
    opt = opt or {}
    a = Asm()
    a.raw(kernel_header(name))
    L = lambda x: f"{name}_{x}"
    sWO, sCS, sSS, sOUT, sWS = 4, 6, 8, 10, 12
    SRDO, SRDWO, SRDCS, SRDSS, SRDU, SRDG, SRDOUT = 16, 20, 24, 28, 32, 36, 40
    sWave, sCP, sCB, sT0, sT1, sT2, sLW, sKA, sKB, sStg, sCnt, sU0 = range(44, 56)
    sCLS, sCH = 56, 57
    a(f"""
    s_cmp_ge_u32 s2, 256
    s_cbranch_scc1 {L('end')}
    s_load_dwordx2 s[4:5], s[0:1], 16
    s_load_dwordx4 s[6:9], s[0:1], 32
    s_load_dwordx2 s[10:11], s[0:1], 72
    s_load_dwordx2 s[12:13], s[0:1], 88
    v_lshrrev_b32 v1, 6, v0
    v_and_b32 v0, 63, v0
    s_nop 0
    v_readfirstlane_b32 s{sWave}, v1
    s_and_b32 s{sT0}, s2, 7
    s_lshr_b32 s{sT1}, s2, 3
    s_and_b32 s{sCP}, s{sT0}, 3
    s_lshl_b32 s{sCP}, s{sCP}, 2
    s_and_b32 s{sT2}, s{sT1}, 3
    s_add_u32 s{sCP}, s{sCP}, s{sT2}
    s_lshr_b32 s{sCB}, s{sT0}, 2
    s_lshl_b32 s{sCB}, s{sCB}, 3
    s_lshr_b32 s{sT2}, s{sT1}, 2
    s_add_u32 s{sCB}, s{sCB}, s{sT2}
    s_waitcnt lgkmcnt(0)
    """.replace("s_load_dwordx4 s[6:9], s[0:1], 32", "s_load_dwordx2 s[6:7], s[0:1], 32\ns_load_dwordx2 s[8:9], s[0:1], 40"))
    a.srd_off(SRDO, sWS, WS_O, 4 << 20)
    a.srd(SRDWO, sWO, 2 << 20)
    a.srd(SRDCS, sCS, 8 << 20)
    a.srd(SRDSS, sSS, 8 << 20)
    a.srd_off(SRDU, sWS, WS_U, 8 << 20)
    a.srd_off(SRDG, sWS, WS_G, 2048 * 4)
    a.srd(SRDOUT, sOUT, 4 << 20)
    st = Stamper(a, 64, 60, opt.get('stamp'))
    st.init(sWS)
    st.stamp(0); st.stamp(1, True)
    a(f"""
    s_cmp_lt_u32 s{sWave}, 4
    s_cbranch_scc1 {L('compute')}
    """)
    V = Regs(1, 256, 'v')
    vLR, vP, vT, vT2 = [V.alloc() for _ in range(4)]
    vA = [V.alloc() for _ in range(4)]
    vY = [V.alloc() for _ in range(4)]
    vB = [V.alloc() for _ in range(2)]
    a(f"""
    s_sub_u32 s{sLW}, s{sWave}, 4
    v_lshrrev_b32 v{vLR}, 3, v0
    v_and_b32 v{vP}, 7, v0
    s_lshl_b32 s{sT0}, s{sCP}, 1
    s_lshr_b32 s{sT1}, s{sLW}, 1
    s_add_u32 s{sT0}, s{sT0}, s{sT1}
    s_and_b32 s{sT1}, s{sLW}, 1
    s_lshl_b32 s{sT1}, s{sT1}, 10
    s_add_u32 s{sT0}, s{sT0}, s{sT1}
    v_lshlrev_b32 v{vT}, 5, v{vLR}
    v_add_u32 v{vT}, s{sT0}, v{vT}
    v_xor_b32 v{vT2}, v{vP}, v{vLR}
    v_lshlrev_b32 v{vT2}, 4, v{vT2}
    v_lshl_add_u32 v{vA[0]}, v{vT}, 11, v{vT2}
    v_lshl_add_u32 v{vY[0]}, v{vT}, 12, v{vT2}
    """)
    for u in range(1, 4):
        a(f"v_add_u32 v{vA[u]}, {u*256*2048 - u*1024}, v{vA[0]}")
        a(f"v_add_u32 v{vY[u]}, {u*256*4096 - u*1024}, v{vY[0]}")
    a(f"""
    s_lshl_b32 s{sT0}, s{sLW}, 4
    v_add_u32 v{vT}, s{sT0}, v{vLR}
    v_lshlrev_b32 v{vT}, 11, v{vT}
    s_lshl_b32 s{sT0}, s{sCB}, 7
    v_add_u32 v{vT}, s{sT0}, v{vT}
    v_and_b32 v{vT2}, 2, v{vLR}
    v_xor_b32 v{vT2}, v{vT2}, v{vP}
    v_lshl_add_u32 v{vB[0]}, v{vT2}, 4, v{vT}
    v_xor_b32 v{vT2}, 4, v{vT2}
    v_lshl_add_u32 v{vB[1]}, v{vT2}, 4, v{vT}
    v_add_u32 v{vB[1]}, {8*2048 - 1024}, v{vB[1]}
    s_lshl_b32 s{sU0}, s{sCP}, 19
    s_lshl_b32 s{sT1}, s{sLW}, 12
    s_lshl_b32 s{sT2}, s{sLW}, 11
    """)
    for y in range(2):
        srd = SRDCS if y == 0 else SRDSS
        a(f"s_add_u32 m0, s{sT1}, {y*K2_STAGE}")
        a("s_nop 0")
        for u in range(4):
            a(f"buffer_load_dwordx4 v{vY[u]}, {s(srd,4)}, 0 offen offset:{u*1024} lds")
        for cls in range(2):
            dst = (y*K2_STAGE + 16384) if cls == 0 else (K2_SPARE + y*8192)
            a(f"s_add_u32 m0, s{sT2}, {dst}")
            a(f"s_add_u32 s{sT0}, s{sU0}, {(cls*2 + y)*131072}")
            for uo in range(2):
                a(f"buffer_load_dwordx4 v{vB[uo]}, {s(SRDU,4)}, s{sT0} offen offset:{uo*1024} lds")
    a(f"""
    s_mov_b32 s{sKA}, 0
    s_mov_b32 s{sKB}, 0
    s_mov_b32 s{sStg}, {2*K2_STAGE}
    s_add_u32 s{sT2}, s{sT2}, 16384
    """)
    def issue_stage():
        a(f"s_add_u32 m0, s{sT1}, s{sStg}")
        a("s_nop 0")
        for u in range(4):
            a(f"buffer_load_dwordx4 v{vA[u]}, {s(SRDO,4)}, s{sKA} offen offset:{u*1024} lds")
        a(f"s_add_u32 m0, s{sT2}, s{sStg}")
        a(f"s_add_u32 s{sKA}, s{sKA}, 128")
        for uo in range(2):
            a(f"buffer_load_dwordx4 v{vB[uo]}, {s(SRDWO,4)}, s{sKB} offen offset:{uo*1024} lds")
        a(f"""
        s_add_u32 s{sKB}, s{sKB}, {64*2048}
        s_add_u32 s{sStg}, s{sStg}, {K2_STAGE}
        s_cmp_eq_u32 s{sStg}, {K2_NBUF*K2_STAGE}
        s_cselect_b32 s{sStg}, 0, s{sStg}
        """)
    for _ in range(4):
        issue_stage()
    st.stamp(2)
    a("s_waitcnt vmcnt(32)")
    st.stamp(3)
    a("s_barrier")
    a("s_waitcnt vmcnt(24)")
    a("s_barrier")
    issue_stage()
    a(f"s_mov_b32 s{sCnt}, 1")
    a.label(L('lloop'))
    a("s_waitcnt vmcnt(24)")
    a("s_barrier")
    issue_stage()
    a(f"""
    s_add_u32 s{sCnt}, s{sCnt}, 1
    s_cmp_lt_u32 s{sCnt}, 12
    s_cbranch_scc1 {L('lloop')}
    """)
    for st_ in range(12, 18):
        rem = max(0, 17 - (st_ + 1))
        a(f"s_waitcnt vmcnt({6*rem})")
        a("s_barrier")
    st.stamp(4)
    st.stamp(5); st.stamp(6, True)
    st.dump(7, sWave, 1, 2)
    a(f"s_branch {L('end')}")
    a.label(L('compute'))
    V = Regs(1, 256, 'v')
    vI, vG, vR, vC, vT, vT2 = [V.alloc() for _ in range(6)]
    bA = [V.alloc(), V.alloc()]; bB = [V.alloc(), V.alloc()]
    cA = [V.alloc(), V.alloc()]; cB = [V.alloc(), V.alloc()]
    yB = [V.alloc(), V.alloc()]
    vOut = V.alloc()
    gv = V.alloc(4); og = V.alloc(4)
    accA = [[V.alloc(4, 4) for db in range(2)] for rb in range(4)]
    accY = [[V.alloc(4, 4) for db in range(2)] for rb in range(4)]
    F = [dict(XA=[V.alloc(4, 4) for rb in range(4)], WB=[V.alloc(4, 4) for db in range(2)]) for f in range(2)]
    a(f"""
    s_lshr_b32 s{sCLS}, s{sWave}, 1
    s_and_b32 s{sCH}, s{sWave}, 1
    v_and_b32 v{vI}, 15, v0
    v_lshrrev_b32 v{vG}, 4, v0
    v_lshrrev_b32 v{vR}, 2, v{vI}
    v_and_b32 v{vC}, 3, v{vI}
    s_lshl_b32 s{sT0}, s{sCP}, 1
    s_add_u32 s{sT0}, s{sT0}, s{sCLS}
    v_lshlrev_b32 v{vT}, 5, v{vI}
    v_add_u32 v{vT}, s{sT0}, v{vT}
    v_lshlrev_b32 v{vT2}, 2, v{vT}
    """)
    for rb in range(4):
        if rb < 2:
            a(f"buffer_load_dword v{gv+rb}, v{vT2}, {s(SRDG,4)}, 0 offen offset:{rb*2048}")
        else:
            a(f"s_mov_b32 s{sT1}, {rb*2048}")
            a(f"buffer_load_dword v{gv+rb}, v{vT2}, {s(SRDG,4)}, s{sT1} offen")
    a(f"""
    v_lshlrev_b32 v{vOut}, 11, v{vT}
    v_lshl_add_u32 v{vOut}, v{vG}, 3, v{vOut}
    s_lshl_b32 s{sT0}, s{sCB}, 7
    s_lshl_b32 s{sT1}, s{sCH}, 6
    s_add_u32 s{sT0}, s{sT0}, s{sT1}
    v_add_u32 v{vOut}, s{sT0}, v{vOut}
    v_and_b32 v{vT}, 7, v{vI}
    v_xor_b32 v{vT}, v{vT}, v{vG}
    v_lshlrev_b32 v{vT}, 4, v{vT}
    v_lshl_add_u32 v{bA[0]}, v{vI}, 7, v{vT}
    s_lshl_b32 s{sT0}, s{sCLS}, 13
    v_add_u32 v{bA[0]}, s{sT0}, v{bA[0]}
    v_xor_b32 v{bA[1]}, 64, v{bA[0]}
    v_lshl_add_u32 v{bB[0]}, v{vG}, 3, v{vR}
    v_lshlrev_b32 v{bB[0]}, 7, v{bB[0]}
    v_and_b32 v{vT}, 1, v{vG}
    v_lshlrev_b32 v{vT}, 2, v{vT}
    v_and_b32 v{vT2}, 2, v{vR}
    v_or_b32 v{vT}, v{vT}, v{vT2}
    v_lshrrev_b32 v{vT2}, 1, v{vC}
    s_lshl_b32 s{sT0}, s{sCH}, 2
    v_add_u32 v{vT2}, s{sT0}, v{vT2}
    v_xor_b32 v{vT}, v{vT}, v{vT2}
    v_lshl_add_u32 v{bB[0]}, v{vT}, 4, v{bB[0]}
    v_and_b32 v{vT}, 1, v{vC}
    v_lshl_add_u32 v{bB[0]}, v{vT}, 3, v{bB[0]}
    v_xor_b32 v{bB[1]}, 32, v{bB[0]}
    s_cmp_eq_u32 s{sCLS}, 0
    s_mov_b32 s{sT0}, {K2_SPARE}
    s_mov_b32 s{sT1}, 8192
    s_cselect_b32 s{sT0}, 16384, s{sT0}
    s_cselect_b32 s{sT1}, {K2_STAGE}, s{sT1}
    v_add_u32 v{yB[0]}, s{sT0}, v{bB[0]}
    v_add_u32 v{yB[1]}, s{sT0}, v{bB[1]}
    v_add_u32 v{bB[0]}, 16384, v{bB[0]}
    v_add_u32 v{bB[1]}, 16384, v{bB[1]}
    """)
    for rb in range(4):
        for db in range(2):
            for r in range(4):
                a(f"v_mov_b32 v{accA[rb][db]+r}, 0")
                a(f"v_mov_b32 v{accY[rb][db]+r}, 0")
    def reads(f, kh, aA, aB):
        out = []
        fs = F[f]
        for db in range(2):
            for half in range(2):
                out.append(f"ds_read_b64_tr_b16 {v(fs['WB'][db]+2*half,2)}, v{aB[db]} offset:{kh*4096 + half*512}")
            if db == 0:
                out.append(f"ds_read_b128 {v(fs['XA'][0],4)}, v{aA}")
        for rb in range(1, 4):
            out.append(f"ds_read_b128 {v(fs['XA'][rb],4)}, v{aA} offset:{rb*2048}")
        return out
    def mfmas(f, acc):
        fs = F[f]
        return [f"v_mfma_f32_16x16x32_bf16 {v(acc[rb][db],4)}, {v(fs['WB'][db],4)}, {v(fs['XA'][rb],4)}, {v(acc[rb][db],4)}"
                for rb in range(4) for db in range(2)]
    def il2(main, fill):
        out = []
        fi = 0
        for m in main:
            out.append(m)
            for _ in range(2):
                if fi < len(fill):
                    out.append(fill[fi]); fi += 1
        return out
    st.stamp(2)
    a("s_barrier")
    st.stamp(3)
    for l in reads(0, 0, bA[0], yB): a(l)
    a("s_waitcnt lgkmcnt(0)")
    for l in il2(mfmas(0, accY), reads(1, 1, bA[1], yB)): a(l)
    a(f"""
    v_add_u32 v{cA[0]}, {K2_STAGE}, v{bA[0]}
    v_add_u32 v{cA[1]}, {K2_STAGE}, v{bA[1]}
    v_add_u32 v{yB[0]}, s{sT1}, v{yB[0]}
    v_add_u32 v{yB[1]}, s{sT1}, v{yB[1]}
    s_waitcnt lgkmcnt(0)
    s_barrier
    """)
    for l in il2(mfmas(1, accY), reads(0, 0, cA[0], yB)): a(l)
    a("s_waitcnt lgkmcnt(0)")
    for l in il2(mfmas(0, accY), reads(1, 1, cA[1], yB)): a(l)
    a(f"""
    s_mov_b32 s{sStg}, {2*K2_STAGE}
    v_add_u32 v{cA[0]}, s{sStg}, v{bA[0]}
    v_add_u32 v{cA[1]}, s{sStg}, v{bA[1]}
    v_add_u32 v{cB[0]}, s{sStg}, v{bB[0]}
    v_add_u32 v{cB[1]}, s{sStg}, v{bB[1]}
    s_waitcnt lgkmcnt(0)
    s_barrier
    """)
    for l in il2(mfmas(1, accY), reads(0, 0, cA[0], cB)): a(l)
    a(f"s_mov_b32 s{sCnt}, 0")
    a("s_waitcnt lgkmcnt(0)")
    a.label(L('cloop'))
    for l in il2(mfmas(0, accA), reads(1, 1, cA[1], cB)): a(l)
    a(f"""
    s_add_u32 s{sStg}, s{sStg}, {K2_STAGE}
    s_cmp_eq_u32 s{sStg}, {K2_NBUF*K2_STAGE}
    s_cselect_b32 s{sStg}, 0, s{sStg}
    v_add_u32 v{cA[0]}, s{sStg}, v{bA[0]}
    v_add_u32 v{cA[1]}, s{sStg}, v{bA[1]}
    v_add_u32 v{cB[0]}, s{sStg}, v{bB[0]}
    v_add_u32 v{cB[1]}, s{sStg}, v{bB[1]}
    s_waitcnt lgkmcnt(0)
    s_barrier
    """)
    for l in il2(mfmas(1, accA), reads(0, 0, cA[0], cB)): a(l)
    a(f"""
    s_add_u32 s{sCnt}, s{sCnt}, 1
    s_cmp_lt_u32 s{sCnt}, 16
    s_waitcnt lgkmcnt(0)
    s_cbranch_scc1 {L('cloop')}
    s_waitcnt vmcnt(0)
    """)
    st.stamp(4)
    for rb in range(4):
        a(f"v_sub_f32 v{og+rb}, 1.0, v{gv+rb}")
        a(f"v_cvt_pk_bf16_f32 v{og+rb}, 0, v{og+rb}")
    a("s_nop 7")
    for rb in range(4):
        if rb:
            a(f"s_mov_b32 s{sT0}, {rb*512*2048}")
        for db in range(2):
            A_, Y_ = accA[rb][db], accY[rb][db]
            for r in range(4):
                a(f"v_cvt_pk_bf16_f32 v{A_+r}, 0, v{A_+r}")
                a(f"v_cvt_pk_bf16_f32 v{Y_+r}, 0, v{Y_+r}")
                a(f"v_mul_f32 v{A_+r}, v{A_+r}, v{gv+rb}")
                a(f"v_mul_f32 v{Y_+r}, v{Y_+r}, v{og+rb}")
                a(f"v_cvt_pk_bf16_f32 v{A_+r}, 0, v{A_+r}")
                a(f"v_cvt_pk_bf16_f32 v{Y_+r}, 0, v{Y_+r}")
                a(f"v_add_f32 v{A_+r}, v{A_+r}, v{Y_+r}")
            a(f"v_cvt_pk_bf16_f32 v{Y_}, v{A_}, v{A_+1}")
            a(f"v_cvt_pk_bf16_f32 v{Y_+1}, v{A_+2}, v{A_+3}")
            so = f"s{sT0}" if rb else "0"
            a(f"buffer_store_dwordx2 {v(Y_,2)}, v{vOut}, {s(SRDOUT,4)}, {so} offen offset:{db*32}")
    st.stamp(5); st.stamp(6, True)
    st.dump(7, sWave, 1, 2)
    a.label(L('end'))
    a("s_endpgm")
    return a.text(), V.hi, 102
```

```python
from asmlib import *
from k1n import WS_O, WS_U, WS_G

STAGE = 24576
NBUF = 6
K2_LDS = NBUF * STAGE

def gen_k2(name="k2_kernel", opt=None):
    opt = opt or {}
    a = Asm()
    a.raw(kernel_header(name))
    L = lambda x: f"{name}_{x}"
    sWO, sOUT, sWS = 4, 6, 8
    SRDO, SRDWO, SRDU, SRDG, SRDOUT = 12, 16, 20, 24, 28
    sWave, sCP, sCB, sT0, sT1, sT2, sLW, sStg, sCnt, sU0, sCLS, sCH, sMA, sMB_, sKC = range(32, 47)
    st = Stamper(a, 76, 72, opt.get('stamp'))
    sp = Span(a, opt.get('span'), 65536)
    sp.start()
    a(f"""
    s_cmp_ge_u32 s2, 256
    s_cbranch_scc1 {L('end')}
    s_load_dwordx2 s[4:5], s[0:1], 16
    s_load_dwordx2 s[6:7], s[0:1], 72
    s_load_dwordx2 s[8:9], s[0:1], 88
    v_lshrrev_b32 v1, 6, v0
    v_and_b32 v0, 63, v0
    s_and_b32 s{sT0}, s2, 7
    v_readfirstlane_b32 s{sWave}, v1
    s_lshr_b32 s{sT1}, s2, 3
    """)
    if opt.get('tile', 2) == 2:
        a(f"""
        s_lshl_b32 s{sCP}, s{sT0}, 1
        s_and_b32 s{sT2}, s{sT1}, 1
        s_add_u32 s{sCP}, s{sCP}, s{sT2}
        s_lshr_b32 s{sCB}, s{sT1}, 1
        """)
    else:
        a(f"""
        s_and_b32 s{sCP}, s{sT0}, 3
        s_lshl_b32 s{sCP}, s{sCP}, 2
        s_and_b32 s{sT2}, s{sT1}, 3
        s_add_u32 s{sCP}, s{sCP}, s{sT2}
        s_lshr_b32 s{sCB}, s{sT0}, 2
        s_lshl_b32 s{sCB}, s{sCB}, 3
        s_lshr_b32 s{sT2}, s{sT1}, 2
        s_add_u32 s{sCB}, s{sCB}, s{sT2}
        """)
    a(f"""
    s_cmp_lt_u32 s{sWave}, 4
    s_cbranch_scc1 {L('compute')}
    """)
    V = Regs(1, 256, 'v')
    vLR, vP, vT, vT2 = [V.alloc() for _ in range(4)]
    vA = V.alloc()
    vY = [V.alloc() for _ in range(4)]
    vB = [V.alloc() for _ in range(2)]
    a(f"""
    s_sub_u32 s{sLW}, s{sWave}, 4
    v_lshrrev_b32 v{vLR}, 3, v0
    v_and_b32 v{vP}, 7, v0
    s_lshl_b32 s{sT0}, s{sCP}, 1
    s_lshr_b32 s{sT1}, s{sLW}, 1
    s_add_u32 s{sT0}, s{sT0}, s{sT1}
    s_and_b32 s{sT1}, s{sLW}, 1
    s_lshl_b32 s{sT2}, s{sT0}, 18
    s_lshl_b32 s{sU0}, s{sT1}, 16
    s_add_u32 s{sT2}, s{sT2}, s{sU0}
    s_lshl_b32 s{sU0}, s{sCB}, 7
    s_add_u32 s{sT2}, s{sT2}, s{sU0}
    v_lshlrev_b32 v{vT}, 11, v{vLR}
    v_add_u32 v{vT}, s{sT2}, v{vT}
    v_and_b32 v{vT2}, 2, v{vLR}
    v_xor_b32 v{vT2}, v{vT2}, v{vP}
    v_lshl_add_u32 v{vY[0]}, v{vT2}, 4, v{vT}
    v_xor_b32 v{vT2}, 4, v{vT2}
    v_lshl_add_u32 v{vY[1]}, v{vT2}, 4, v{vT}
    v_add_u32 v{vY[1]}, {8*2048 - 1024}, v{vY[1]}
    v_add_u32 v{vY[2]}, {16*2048 - 2048}, v{vY[0]}
    v_add_u32 v{vY[3]}, {16*2048 - 2048}, v{vY[1]}
    s_lshl_b32 s{sMA}, s{sLW}, 12
    s_lshl_b32 s{sT2}, s{sT0}, 17
    s_lshl_b32 s{sT1}, s{sT1}, 12
    s_add_u32 s{sT2}, s{sT2}, s{sT1}
    v_xor_b32 v{vT2}, v{vP}, v{vLR}
    v_lshlrev_b32 v{vT2}, 4, v{vT2}
    v_lshl_add_u32 v{vA}, v{vLR}, 7, v{vT2}
    v_add_u32 v{vA}, s{sT2}, v{vA}
    s_lshl_b32 s{sT0}, s{sLW}, 4
    v_add_u32 v{vT}, s{sT0}, v{vLR}
    v_lshlrev_b32 v{vT}, 11, v{vT}
    v_add_u32 v{vT}, s{sU0}, v{vT}
    v_and_b32 v{vT2}, 2, v{vLR}
    v_xor_b32 v{vT2}, v{vT2}, v{vP}
    v_lshl_add_u32 v{vB[0]}, v{vT2}, 4, v{vT}
    v_xor_b32 v{vT2}, 4, v{vT2}
    v_lshl_add_u32 v{vB[1]}, v{vT2}, 4, v{vT}
    v_add_u32 v{vB[1]}, {8*2048 - 1024}, v{vB[1]}
    s_lshl_b32 s{sMB_}, s{sLW}, 11
    s_add_u32 s{sMB_}, s{sMB_}, 16384
    s_mov_b32 s{sKC}, {'s%d' % sCB if opt.get('rot', 1) else 0}
    s_waitcnt lgkmcnt(0)
    """)
    a.srd_off(SRDO, sWS, WS_O, 4 << 20)
    a.srd_off(SRDU, sWS, WS_U, 8 << 20)
    a.srd(SRDWO, sWO, 2 << 20)
    st.init(sWS)
    st.stamp(0); st.stamp(1, True)
    NST = 18
    sizes = [4, 4] + [6] * 16
    def issue(stg):
        buf = (stg % NBUF) * STAGE
        if stg < 2:
            a(f"s_add_u32 m0, s{sMA}, {buf}")
            a(f"s_mov_b32 s{sT2}, {131072*stg}")
            for u in range(4):
                a(f"buffer_load_dwordx4 v{vY[u]}, {s(SRDU,4)}, s{sT2} offen offset:{u*1024} lds")
        else:
            a(f"s_add_u32 m0, s{sMA}, {buf}")
            a(f"s_lshl_b32 s{sT0}, s{sKC}, 13")
            for u in range(4):
                a(f"buffer_load_dwordx4 v{vA}, {s(SRDO,4)}, s{sT0} offen offset:{u*1024} lds")
            a(f"s_add_u32 m0, s{sMB_}, {buf}")
            a(f"s_lshl_b32 s{sT0}, s{sKC}, 17")
            for uo in range(2):
                a(f"buffer_load_dwordx4 v{vB[uo]}, {s(SRDWO,4)}, s{sT0} offen offset:{uo*1024} lds")
            a(f"s_add_u32 s{sKC}, s{sKC}, 1")
            a(f"s_and_b32 s{sKC}, s{sKC}, 15")
    LA0 = opt.get('la0', 2); LAMAX = opt.get('lamax', 2); RAMP = opt.get('ramp', 2)
    issued = 0
    for b in range(NST):
        tgt = LA0 if b == 0 else min(issued + RAMP, b + 1 + LAMAX, max(b - 2, -1) + NBUF + 1)
        tgt = min(tgt, NST)
        while issued < tgt:
            issue(issued); issued += 1
        assert issued > b
        out = sum(sizes[b + 1:issued])
        if b == 0: st.stamp(2)
        if opt.get('stg'):
            a("s_memtime s[92:93]")
        a(f"s_waitcnt vmcnt({out})")
        if b == 0: st.stamp(3)
        if opt.get('stg'):
            a("s_memtime s[94:95]")
        a("s_barrier")
        if opt.get('stg'):
            a("s_memtime s[96:97]")
            a("s_waitcnt lgkmcnt(0)")
            a(f"v_writelane_b32 v30, s92, {b}")
            a(f"v_writelane_b32 v31, s94, {b}")
            a(f"v_writelane_b32 v32, s96, {b}")
    st.stamp(4); st.stamp(5); st.stamp(6, True)
    st.dump(7, sWave, 1, 2)
    if opt.get('stg'):
        a(f"""
        s_lshl_b32 s100, s100, 2
        v_lshlrev_b32 v2, 2, v0
        v_add_u32 v2, s100, v2
        s_mov_b32 s99, {256<<10}
        s_mov_b64 exec, 0xffffffff
        buffer_store_dword v30, v2, s[72:75], s99 offen
        buffer_store_dword v31, v2, s[72:75], s99 offen offset:128
        buffer_store_dword v32, v2, s[72:75], s99 offen offset:256
        s_mov_b64 exec, -1
        """)
    sp.end(sWS, sWave)
    a(f"s_branch {L('end')}")
    a.label(L('compute'))
    V = Regs(1, 256, 'v')
    vI, vG, vR, vC, vT, vT2 = [V.alloc() for _ in range(6)]
    bA = [V.alloc(), V.alloc()]; bB = [V.alloc(), V.alloc()]
    cA = [V.alloc(), V.alloc()]; cB = [V.alloc(), V.alloc()]
    yB = [V.alloc(), V.alloc()]
    vOut = V.alloc(); kf = V.alloc(); tf = V.alloc(4)
    gv = V.alloc(4); og = V.alloc(4)
    tmp = V.alloc(24, 4)
    accA = [[V.alloc(4, 4) for db in range(2)] for rb in range(4)]
    accY = [[V.alloc(4, 4) for db in range(2)] for rb in range(4)]
    F = [dict(XA=[[V.alloc(4, 4) for rb in range(4)] for kh in range(2)],
              WB=[[V.alloc(4, 4) for db in range(2)] for kh in range(2)]) for f in range(2)]
    CT = [F[0]['XA'], F[1]['XA']]
    a(f"""
    s_lshr_b32 s{sCLS}, s{sWave}, 1
    s_and_b32 s{sCH}, s{sWave}, 1
    v_and_b32 v{vI}, 15, v0
    v_lshrrev_b32 v{vG}, 4, v0
    v_lshrrev_b32 v{vR}, 2, v{vI}
    v_and_b32 v{vC}, 3, v{vI}
    s_lshl_b32 s{sT0}, s{sCP}, 1
    s_add_u32 s{sT0}, s{sT0}, s{sCLS}
    v_lshlrev_b32 v{vT}, 5, v{vI}
    v_add_u32 v{vT}, s{sT0}, v{vT}
    v_lshlrev_b32 v{vT2}, 2, v{vT}
    s_waitcnt lgkmcnt(0)
    """)
    a.srd_off(SRDG, sWS, WS_G, 2048 * 4)
    a.srd(SRDOUT, sOUT, 4 << 20)
    st.init(sWS)
    st.stamp(0); st.stamp(1, True)
    a(f"s_mov_b32 s{sT1}, 4096")
    for rb in range(4):
        so = "0" if rb < 2 else f"s{sT1}"
        a(f"buffer_load_dword v{gv+rb}, v{vT2}, {s(SRDG,4)}, {so} offen offset:{(rb&1)*2048}")
    a(f"""
    v_cvt_f32_u32 v{tf}, v{vT}
    v_mul_f32 v{tf}, {f32bits(1/2048)}, v{tf}
    v_add_f32 v{tf+1}, {f32bits(0.25)}, v{tf}
    v_add_f32 v{tf+2}, 0.5, v{tf}
    v_add_f32 v{tf+3}, {f32bits(0.75)}, v{tf}
    v_lshlrev_b32 v{kf}, 3, v{vG}
    v_cvt_f32_u32 v{kf}, v{kf}
    v_lshlrev_b32 v{vOut}, 11, v{vT}
    v_and_b32 v{vT2}, 1, v{vG}
    v_lshl_add_u32 v{vOut}, v{vT2}, 5, v{vOut}
    v_lshrrev_b32 v{vT2}, 1, v{vG}
    v_lshl_add_u32 v{vOut}, v{vT2}, 4, v{vOut}
    s_lshl_b32 s{sT0}, s{sCB}, 7
    s_lshl_b32 s{sT1}, s{sCH}, 6
    s_add_u32 s{sT0}, s{sT0}, s{sT1}
    v_add_u32 v{vOut}, s{sT0}, v{vOut}
    v_and_b32 v{vT}, 7, v{vI}
    v_xor_b32 v{vT}, v{vT}, v{vG}
    v_lshlrev_b32 v{vT}, 4, v{vT}
    v_lshl_add_u32 v{bA[0]}, v{vI}, 7, v{vT}
    s_lshl_b32 s{sT2}, s{sCLS}, 13
    v_add_u32 v{bA[0]}, s{sT2}, v{bA[0]}
    v_xor_b32 v{bA[1]}, 64, v{bA[0]}
    v_lshl_add_u32 v{bB[0]}, v{vG}, 3, v{vR}
    v_lshlrev_b32 v{bB[0]}, 7, v{bB[0]}
    v_and_b32 v{vT}, 1, v{vG}
    v_lshlrev_b32 v{vT}, 2, v{vT}
    v_and_b32 v{vT2}, 2, v{vR}
    v_or_b32 v{vT}, v{vT}, v{vT2}
    v_lshrrev_b32 v{vT2}, 1, v{vC}
    s_lshl_b32 s{sT0}, s{sCH}, 2
    v_add_u32 v{vT2}, s{sT0}, v{vT2}
    v_xor_b32 v{vT}, v{vT}, v{vT2}
    v_lshl_add_u32 v{bB[0]}, v{vT}, 4, v{bB[0]}
    v_and_b32 v{vT}, 1, v{vC}
    v_lshl_add_u32 v{bB[0]}, v{vT}, 3, v{bB[0]}
    v_xor_b32 v{bB[1]}, 32, v{bB[0]}
    v_add_u32 v{yB[0]}, s{sT2}, v{bB[0]}
    v_add_u32 v{yB[1]}, s{sT2}, v{bB[1]}
    v_add_u32 v{bB[0]}, 16384, v{bB[0]}
    v_add_u32 v{bB[1]}, 16384, v{bB[1]}
    """)
    for kh in range(2):
        if kh: a(f"v_add_f32 v{kf}, {f32bits(32.0)}, v{kf}")
        for rb in range(2):
            a(f"v_mul_f32 v{tmp}, v{tf+rb}, v{kf}")
            a(f"v_fract_f32 v{tmp}, v{tmp}")
            for j in range(1, 8):
                a(f"v_add_f32 v{tmp+j}, v{tmp+j-1}, v{tf+rb}")
            for j in range(8):
                a(f"v_cos_f32 v{tmp+8+j}, v{tmp+j}")
            for j in range(8):
                a(f"v_sin_f32_e64 v{tmp+16+j}, -v{tmp+j}")
            for j in range(4):
                a(f"v_cvt_pk_bf16_f32 v{CT[0][kh][rb]+j}, v{tmp+8+2*j}, v{tmp+8+2*j+1}")
                a(f"v_xor_b32 v{CT[0][kh][rb+2]+j}, 0x80000000, v{CT[0][kh][rb]+j}")
            for j in range(4):
                a(f"v_cvt_pk_bf16_f32 v{CT[1][kh][rb]+j}, v{tmp+16+2*j}, v{tmp+16+2*j+1}")
                a(f"v_xor_b32 v{CT[1][kh][rb+2]+j}, 0x80000000, v{CT[1][kh][rb]+j}")
    def readsB(f, kh, aB, extra=0):
        return [f"ds_read_b64_tr_b16 {v(F[f]['WB'][kh][db]+2*half,2)}, v{aB[db]} offset:{kh*4096 + half*512 + extra}"
                for db in range(2) for half in range(2)]
    def reads(f):
        out = []
        for kh in range(2):
            rb_ = readsB(f, kh, cB)
            ra = [f"ds_read_b128 {v(F[f]['XA'][kh][rb],4)}, v{cA[kh]} offset:{rb*2048}" for rb in range(4)]
            out += rb_[:2] + ra[:1] + rb_[2:] + ra[1:]
        return out
    def mfmas(f, acc, first=False):
        fs = F[f]
        return [f"v_mfma_f32_16x16x32_bf16 {v(acc[rb][db],4)}, {v(fs['WB'][kh][db],4)}, {v(fs['XA'][kh][rb],4)}, {'0' if (first and kh == 0) else v(acc[rb][db],4)}"
                for kh in range(2) for rb in range(4) for db in range(2)]
    def il2(main, fill, n=2):
        out = []; fi = 0
        for m in main:
            out.append(m)
            for _ in range(n):
                if fi < len(fill):
                    out.append(fill[fi]); fi += 1
        return out + fill[fi:]
    upd = [f"v_add_u32 v{cA[0]}, s{sStg}, v{bA[0]}", f"v_add_u32 v{cB[0]}, s{sStg}, v{bB[0]}",
           f"v_add_u32 v{cB[1]}, s{sStg}, v{bB[1]}", f"v_add_u32 v{cA[1]}, s{sStg}, v{bA[1]}"]
    supd = [f"s_add_u32 s{sStg}, s{sStg}, {STAGE}", f"s_cmp_eq_u32 s{sStg}, {NBUF*STAGE}", f"s_cselect_b32 s{sStg}, 0, s{sStg}"]
    a(f"s_mov_b32 s{sStg}, {2*STAGE}")
    for l in upd: a(l)
    st.stamp(2)
    a("s_barrier")
    st.stamp(3)
    if opt.get('stamp'): a("s_waitcnt lgkmcnt(0)")
    for l in readsB(0, 0, yB) + readsB(0, 1, yB): a(l)
    a("s_waitcnt lgkmcnt(0)")
    a("s_barrier")
    for l in il2(mfmas(0, accY, True), readsB(1, 0, yB, STAGE) + readsB(1, 1, yB, STAGE)): a(l)
    a("s_waitcnt lgkmcnt(0)")
    a("s_barrier")
    for l in il2(mfmas(1, accY), reads(0) + supd + upd): a(l)
    a("s_waitcnt vmcnt(0)")
    for rb in range(4):
        a(f"v_sub_f32 v{og+rb}, 1.0, v{gv+rb}")
        a(f"v_cvt_pk_bf16_f32 v{og+rb}, 0, v{og+rb}")
    a("s_waitcnt lgkmcnt(0)")
    a("s_barrier")
    ysc = [f"v_mul_f32 v{accY[rb][db]+r}, v{accY[rb][db]+r}, v{og+rb}" for rb in range(4) for db in range(2) for r in range(4)]
    for l in il2(mfmas(0, accA, True), reads(1) + supd + upd + ysc[:9]): a(l)
    for l in ysc[9:]: a(l)
    a(f"s_mov_b32 s{sCnt}, 0")
    a.label(L('cloop'))
    a("s_waitcnt lgkmcnt(0)")
    a("s_barrier")
    for l in il2(mfmas(1, accA), reads(0) + supd + upd): a(l)
    a("s_waitcnt lgkmcnt(0)")
    a("s_barrier")
    for l in il2(mfmas(0, accA), reads(1) + supd + upd + [f"s_add_u32 s{sCnt}, s{sCnt}, 1", f"s_cmp_lt_u32 s{sCnt}, 7"]): a(l)
    a(f"s_cbranch_scc1 {L('cloop')}")
    a("s_waitcnt lgkmcnt(0)")
    for l in mfmas(1, accA): a(l)
    st.stamp(4)
    a("s_nop 1")
    for rb in range(4):
        o = tmp + 4*rb
        for db in range(2):
            A_, Y_ = accA[rb][db], accY[rb][db]
            for r in range(4):
                a(f"v_cvt_pk_bf16_f32 v{A_+r}, 0, v{A_+r}")
            for r in range(4):
                a(f"v_fma_f32 v{A_+r}, v{A_+r}, v{gv+rb}, v{Y_+r}")
            a(f"v_cvt_pk_bf16_f32 v{o+2*db}, v{A_}, v{A_+1}")
            a(f"v_cvt_pk_bf16_f32 v{o+2*db+1}, v{A_+2}, v{A_+3}")
        a(f"s_mov_b32 s{sT0}, {rb*512*2048}")
        a("s_nop 0")
        a(f"v_permlane16_swap_b32 v{o}, v{o+2}")
        a(f"v_permlane16_swap_b32 v{o+1}, v{o+3}")
        a(f"buffer_store_dwordx4 {v(o,4)}, v{vOut}, {s(SRDOUT,4)}, s{sT0} offen")
    st.stamp(5); st.stamp(6, True)
    st.dump(7, sWave, 1, 2)
    sp.end(sWS, sWave)
    a.label(L('end'))
    a("s_endpgm")
    return a.text(), V.hi, 102
```

```python
from asmlib import *
from k1 import WS_O, WS_U, WS_G, LOG2E

KF_CB = 65536
KF_CROW = 2056
KF_LDS = KF_CB + 16 * KF_CROW

def gen_kf(name="kf_kernel", opt=None):
    opt = opt or {}
    a = Asm()
    a.raw(kernel_header(name))
    L = lambda x: f"{name}_{x}"
    sX, sGW, sWS = 4, 6, 8
    SRDX, SRDGW, SRDU, SRDG = 12, 16, 20, 24
    sWave, sS2, sQ, sT0, sT1, sT2, sRI = 28, 29, 30, 31, 32, 33, 34
    a(f"""
    s_cmp_ge_u32 s2, 256
    s_cbranch_scc1 {L('end')}
    s_load_dwordx2 s[4:5], s[0:1], 0
    s_load_dwordx2 s[6:7], s[0:1], 64
    s_load_dwordx2 s[8:9], s[0:1], 88
    v_lshrrev_b32 v1, 6, v0
    v_and_b32 v0, 63, v0
    s_nop 0
    v_readfirstlane_b32 s{sWave}, v1
    s_and_b32 s{sS2}, s2, 63
    s_lshr_b32 s{sQ}, s2, 6
    s_mov_b32 s{sRI}, 131072
    s_waitcnt lgkmcnt(0)
    """)
    a.srd(SRDX, sX, 2048 * 1024 * 2)
    a.srd(SRDGW, sGW, 2048)
    a.srd_off(SRDU, sWS, WS_U, 8 << 20)
    a.srd_off(SRDG, sWS, WS_G, 2048 * 4)
    st = Stamper(a, 64, 60, opt.get('stamp'))
    st.init(sWS)
    st.stamp(0); st.stamp(1, True)
    V = Regs(1, 256, 'v')
    vI, vG, vR, vC, vT, vT2, vT3 = [V.alloc() for _ in range(7)]
    vL = [V.alloc() for _ in range(4)]
    a(f"""
    v_lshrrev_b32 v{vT}, 1, v0
    v_and_b32 v{vT2}, 1, v0
    v_lshlrev_b32 v{vT2}, 4, v{vT2}
    s_and_b32 s{sT0}, s{sWave}, 1
    s_lshl_b32 s{sT0}, s{sT0}, 2
    s_lshl_b32 s{sT1}, s{sWave}, 8
    s_add_u32 s{sT1}, s{sT1}, s{sS2}
    s_lshl_b32 s{sT1}, s{sT1}, 11
    """)
    for rr in range(4):
        a(f"""
        s_add_u32 s{sT2}, s{sT0}, {rr}
        v_xor_b32 v{vT3}, s{sT2}, v{vT}
        v_lshl_add_u32 v{vL[rr]}, v{vT3}, 5, v{vT2}
        s_add_u32 s{sT2}, s{sT1}, {rr*64*2048 - (rr&1)*2048}
        v_add_u32 v{vL[rr]}, s{sT2}, v{vL[rr]}
        """)
    a(f"s_lshl_b32 s{sT0}, s{sWave}, 13")
    for pr in range(2):
        a(f"s_add_u32 m0, s{sT0}, {pr*4096}")
        a("s_nop 0")
        for rr in (2*pr, 2*pr+1):
            for hh in range(2):
                a(f"buffer_load_dwordx4 v{vL[rr]}, {s(SRDX,4)}, 0 offen offset:{(rr&1)*2048 + hh*1024} lds")
    GW = V.alloc(8, 4)
    a(f"""
    v_xor_b32 v{vT}, s{sWave}, v0
    v_lshlrev_b32 v{vT}, 5, v{vT}
    buffer_load_dwordx4 {v(GW,4)}, v{vT}, {s(SRDGW,4)}, 0 offen
    buffer_load_dwordx4 {v(GW+4,4)}, v{vT}, {s(SRDGW,4)}, 0 offen offset:16
    """)
    a(f"""
    v_and_b32 v{vI}, 15, v0
    v_lshrrev_b32 v{vG}, 4, v0
    v_lshrrev_b32 v{vR}, 2, v{vI}
    v_and_b32 v{vC}, 3, v{vI}
    """)
    kkf = [V.alloc() for _ in range(8)]
    a(f"v_lshlrev_b32 v{vT}, 2, v{vG}")
    a(f"v_cvt_f32_u32 v{kkf[0]}, v{vT}")
    for j in range(1, 8):
        kk = j if j < 4 else 16 + (j - 4)
        a(f"v_add_f32 v{kkf[j]}, {f32bits(float(kk))}, v{kkf[0]}")
    ef = [V.alloc(), V.alloc()]
    a(f"""
    v_lshl_add_u32 v{vT}, v{vR}, 3, v{vC}
    v_cvt_f32_u32 v{ef[0]}, v{vT}
    v_add_f32 v{ef[1]}, 4.0, v{ef[0]}
    """)
    B0 = V.alloc(4, 4)
    COS = [V.alloc(4, 4) for _ in range(2)]
    SIN = [V.alloc(4, 4) for _ in range(2)]
    NSIN = [V.alloc(4, 4) for _ in range(2)]
    TWC = [[V.alloc(4) for eb in range(2)] for db2 in range(2)]
    TWS = [[V.alloc(4) for eb in range(2)] for db2 in range(2)]
    tmp = V.alloc(16, 4)
    a(f"""
    v_lshrrev_b32 v{vT}, 1, v{vI}
    s_lshl_b32 s{sT0}, s{sQ}, 3
    v_add_u32 v{vT}, s{sT0}, v{vT}
    v_cvt_f32_u32 v{vT}, v{vT}
    v_mul_f32 v{vT}, {f32bits(1/32)}, v{vT}
    v_and_b32 v{vT2}, 1, v{vI}
    v_cvt_f32_u32 v{vT2}, v{vT2}
    v_mul_f32 v{vT2}, {f32bits(0.25)}, v{vT2}
    """)
    for j in range(8):
        a(f"v_fma_f32 v{tmp+j}, v{vT}, v{kkf[j]}, v{vT2}")
    for j in range(8):
        a(f"v_cos_f32 v{tmp+j}, v{tmp+j}")
    a("s_nop 0")
    for j in range(4):
        a(f"v_cvt_pk_bf16_f32 v{B0+j}, v{tmp+2*j}, v{tmp+2*j+1}")
    for eb in range(2):
        a(f"v_mul_f32 v{vT}, {f32bits(1/32)}, v{ef[eb]}")
        for j in range(8):
            a(f"v_mul_f32 v{tmp+j}, v{vT}, v{kkf[j]}")
        for j in range(8):
            a(f"v_sin_f32 v{tmp+8+j}, v{tmp+j}")
        for j in range(8):
            a(f"v_cos_f32 v{tmp+j}, v{tmp+j}")
        a("s_nop 0")
        for j in range(4):
            a(f"v_cvt_pk_bf16_f32 v{SIN[eb]+j}, v{tmp+8+2*j}, v{tmp+8+2*j+1}")
            a(f"v_cvt_pk_bf16_f32 v{COS[eb]+j}, v{tmp+2*j}, v{tmp+2*j+1}")
            a(f"v_xor_b32 v{NSIN[eb]+j}, 0x80008000, v{SIN[eb]+j}")
    for eb in range(2):
        a(f"v_mul_f32 v{vT}, {f32bits(1/1024)}, v{ef[eb]}")
        for db2 in range(2):
            for r in range(4):
                a(f"v_mul_f32 v{TWC[db2][eb]+r}, v{vT}, v{kkf[4*db2+r]}")
            for r in range(4):
                a(f"v_sin_f32 v{TWS[db2][eb]+r}, v{TWC[db2][eb]+r}")
            for r in range(4):
                a(f"v_cos_f32 v{TWC[db2][eb]+r}, v{TWC[db2][eb]+r}")
    a0 = V.alloc(); aW = [V.alloc(), V.alloc()]; a1 = [V.alloc(), V.alloc()]; aU = V.alloc(); aG = V.alloc()
    a(f"""
    v_lshl_add_u32 v{vT}, v{vG}, 2, v{vR}
    v_lshlrev_b32 v{a0}, 11, v{vT}
    v_and_b32 v{vT2}, 7, v{vT}
    v_lshl_add_u32 v{a0}, v{vT2}, 5, v{a0}
    v_lshl_add_u32 v{a0}, v{vC}, 3, v{a0}
    s_lshl_b32 s{sT0}, s{sWave}, 8
    v_add_u32 v{a0}, s{sT0}, v{a0}
    v_mul_u32_u24 v{aW[0]}, {KF_CROW}, v{vI}
    v_lshl_add_u32 v{aW[0]}, v{vG}, 3, v{aW[0]}
    s_and_b32 s{sT1}, s{sWave}, 1
    s_lshl_b32 s{sT1}, s{sT1}, 5
    s_add_u32 s{sT0}, s{sT0}, {KF_CB}
    s_add_u32 s{sT2}, s{sT0}, s{sT1}
    s_xor_b32 s{sT1}, s{sT1}, 32
    s_add_u32 s{sT1}, s{sT0}, s{sT1}
    v_add_u32 v{aW[1]}, s{sT1}, v{aW[0]}
    v_add_u32 v{aW[0]}, s{sT2}, v{aW[0]}
    v_lshlrev_b32 v{a1[0]}, 6, v{vT}
    v_lshl_add_u32 v{a1[0]}, v{vC}, 3, v{a1[0]}
    v_and_b32 v{vT2}, 1, v{vG}
    v_lshl_add_u32 v{a1[0]}, v{vT2}, 5, v{a1[0]}
    v_xor_b32 v{a1[1]}, 32, v{a1[0]}
    s_mul_i32 s{sT0}, s{sWave}, {2*KF_CROW}
    s_add_u32 s{sT0}, s{sT0}, {KF_CB}
    v_add_u32 v{a1[0]}, s{sT0}, v{a1[0]}
    v_add_u32 v{a1[1]}, s{sT0}, v{a1[1]}
    s_lshl_b32 s{sT0}, s{sQ}, 3
    s_add_u32 s{sT0}, s{sT0}, s{sWave}
    s_lshl_b32 s{sT1}, s{sT0}, 7
    s_add_u32 s{sT1}, s{sT1}, s{sS2}
    s_lshl_b32 s{sT1}, s{sT1}, 11
    v_lshl_add_u32 v{aU}, v{vR}, 3, v{vC}
    v_lshlrev_b32 v{aU}, 6, v{aU}
    v_lshl_add_u32 v{aU}, v{vG}, 4, v{aU}
    v_add_u32 v{aU}, s{sT1}, v{aU}
    s_lshl_b32 s{sT1}, s{sT0}, 11
    v_lshlrev_b32 v{aG}, 5, v0
    v_add_u32 v{aG}, s{sT1}, v{aG}
    s_lshl_b32 s{sT2}, s{sT0}, 6
    s_add_u32 s{sT2}, s{sT2}, s{sS2}
    s_lshl_b32 s{sT2}, s{sT2}, 2
    """)
    st.stamp(2)
    a("""
    s_waitcnt vmcnt(0)
    s_barrier
    """)
    st.stamp(3)
    a("s_waitcnt lgkmcnt(0)")
    XA = [V.alloc(4, 4) for _ in range(8)]
    D0 = [V.alloc(4, 4) for _ in range(8)]
    GX = V.alloc(8, 4)
    for i in range(8):
        if i == 0:
            ad = a0
        else:
            a(f"v_xor_b32 v{vT}, {i*32}, v{a0}")
            ad = vT
        for half in range(2):
            a(f"ds_read_b64_tr_b16 {v(XA[i]+2*half,2)}, v{ad} offset:{half*32768}")
    a(f"ds_read_b128 {v(GX,4)}, v{aG}")
    a(f"ds_read_b128 {v(GX+4,4)}, v{aG} offset:16")
    for i in range(8):
        a(f"s_waitcnt lgkmcnt({min(15, 2*(7-i)+2)})")
        a.mfma(D0[i], XA[i], B0, None)
    a("s_nop 7")
    for i in range(8):
        a(f"v_cvt_pk_bf16_f32 v{D0[i]}, v{D0[i]}, v{D0[i]+1}")
        a(f"v_cvt_pk_bf16_f32 v{D0[i]+1}, v{D0[i]+2}, v{D0[i]+3}")
        a(f"ds_write_b64 v{aW[i&1]}, {v(D0[i],2)} offset:{(i>>1)*64}")
    acc = V.alloc()
    a(f"v_mov_b32 v{acc}, 0")
    a(f"v_mov_b32 v{vT3}, 0x3f803f80")
    for j in range(8):
        a(f"""
        v_lshlrev_b32 v{tmp}, 16, v{GX+j}
        v_and_b32 v{tmp+1}, 0xffff0000, v{GX+j}
        v_lshlrev_b32 v{tmp+2}, 16, v{GW+j}
        v_and_b32 v{tmp+3}, 0xffff0000, v{GW+j}
        v_mul_f32 v{tmp}, v{tmp}, v{tmp+2}
        v_mul_f32 v{tmp+1}, v{tmp+1}, v{tmp+3}
        v_cvt_pk_bf16_f32 v{tmp+4}, 0, v{tmp}
        v_cvt_pk_bf16_f32 v{tmp+5}, 0, v{tmp+1}
        v_add_f32 v{acc}, v{acc}, v{tmp+4}
        v_add_f32 v{acc}, v{acc}, v{tmp+5}
        """)
    for n in (8, 4, 2, 1):
        a("s_nop 1")
        a(f"v_add_f32_dpp v{acc}, v{acc}, v{acc} row_ror:{n} row_mask:0xf bank_mask:0xf")
    for sw in ("v_permlane32_swap_b32", "v_permlane16_swap_b32"):
        a(f"v_mov_b32 v{tmp}, v{acc}")
        a("s_nop 1")
        a(f"{sw} v{acc}, v{tmp}")
        a("s_nop 1")
        a(f"v_add_f32 v{acc}, v{acc}, v{tmp}")
    a(f"""
    v_cvt_pk_bf16_f32 v{acc}, 0, v{acc}
    v_mul_f32 v{acc}, {f32bits(-1.4426950408889634)}, v{acc}
    v_exp_f32 v{acc}, v{acc}
    s_nop 0
    v_add_f32 v{acc}, 1.0, v{acc}
    v_rcp_f32 v{acc}, v{acc}
    s_nop 0
    v_cvt_pk_bf16_f32 v{acc}, 0, v{acc}
    v_mov_b32 v{tmp}, s{sT2}
    s_mov_b64 exec, 1
    buffer_store_dword v{acc}, v{tmp}, {s(SRDG,4)}, 0 offen
    s_mov_b64 exec, -1
    s_waitcnt lgkmcnt(0)
    s_barrier
    """)
    st.stamp(4)
    a("s_waitcnt lgkmcnt(0)")
    Cf = [[XA[0], XA[1]], [XA[2], XA[3]]]
    for ri in range(2):
        for db2 in range(2):
            for half in range(2):
                a(f"ds_read_b64_tr_b16 {v(Cf[ri][db2]+2*half,2)}, v{a1[db2]} offset:{half*1024 + ri*KF_CROW}")
    Tr = [[D0[0], D0[1]], [D0[2], D0[3]]]
    Ti = [[D0[4], D0[5]], [D0[6], D0[7]]]
    a("s_waitcnt lgkmcnt(4)")
    for db2 in range(2):
        for eb in range(2):
            a.mfma(Tr[db2][eb], Cf[0][db2], COS[eb], None)
            a.mfma(Ti[db2][eb], Cf[0][db2], NSIN[eb], None)
    a("s_waitcnt lgkmcnt(0)")
    for db2 in range(2):
        for eb in range(2):
            a.mfma(Tr[db2][eb], Cf[1][db2], SIN[eb], Tr[db2][eb])
            a.mfma(Ti[db2][eb], Cf[1][db2], COS[eb], Ti[db2][eb])
    a("s_nop 7")
    Ar = [XA[4], XA[5]]; nAi = [XA[6], XA[7]]
    for db2 in range(2):
        for eb in range(2):
            for r in range(4):
                tr, ti, c, sn = Tr[db2][eb]+r, Ti[db2][eb]+r, TWC[db2][eb]+r, TWS[db2][eb]+r
                a(f"v_mul_f32 v{tmp+r}, v{tr}, v{c}")
                a(f"v_mul_f32 v{tmp+4+r}, v{tr}, v{sn}")
                a(f"v_fma_f32 v{tmp+r}, v{ti}, v{sn}, v{tmp+r}")
                a(f"v_fma_f32 v{tmp+4+r}, -v{ti}, v{c}, v{tmp+4+r}")
            for h2 in range(2):
                a(f"v_cvt_pk_bf16_f32 v{Ar[eb]+2*db2+h2}, v{tmp+2*h2}, v{tmp+2*h2+1}")
                a(f"v_cvt_pk_bf16_f32 v{nAi[eb]+2*db2+h2}, v{tmp+4+2*h2}, v{tmp+4+2*h2+1}")
    a("s_nop 1")
    Wr = Tr; nWi = Ti
    for eb in range(2):
        for eb2 in range(2):
            a.mfma(Wr[eb][eb2], Ar[eb], COS[eb2], None)
            a.mfma(nWi[eb][eb2], Ar[eb], SIN[eb2], None)
    for eb in range(2):
        for eb2 in range(2):
            a.mfma(Wr[eb][eb2], nAi[eb], NSIN[eb2], Wr[eb][eb2])
            a.mfma(nWi[eb][eb2], nAi[eb], COS[eb2], nWi[eb][eb2])
    a("s_nop 7")
    k = 0
    for ri, W in enumerate((Wr, nWi)):
        for eb2 in range(2):
            o = XA[k]; k += 1
            for eb in range(2):
                a(f"v_cvt_pk_bf16_f32 v{o+2*eb}, v{W[eb][eb2]}, v{W[eb][eb2]+1}")
                a(f"v_cvt_pk_bf16_f32 v{o+2*eb+1}, v{W[eb][eb2]+2}, v{W[eb][eb2]+3}")
            so = f"s{sRI}" if ri else "0"
            a(f"buffer_store_dwordx4 {v(o,4)}, v{aU}, {s(SRDU,4)}, {so} offen offset:{eb2*256}")
    st.stamp(5); st.stamp(6, True)
    st.dump(7, sWave, 1, 2)
    a.label(L('end'))
    a("s_endpgm")
    return a.text(), V.hi, 102
```

```python
from gen import build, NAME
from asmlib import *
import k1n, k2n
o1 = dict(usc1=1, wpf=2, osc1=1)
t1, v1, s1 = k1n.gen_k1(opt=o1)
t2, v2, s2 = k2n.gen_k2()
K1 = ("k1_kernel", t1, v1, s1, k1n.K1_LDS, 256, 512)
K2 = ("k2_kernel", t2, v2, s2, k2n.K2_LDS, 256, 512)
E = ("e_kernel", kernel_header("e_kernel") + "\n    s_endpgm\n", 8, 16, 0, 1, 64)
open("w_a.s", "w").write(build([K1, K2]))
open("w_b.s", "w").write(build([K1, K2, E]))
txt = build([K1, K2, E])
lines = txt.split("\n")
li = [i for i, l in enumerate(lines) if l.startswith("; @launch")]
a, b, c = [lines[i] for i in li]
lines[li[0]], lines[li[1]], lines[li[2]] = c, a, b
open("w_c.s", "w").write("\n".join(lines))
lines = build([K1, K2]).split("\n")
li = [i for i, l in enumerate(lines) if l.startswith("; @launch")]
lines.insert(li[1] + 1, lines[li[1]])
open("w_d.s", "w").write("\n".join(lines))
lines = build([K1, K2]).split("\n")
lines.insert(li[0] + 1, lines[li[0]])
open("w_e.s", "w").write("\n".join(lines))
```

```python
import sys
from gen import build, NAME
import k1n, k1p, k2n, k2p
def mk(dst, m1, o1, m2, o2):
    t1, v1, s1 = m1.gen_k1(opt=o1)
    t2, v2, s2 = m2.gen_k2(opt=o2)
    ks = [("k1_kernel", t1, v1, s1, m1.K1_LDS, 256, 512), ("k2_kernel", t2, v2, s2, m2.K2_LDS, 256, 512)]
    open(dst, "w").write(build(ks))
    return v1, v2
if __name__ == "__main__":
    k1n.CODE_LINES = 32
    O1 = dict(usc1=1, wpf=2, osc1=1, gatepos=2, span=1)
    mk("v_z.s", k1n, O1, k2n, dict(span=1))
    V = [("a", dict()), ("b", dict(lfirst=0)), ("c", dict(la=3)), ("d", dict(u0=1, y0b=5, y1b=9)), ("e", dict(rot=0)), ("f", dict(u0=3, y0b=8, y1b=10))]
    for nm, o2 in V:
        print(mk(f"v_{nm}.s", k1n, O1, k2p, dict(o2, span=1)))
```

```python
from asmlib import *

WS_O = 0
WS_U = 4 << 20
WS_G = 12 << 20

CH = 10752
STAGE = 4 * CH
XF = STAGE
CB = 3 * STAGE
CROW = 2056
K1_LDS = CB + 16 * CROW
NEG_BIG = f32bits(-1.0e30)
SCALE = f32bits(32 ** -0.5)
LOG2E = f32bits(1.4426950408889634)
CODE_LINES = 30

def gen_k1(name="k1_kernel", opt=None):
    opt = opt or {}
    a = Asm()
    a.raw(kernel_header(name))
    L = lambda x: f"{name}_{x}"
    sX, sW, sWO, sGW, sWS, sPC = 4, 6, 8, 10, 12, 14
    SRDX, SRDW, SRDO, SRDU, SRDP, SRDG, SRDC = 16, 20, 24, 28, 32, 36, 40
    (sWave, sMB, sHP, sM0, sT0, sT1, sT2, sT3, sKA, sKB, sLM, sCnt, sStg, sLW, sH, sHF, sS2, sQ,
     sScale, sLog2e, sRI, sXO, sKI) = range(44, 67)
    sMSK = 68
    st = Stamper(a, 76, 72, opt.get('stamp'))
    sp = Span(a, opt.get('span'), 0)
    sp.start()
    USC = " sc1" if opt.get('usc1', 1) else ""
    OSC = " sc1" if opt.get('osc1', 0) else ""
    FB = 52
    U = Regs(FB, 256, 'fft')
    vI, vG, vR, vC, vT, vT2, vT3 = 1, 2, 3, 4, 5, 6, 7
    DEAD = U.alloc(36, 4)
    kkf = [DEAD + j for j in range(8)]
    B0 = DEAD + 8
    a0 = DEAD + 12; aW = [DEAD + 13, DEAD + 14]; vXL = DEAD + 15
    a0x = [DEAD + 16 + j for j in range(7)]
    ef = [DEAD + 24, DEAD + 25]
    tmpB = DEAD + 28
    tmp0 = U.alloc(8, 4)
    vCP = 51
    a(f"""
    s_cmp_ge_u32 s2, 256
    s_cbranch_scc1 {L('end')}
    s_load_dwordx4 s[4:7], s[0:1], 0
    s_load_dwordx2 s[8:9], s[0:1], 16
    s_load_dwordx2 s[10:11], s[0:1], 64
    s_load_dwordx2 s[12:13], s[0:1], 88
    s_getpc_b64 s[14:15]
    """)
    a.label(L('pc'))
    a(f"""
    v_lshrrev_b32 v1, 6, v0
    v_and_b32 v0, 63, v0
    s_and_b32 s{sS2}, s2, 63
    v_readfirstlane_b32 s{sWave}, v1
    s_lshr_b32 s{sQ}, s2, 6
    s_mov_b32 s{SRDC}, s14
    s_and_b32 s{SRDC+1}, s15, 0xffff
    s_mov_b32 s{SRDC+2}, code_end - {L('pc')}
    s_mov_b32 s{SRDC+3}, 0x00020000
    """)
    def code_pf():
        a(f"""
        s_lshr_b32 s{sT0}, s2, 3
        s_and_b32 s{sT0}, s{sT0}, 7
        s_mul_i32 s{sT0}, s{sT0}, {CODE_LINES*128}
        v_lshlrev_b32 v{vCP}, 7, v0
        s_mov_b64 exec, {(1 << CODE_LINES) - 1}
        buffer_load_dword v{vCP}, v{vCP}, {s(SRDC,4)}, s{sT0} offen
        s_mov_b64 exec, -1
        """)
    CPF = 0 if opt.get('nocpf') else 1
    if CPF:
        a(f"s_cmp_lg_u32 s{sWave}, 7")
        a(f"s_cbranch_scc1 {L('nocpf')}")
        code_pf()
        a.label(L('nocpf'))
    a(f"""
    v_lshrrev_b32 v{vT}, 1, v0
    v_xor_b32 v{vT}, s{sWave}, v{vT}
    v_and_b32 v{vT2}, 1, v0
    v_lshlrev_b32 v{vT2}, 4, v{vT2}
    v_lshl_add_u32 v{vXL}, v{vT}, 5, v{vT2}
    s_waitcnt lgkmcnt(0)
    """)
    a.srd(SRDX, sX, 2048 * 1024 * 2)
    TLB = opt.get('tlb', 0)
    if TLB:
        a.srd(SRDW, sW, 1024 * 3072 * 2)
        a.srd_off(SRDU, sWS, 0, 13 << 20)
        a(f"""
        v_lshlrev_b32 v{vT3}, {TLB}, v0
        s_lshl_b32 s{sT0}, s2, 7
        s_cmp_eq_u32 s{sWave}, 1
        s_cbranch_scc0 {L('ntlb1')}
        buffer_load_dword v{vCP}, v{vT3}, {s(SRDW,4)}, s{sT0} offen
        """)
        a.label(L('ntlb1'))
        a(f"""
        v_lshlrev_b32 v{vT3}, {TLB+1}, v0
        s_cmp_eq_u32 s{sWave}, 2
        s_cbranch_scc0 {L('ntlb2')}
        buffer_load_dword v{vCP}, v{vT3}, {s(SRDU,4)}, s{sT0} offen
        """)
        a.label(L('ntlb2'))
    def xload(n):
        a(f"""
        s_add_u32 s{sT0}, s{sQ}, {n}
        s_and_b32 s{sT0}, s{sT0}, 3
        s_lshl_b32 s{sT0}, s{sT0}, 3
        s_add_u32 s{sT0}, s{sT0}, s{sWave}
        s_lshl_b32 s{sXO}, s{sT0}, 11
        s_add_u32 m0, s{sXO}, {XF}
        s_lshl_b32 s{sXO}, s{sT0}, 6
        s_add_u32 s{sXO}, s{sXO}, s{sS2}
        s_lshl_b32 s{sXO}, s{sXO}, 11
        buffer_load_dwordx4 v{vXL}, {s(SRDX,4)}, s{sXO} offen lds
        buffer_load_dwordx4 v{vXL}, {s(SRDX,4)}, s{sXO} offen offset:1024 lds
        """)
    for n in range(4): xload(n)
    st.init(sWS)
    st.stamp(0); st.stamp(1, True)
    a(f"""
    s_and_b32 s{sT0}, s2, 7
    s_lshr_b32 s{sT1}, s2, 3
    s_and_b32 s{sMB}, s{sT0}, 1
    s_lshl_b32 s{sMB}, s{sMB}, 3
    s_and_b32 s{sT2}, s{sT1}, 7
    s_add_u32 s{sMB}, s{sMB}, s{sT2}
    s_lshr_b32 s{sHP}, s{sT0}, 1
    s_lshl_b32 s{sHP}, s{sHP}, 2
    s_lshr_b32 s{sT2}, s{sT1}, 3
    s_add_u32 s{sHP}, s{sHP}, s{sT2}
    s_lshl_b32 s{sM0}, s{sMB}, 7
    """)
    tmp = tmpB
    assert tmp0 == tmpB + 8
    XA = [U.alloc(4, 4) for _ in range(8)]
    D0 = [U.alloc(4, 4) for _ in range(8)]
    umark = U.mark()
    def stage0_setup():
        a(f"""
        v_and_b32 v{vI}, 15, v0
        v_lshrrev_b32 v{vG}, 4, v0
        v_lshrrev_b32 v{vR}, 2, v{vI}
        v_and_b32 v{vC}, 3, v{vI}
        v_lshlrev_b32 v{vT}, 2, v{vG}
        v_cvt_f32_u32 v{kkf[0]}, v{vT}
        """)
        for j in range(1, 8):
            kk = j if j < 4 else 16 + (j - 4)
            a(f"v_add_f32 v{kkf[j]}, {f32bits(float(kk))}, v{kkf[0]}")
        a(f"""
        v_lshrrev_b32 v{vT}, 1, v{vI}
        s_lshl_b32 s{sT0}, s{sQ}, 3
        v_add_u32 v{vT}, s{sT0}, v{vT}
        v_cvt_f32_u32 v{vT}, v{vT}
        v_mul_f32 v{vT}, {f32bits(1/32)}, v{vT}
        v_and_b32 v{vT2}, 1, v{vI}
        v_cvt_f32_u32 v{vT2}, v{vT2}
        v_mul_f32 v{vT2}, {f32bits(0.25)}, v{vT2}
        """)
        for j in range(8):
            a(f"v_fma_f32 v{tmp+j}, v{vT}, v{kkf[j]}, v{vT2}")
        for j in range(8):
            a(f"v_cos_f32 v{tmp+j}, v{tmp+j}")
        a(f"""
        v_lshl_add_u32 v{vT}, v{vG}, 2, v{vR}
        v_lshlrev_b32 v{a0}, 11, v{vT}
        v_and_b32 v{vT2}, 7, v{vT}
        v_lshl_add_u32 v{a0}, v{vT2}, 5, v{a0}
        v_lshl_add_u32 v{a0}, v{vC}, 3, v{a0}
        s_lshl_b32 s{sT0}, s{sWave}, 8
        v_add_u32 v{a0}, s{sT0}, v{a0}
        v_mul_u32_u24 v{aW[0]}, {CROW}, v{vI}
        v_lshl_add_u32 v{aW[0]}, v{vG}, 3, v{aW[0]}
        s_and_b32 s{sT1}, s{sWave}, 1
        s_lshl_b32 s{sT1}, s{sT1}, 5
        s_add_u32 s{sT0}, s{sT0}, {CB}
        s_add_u32 s{sT2}, s{sT0}, s{sT1}
        s_xor_b32 s{sT1}, s{sT1}, 32
        s_add_u32 s{sT1}, s{sT0}, s{sT1}
        v_add_u32 v{aW[1]}, s{sT1}, v{aW[0]}
        v_add_u32 v{aW[0]}, s{sT2}, v{aW[0]}
        """)
        for j in range(4):
            a(f"v_cvt_pk_bf16_f32 v{B0+j}, v{tmp+2*j}, v{tmp+2*j+1}")
        a(f"v_add_u32 v{a0}, {XF}, v{a0}")
        for i in range(1, 8):
            a(f"v_xor_b32 v{a0x[i-1]}, {i*32}, v{a0}")
    def stage0(extra_reads=None, n_extra=0):
        for i in range(8):
            ad = a0 if i == 0 else a0x[i-1]
            for half in range(2):
                a(f"ds_read_b64_tr_b16 {v(XA[i]+2*half,2)}, v{ad} offset:{half*32768}")
        if extra_reads: extra_reads()
        for i in range(8):
            a(f"s_waitcnt lgkmcnt({min(15, 2*(7-i)+n_extra)})")
            a.mfma(D0[i], XA[i], B0, None)
        a("s_nop 3")
        for i in range(8):
            a(f"v_cvt_pk_bf16_f32 v{D0[i]}, v{D0[i]}, v{D0[i]+1}")
            a(f"v_cvt_pk_bf16_f32 v{D0[i]+1}, v{D0[i]+2}, v{D0[i]+3}")
            a(f"ds_write_b64 v{aW[i&1]}, {v(D0[i],2)} offset:{(i>>1)*64}")
    a(f"""
    s_cmp_lt_u32 s{sWave}, 4
    s_cbranch_scc1 {L('compute')}
    """)
    V = Regs(8, FB - 1, 'v')
    vLR, vP = V.alloc(), V.alloc()
    vA = [V.alloc() for _ in range(4)]
    vB = [V.alloc() for _ in range(6)]
    vH = V.alloc()
    aG = [V.alloc(), V.alloc()]
    gacc = [V.alloc(), V.alloc()]
    vPF = V.alloc(); vPFD = V.alloc(2)
    aU = V.alloc(); aSR = V.alloc()
    GW = U.alloc(8, 4); GX = [U.alloc(8, 4), U.alloc(8, 4)]
    a.srd(SRDP, sGW, 2048)
    a(f"""
    v_lshlrev_b32 v{vT}, 5, v0
    buffer_load_dwordx4 {v(GW,4)}, v{vT}, {s(SRDP,4)}, 0 offen
    buffer_load_dwordx4 {v(GW+4,4)}, v{vT}, {s(SRDP,4)}, 0 offen offset:16
    """)
    a.srd(SRDW, sW, 1024 * 3072 * 2)
    LPF = 2 if opt.get('wpf', 1) == 4 else 0
    if LPF:
        a(f"""
        v_mul_u32_u24 v{vT}, 43, v0
        v_lshrrev_b32 v{vT}, 9, v{vT}
        v_mul_u32_u24 v{vT2}, 12, v{vT}
        v_sub_u32 v{vT2}, v0, v{vT2}
        v_mul_u32_u24 v{vPF}, 6144, v{vT}
        v_lshrrev_b32 v{vT}, 2, v{vT2}
        v_lshl_add_u32 v{vPF}, v{vT}, 11, v{vPF}
        v_and_b32 v{vT}, 3, v{vT2}
        v_lshl_add_u32 v{vPF}, v{vT}, 7, v{vPF}
        s_lshr_b32 s{sT0}, s2, 3
        s_lshl_b32 s{sT0}, s{sT0}, 2
        s_add_u32 s{sT0}, s{sT0}, s{sWave}
        s_sub_u32 s{sT0}, s{sT0}, 4
        s_mul_i32 s{sT0}, s{sT0}, {8*6144}
        s_lshr_b32 s{sT1}, s{sHP}, 2
        s_lshl_b32 s{sT1}, s{sT1}, 9
        s_add_u32 s{sT0}, s{sT0}, s{sT1}
        s_add_u32 s{sT1}, s{sT0}, {4*6144}
        s_mov_b32 exec_hi, 0xffff
        buffer_load_dword v{vPFD}, v{vPF}, {s(SRDW,4)}, s{sT0} offen
        buffer_load_dword v{vPFD+1}, v{vPF}, {s(SRDW,4)}, s{sT1} offen
        s_mov_b32 exec_hi, -1
        """)
    immB = [0, 1024, 2048, 3072, 0, 1024]
    ROT = opt.get('rot', 0)
    a(f"""
    s_sub_u32 s{sLW}, s{sWave}, 4
    v_lshrrev_b32 v{vLR}, 3, v0
    v_and_b32 v{vP}, 7, v0
    s_lshl_b32 s{sT0}, s{sLW}, 4
    v_add_u32 v{vT}, s{sT0}, v{vLR}
    v_mul_u32_u24 v{vT}, 6144, v{vT}
    s_lshl_b32 s{sT0}, s{sHP}, 7
    v_add_u32 v{vT}, s{sT0}, v{vT}
    v_and_b32 v{vT2}, 2, v{vLR}
    v_xor_b32 v{vT2}, v{vT2}, v{vP}
    v_lshl_add_u32 v{vB[0]}, v{vT2}, 4, v{vT}
    v_xor_b32 v{vT2}, 4, v{vT2}
    v_lshl_add_u32 v{vB[1]}, v{vT2}, 4, v{vT}
    v_add_u32 v{vB[1]}, {8*6144 - 1024}, v{vB[1]}
    """)
    for n in range(2, 6):
        seg, uo = n >> 1, n & 1
        a(f"v_add_u32 v{vB[n]}, {seg * 2048 - immB[n] + immB[uo]}, v{vB[uo]}")
    if ROT:
        a(f"""
        s_and_b32 s{sT0}, s{sMB}, 7
        s_lshl_b32 s{sKI}, s{sT0}, 1
        s_lshr_b32 s{sT0}, s{sMB}, 3
        s_add_u32 s{sKI}, s{sKI}, s{sT0}
        s_lshl_b32 s{sT0}, s{sHP}, 2
        s_add_u32 s{sKI}, s{sKI}, s{sT0}
        s_and_b32 s{sKI}, s{sKI}, 15
        """)
    else:
        a(f"s_mov_b32 s{sKI}, 0")
    a(f"""
    s_lshl_b32 s{sKA}, s{sKI}, 7
    s_mul_i32 s{sKB}, s{sKI}, {64*6144}
    s_mul_i32 s{sLM}, s{sLW}, {CH}
    s_mov_b32 s{sStg}, 0
    """)
    def issue_B():
        a(f"s_add_u32 s{sT0}, s{sLM}, s{sStg}")
        a(f"s_add_u32 m0, s{sT0}, 4096")
        a("s_nop 0")
        for n in range(4):
            a(f"buffer_load_dwordx4 v{vB[n]}, {s(SRDW,4)}, s{sKB} offen offset:{immB[n]} lds")
        a(f"s_add_u32 m0, s{sT0}, 8192")
        a("s_nop 0")
        for n in range(4, 6):
            a(f"buffer_load_dwordx4 v{vB[n]}, {s(SRDW,4)}, s{sKB} offen offset:{immB[n]} lds")
    def issue_A(sep=False):
        if sep:
            a(f"s_add_u32 s{sT0}, s{sLM}, s{sStg}")
            a(f"s_add_u32 m0, s{sT0}, 8192")
        a("s_mov_b64 exec, 0xffffffff")
        a(f"buffer_load_dwordx4 v{vH}, {s(SRDX,4)}, s{sKA} offen offset:2048 lds")
        a("s_mov_b64 exec, -1")
        a(f"s_mov_b32 m0, s{sT0}")
        a(f"s_add_u32 s{sKI}, s{sKI}, 1")
        for u in range(4):
            a(f"buffer_load_dwordx4 v{vA[u]}, {s(SRDX,4)}, s{sKA} offen offset:{u*1024} lds")
        a(f"""
        s_and_b32 s{sKI}, s{sKI}, 15
        s_lshl_b32 s{sKA}, s{sKI}, 7
        s_mul_i32 s{sKB}, s{sKI}, {64*6144}
        s_add_u32 s{sStg}, s{sStg}, {STAGE}
        s_cmp_eq_u32 s{sStg}, {3*STAGE}
        s_cselect_b32 s{sStg}, 0, s{sStg}
        """)
    def issue_stage():
        issue_B(); issue_A()
    a.srd_off(SRDG, sWS, WS_G, 2048 * 4)
    a(f"""
    s_lshl_b32 s{sT0}, s{sQ}, 3
    s_lshl_b32 s{sT1}, s{sLW}, 1
    s_add_u32 s{sT3}, s{sT0}, s{sT1}
    v_xor_b32 v{vT}, s{sT1}, v0
    v_lshlrev_b32 v{aG[0]}, 5, v{vT}
    v_xor_b32 v{aG[1]}, 32, v{aG[0]}
    s_lshl_b32 s{sT0}, s{sT3}, 11
    s_add_u32 s{sT0}, s{sT0}, {XF}
    v_add_u32 v{aG[0]}, s{sT0}, v{aG[0]}
    s_add_u32 s{sT0}, s{sT0}, 2048
    v_add_u32 v{aG[1]}, s{sT0}, v{aG[1]}
    s_lshl_b32 s{sT3}, s{sT3}, 6
    s_add_u32 s{sT3}, s{sT3}, s{sS2}
    s_lshl_b32 s{sT3}, s{sT3}, 2
    ; A rows
    s_lshr_b32 s{sT0}, s{sLW}, 1
    s_lshl_b32 s{sT0}, s{sT0}, 6
    s_and_b32 s{sT1}, s{sLW}, 1
    s_add_u32 s{sT0}, s{sT0}, s{sT1}
    s_add_u32 s{sT0}, s{sT0}, s{sM0}
    v_lshlrev_b32 v{vT}, 1, v{vLR}
    v_add_u32 v{vT}, s{sT0}, v{vT}
    v_lshlrev_b32 v{vT}, 11, v{vT}
    v_xor_b32 v{vT2}, v{vP}, v{vLR}
    v_lshl_add_u32 v{vA[0]}, v{vT2}, 4, v{vT}
    """)
    for u in range(1, 4):
        a(f"v_add_u32 v{vA[u]}, {u*16*2048 - u*1024}, v{vA[0]}")
    a(f"""
    s_and_b32 s{sT0}, s{sLW}, 1
    s_lshl_b32 s{sT1}, s{sT0}, 3
    s_lshr_b32 s{sT2}, s{sLW}, 1
    s_add_u32 s{sT1}, s{sT1}, s{sT2}
    s_add_u32 s{sT1}, s{sT1}, s{sM0}
    s_sub_u32 s{sT1}, s{sT1}, 17
    v_lshlrev_b32 v{vT}, 1, v{vLR}
    v_add_u32 v{vT}, s{sT1}, v{vT}
    v_lshlrev_b32 v{vT}, 11, v{vT}
    s_lshl_b32 s{sT0}, s{sT0}, 2
    v_add_u32 v{vT2}, s{sT0}, v{vLR}
    v_and_b32 v{vT2}, 7, v{vT2}
    v_xor_b32 v{vT2}, v{vT2}, v{vP}
    v_lshl_add_u32 v{vH}, v{vT2}, 4, v{vT}
    s_lshr_b32 s{sT0}, s2, 3
    s_lshl_b32 s{sT0}, s{sT0}, 16
    s_lshl_b32 s{sT1}, s{sLW}, 14
    s_add_u32 s{sT0}, s{sT0}, s{sT1}
    v_lshlrev_b32 v{vPF}, 7, v0
    v_add_u32 v{vPF}, s{sT0}, v{vPF}
    """)
    a.srd_off(SRDU, sWS, WS_U, 8 << 20)
    a(f"""
    s_lshl_b32 s{sT0}, s{sQ}, 3
    s_lshl_b32 s{sT1}, s{sLW}, 1
    s_add_u32 s{sT0}, s{sT0}, s{sT1}
    s_lshl_b32 s{sT1}, s{sT0}, 7
    s_add_u32 s{sT1}, s{sT1}, s{sS2}
    s_lshl_b32 s{sT1}, s{sT1}, 11
    v_lshlrev_b32 v{aU}, 4, v0
    v_add_u32 v{aU}, s{sT1}, v{aU}
    s_mul_i32 s{sT0}, s{sLW}, {4*CROW}
    s_add_u32 s{sT0}, s{sT0}, {CB}
    v_bfe_u32 v{vT}, v0, 3, 1
    v_bfe_u32 v{vT2}, v0, 5, 1
    v_lshl_add_u32 v{vT}, v{vT2}, 1, v{vT}
    v_xor_b32 v{vT}, v{vT}, v0
    v_lshlrev_b32 v{aSR}, 4, v{vT}
    v_add_u32 v{aSR}, s{sT0}, v{aSR}
    """)
    stage0_setup()
    st.stamp(2)
    a(f"s_waitcnt vmcnt({LPF})")
    a("s_barrier")
    st.stamp(3)
    def gate():
        for n in range(2):
            a(f"v_mov_b32 v{gacc[n]}, 0")
        for j in range(8):
            a(f"v_lshlrev_b32 v{tmp+2}, 16, v{GW+j}")
            a(f"v_and_b32 v{tmp+3}, 0xffff0000, v{GW+j}")
            for n in range(2):
                t = tmp + 4 + 4*n
                a(f"""
                v_lshlrev_b32 v{t}, 16, v{GX[n]+j}
                v_and_b32 v{t+1}, 0xffff0000, v{GX[n]+j}
                v_mul_f32 v{t}, v{t}, v{tmp+2}
                v_mul_f32 v{t+1}, v{t+1}, v{tmp+3}
                v_cvt_pk_bf16_f32 v{t}, 0, v{t}
                v_cvt_pk_bf16_f32 v{t+1}, 0, v{t+1}
                v_add_f32 v{gacc[n]}, v{gacc[n]}, v{t}
                v_add_f32 v{gacc[n]}, v{gacc[n]}, v{t+1}
                """)
        for k in (8, 4, 2, 1):
            a("s_nop 1")
            for n in range(2):
                a(f"v_add_f32_dpp v{gacc[n]}, v{gacc[n]}, v{gacc[n]} row_ror:{k} row_mask:0xf bank_mask:0xf")
        for sw in ("v_permlane32_swap_b32", "v_permlane16_swap_b32"):
            for n in range(2): a(f"v_mov_b32 v{tmp+n}, v{gacc[n]}")
            a("s_nop 1")
            for n in range(2): a(f"{sw} v{gacc[n]}, v{tmp+n}")
            a("s_nop 1")
            for n in range(2): a(f"v_add_f32 v{gacc[n]}, v{gacc[n]}, v{tmp+n}")
        for n in range(2):
            a(f"""
            v_cvt_pk_bf16_f32 v{gacc[n]}, 0, v{gacc[n]}
            v_mul_f32 v{gacc[n]}, {f32bits(-1.4426950408889634)}, v{gacc[n]}
            v_exp_f32 v{gacc[n]}, v{gacc[n]}
            s_nop 0
            v_add_f32 v{gacc[n]}, 1.0, v{gacc[n]}
            v_rcp_f32 v{gacc[n]}, v{gacc[n]}
            s_nop 0
            v_cvt_pk_bf16_f32 v{gacc[n]}, 0, v{gacc[n]}
            """)
    def greads():
        for n in range(2):
            a(f"ds_read_b128 {v(GX[n],4)}, v{aG[n]}")
            a(f"ds_read_b128 {v(GX[n]+4,4)}, v{aG[n]} offset:16")
    if opt.get('stamp'): a("s_waitcnt lgkmcnt(0)")
    stage0(greads, 4)
    a("s_waitcnt lgkmcnt(0)")
    a("s_barrier")
    st.stamp(4)
    def gstore():
        a(f"""
        v_mov_b32 v{tmp}, s{sT3}
        s_mov_b64 exec, 1
        buffer_store_dword v{gacc[0]}, v{tmp}, {s(SRDG,4)}, 0 offen
        buffer_store_dword v{gacc[1]}, v{tmp}, {s(SRDG,4)}, 0 offen offset:256
        s_mov_b64 exec, -1
        """)
    GP = opt.get('gatepos', 0)
    if GP == 0:
        gate()
    if opt.get('ust', 0) == 3: a("s_barrier")
    issue_stage()
    if opt.get('ust', 0) == 2: a("s_barrier")
    issue_stage()
    st.stamp(7)
    if opt.get('pre3', 0):
        issue_stage()
        a("s_waitcnt vmcnt(22)")
        st.stamp(8)
        a("s_barrier")
    else:
        a("s_waitcnt vmcnt(11)")
        st.stamp(8)
        a("s_barrier")
        issue_stage()
    a(f"s_mov_b32 s{sCnt}, 0")
    a.label(L('lloop'))
    a("s_waitcnt vmcnt(11)")
    a("s_barrier")
    issue_stage()
    a(f"""
    s_add_u32 s{sCnt}, s{sCnt}, 1
    s_cmp_lt_u32 s{sCnt}, 13
    s_cbranch_scc1 {L('lloop')}
    """)
    UD = [XA[i] for i in range(8)]
    def ureads():
        for p in range(8):
            a(f"ds_read_b128 {v(UD[p],4)}, v{aSR} offset:{p*1024}")
    def ustores(ps):
        for p in ps:
            a(f"s_mov_b32 s{sT0}, {(p >> 1)*131072}")
            a(f"buffer_store_dwordx4 {v(UD[p],4)}, v{aU}, {s(SRDU,4)}, s{sT0} offen offset:{(p & 1)*1024}{USC}")
        return len(ps)
    def wopf():
        n = 0
        mode = opt.get('wopf', 1)
        if mode:
            a.srd(SRDP, sWO, 2 << 20)
        if mode == 1:
            a(f"s_mov_b32 s{sT0}, 8192")
            a(f"buffer_load_dword v{vPFD}, v{vPF}, {s(SRDP,4)}, 0 offen")
            a(f"buffer_load_dword v{vPFD+1}, v{vPF}, {s(SRDP,4)}, s{sT0} offen")
            n = 2
        if mode == 2:
            a(f"""
            s_lshl_b32 s{sT0}, s2, 13
            s_lshl_b32 s{sT1}, s{sLW}, 11
            s_add_u32 s{sT0}, s{sT0}, s{sT1}
            v_lshlrev_b32 v{vPF}, 7, v0
            s_mov_b64 exec, 0xffff
            buffer_load_dword v{vPFD}, v{vPF}, {s(SRDP,4)}, s{sT0} offen
            s_mov_b64 exec, -1
            """)
            n = 1
        if CPF:
            code_pf(); n += 1
        return n
    if opt.get('ust', 0):
        ustores = lambda ps: 0
    else:
        ureads()
        a("s_waitcnt lgkmcnt(0)")
    n = 0
    if opt.get('wofirst', 0): n += wopf()
    n += ustores(range(0, 4))
    a(f"s_waitcnt vmcnt({11 + n})")
    a("s_barrier")
    n += ustores(range(4, 8))
    if not opt.get('wofirst', 0): n += wopf()
    a(f"s_waitcnt vmcnt({n})")
    a("s_barrier")
    if GP == 1: gate()
    if GP <= 1: gstore()
    a("s_barrier")
    a("s_barrier")
    if GP == 2:
        gate(); gstore()
    st.stamp(5); st.stamp(6, True)
    st.dump(12, sWave, 1, 2)
    sp.end(sWS, sWave)
    a(f"s_branch {L('end')}")
    a.label(L('compute'))
    U.release(umark)
    V = Regs(8, FB - 1, 'v')
    bA = [V.alloc(), V.alloc()]; bH = [V.alloc(), V.alloc()]; bB = [V.alloc(), V.alloc()]
    cA = [V.alloc(), V.alloc()]; cH = [V.alloc(), V.alloc()]; cB = [V.alloc(), V.alloc()]
    vO = V.alloc(); vLane16 = V.alloc(); vLane8 = V.alloc()
    mCur = V.alloc(2, 2); mPrev = V.alloc(2, 2); mFirst = [V.alloc(2, 2), V.alloc(2, 2)]
    biasCur = V.alloc(4, 4); biasPrev = V.alloc(4, 4); biasFirst = [V.alloc(4, 4), V.alloc(4, 4)]
    G = Regs(FB, 256, 'gemm')
    QT = [[[G.alloc(4, 4) for db in range(2)] for b in range(2)] for par in range(2)]
    KT = [[[G.alloc(4, 4) for db in range(2)] for b in range(2)] for par in range(2)]
    VV = [[[G.alloc(4, 4) for db in range(2)] for b in range(2)] for par in range(2)]
    HH = [G.alloc(4, 4) for db in range(2)]
    acc0 = QT[0][0][0]; accN = HH[1] + 4
    fr0 = G.mark()
    F = []
    for f in range(2):
        F.append(dict(XA=[[G.alloc(4, 4) for b in range(2)] for par in range(2)], XH=G.alloc(4, 4),
                      WB=[[G.alloc(4, 4) for db in range(2)] for seg in range(3)]))
    frN = G.mark()
    COS = [U.alloc(4, 4) for _ in range(2)]
    SIN = [U.alloc(4, 4) for _ in range(2)]
    NSIN = [U.alloc(4, 4) for _ in range(2)]
    TWC = [[U.alloc(4) for eb in range(2)] for db2 in range(2)]
    TWS = [[U.alloc(4) for eb in range(2)] for db2 in range(2)]
    a1 = [U.alloc(), U.alloc()]; aSW = U.alloc(); aUc = U.alloc(); aSRc = U.alloc()
    WPF = opt.get('wpf', 1)
    vWP = V.alloc(); vWD = V.alloc()
    RA = opt.get('ra', 3)
    def wpf_setup():
        if WPF: a.srd(SRDW, sW, 1024 * 3072 * 2)
        if WPF == 1:
            a(f"""
            s_lshl_b32 s{sT0}, s{sWave}, 21
            s_lshl_b32 s{sT1}, s2, 13
            s_add_u32 s{sT0}, s{sT0}, s{sT1}
            v_lshlrev_b32 v{vWP}, 7, v0
            v_add_u32 v{vWP}, s{sT0}, v{vWP}
            """)
        if WPF == 2:
            a(f"""
            v_mul_u32_u24 v{vT}, 43, v0
            v_lshrrev_b32 v{vT}, 9, v{vT}
            v_mul_u32_u24 v{vT2}, 12, v{vT}
            v_sub_u32 v{vT2}, v0, v{vT2}
            v_mul_u32_u24 v{vWP}, 6144, v{vT}
            v_lshrrev_b32 v{vT}, 2, v{vT2}
            v_lshl_add_u32 v{vWP}, v{vT}, 11, v{vWP}
            v_and_b32 v{vT}, 3, v{vT2}
            v_lshl_add_u32 v{vWP}, v{vT}, 7, v{vWP}
            s_lshr_b32 s{sT0}, s2, 3
            s_lshl_b32 s{sT0}, s{sT0}, 2
            s_add_u32 s{sT0}, s{sT0}, s{sWave}
            s_mul_i32 s{sT0}, s{sT0}, {8*6144}
            s_lshr_b32 s{sT1}, s{sHP}, 2
            s_lshl_b32 s{sT1}, s{sT1}, 9
            s_add_u32 s{sT0}, s{sT0}, s{sT1}
            v_add_u32 v{vWP}, s{sT0}, v{vWP}
            """)
        if WPF == 3:
            a(f"""
            v_mul_u32_u24 v{vT}, 43, v0
            v_lshrrev_b32 v{vT}, 9, v{vT}
            v_mul_u32_u24 v{vT2}, 12, v{vT}
            v_sub_u32 v{vT2}, v0, v{vT2}
            v_mul_u32_u24 v{vWP}, 6144, v{vT}
            v_lshrrev_b32 v{vT}, 2, v{vT2}
            v_lshl_add_u32 v{vWP}, v{vT}, 11, v{vWP}
            v_and_b32 v{vT}, 3, v{vT2}
            v_lshl_add_u32 v{vWP}, v{vT}, 7, v{vWP}
            s_lshr_b32 s{sT1}, s{sHP}, 2
            s_lshl_b32 s{sT1}, s{sT1}, 9
            v_add_u32 v{vWP}, s{sT1}, v{vWP}
            s_lshr_b32 s{sT0}, s2, 3
            s_lshl_b32 s{sT1}, s{sT0}, 2
            s_add_u32 s{sT1}, s{sT1}, s{sWave}
            s_mul_i32 s{sKA}, s{sT1}, {RA*6144}
            s_mul_i32 s{sKB}, s{sT1}, {(8-RA)*6144}
            s_add_u32 s{sKB}, s{sKB}, {128*RA*6144}
            """)
    def wpfB():
        if WPF == 3:
            n = (8 - RA) * 12
            a(f"s_mov_b32 exec_hi, {(1 << (n - 32)) - 1}")
            a(f"buffer_load_dword v{vCP}, v{vWP}, {s(SRDW,4)}, s{sKB} offen")
            a("s_mov_b32 exec_hi, -1")
            if opt.get('womall', 1):
                a.srd(SRDP, sWO, 2 << 20)
                a(f"""
                s_lshl_b32 s{sT0}, s2, 13
                s_lshl_b32 s{sT1}, s{sWave}, 11
                s_add_u32 s{sT0}, s{sT0}, s{sT1}
                v_lshlrev_b32 v{vWP}, 7, v0
                s_mov_b64 exec, 0xffff
                buffer_load_dword v{vWD}, v{vWP}, {s(SRDP,4)}, s{sT0} offen
                s_mov_b64 exec, -1
                """)
    def wpf():
        if WPF == 3:
            n = RA * 12
            if n > 32:
                a(f"s_mov_b32 exec_hi, {(1 << (n - 32)) - 1}")
            else:
                a(f"s_mov_b64 exec, {(1 << n) - 1}")
            a(f"buffer_load_dword v{vWD}, v{vWP}, {s(SRDW,4)}, s{sKA} offen")
            a("s_mov_b64 exec, -1")
        if WPF == 1:
            a(f"buffer_load_dword v{vWD}, v{vWP}, {s(SRDW,4)}, 0 offen")
        if WPF == 2:
            a(f"""
            s_mov_b32 s{sT0}, {4*6144}
            s_mov_b32 exec_hi, 0xffff
            buffer_load_dword v{vWD}, v{vWP}, {s(SRDW,4)}, 0 offen
            buffer_load_dword v{vCP}, v{vWP}, {s(SRDW,4)}, s{sT0} offen
            s_mov_b32 exec_hi, -1
            """)
    wpf_setup()
    if opt.get('wpfpos', 3) == 0: wpf()
    stage0_setup()
    a.srd_off(SRDO, sWS, WS_O, 4 << 20)
    a(f"""
    s_mov_b32 s{sRI}, 131072
    v_lshl_add_u32 v{vT}, v{vR}, 3, v{vC}
    v_cvt_f32_u32 v{ef[0]}, v{vT}
    v_add_f32 v{ef[1]}, 4.0, v{ef[0]}
    """)
    for eb in range(2):
        a(f"v_mul_f32 v{vT}, {f32bits(1/32)}, v{ef[eb]}")
        for j in range(8):
            a(f"v_mul_f32 v{tmp+j}, v{vT}, v{kkf[j]}")
        for j in range(8):
            a(f"v_sin_f32 v{tmp+8+j}, v{tmp+j}")
        for j in range(8):
            a(f"v_cos_f32 v{tmp+j}, v{tmp+j}")
        a("s_nop 0")
        for j in range(4):
            a(f"v_cvt_pk_bf16_f32 v{SIN[eb]+j}, v{tmp+8+2*j}, v{tmp+8+2*j+1}")
            a(f"v_cvt_pk_bf16_f32 v{COS[eb]+j}, v{tmp+2*j}, v{tmp+2*j+1}")
            a(f"v_xor_b32 v{NSIN[eb]+j}, 0x80008000, v{SIN[eb]+j}")
    for eb in range(2):
        a(f"v_mul_f32 v{vT}, {f32bits(1/1024)}, v{ef[eb]}")
        for db2 in range(2):
            for r in range(4):
                a(f"v_mul_f32 v{TWC[db2][eb]+r}, v{vT}, v{kkf[4*db2+r]}")
            for r in range(4):
                a(f"v_sin_f32 v{TWS[db2][eb]+r}, v{TWC[db2][eb]+r}")
            for r in range(4):
                a(f"v_cos_f32 v{TWC[db2][eb]+r}, v{TWC[db2][eb]+r}")
    if opt.get('wpfpos', 3) == 1: wpf()
    a(f"""
    s_and_b32 s{sH}, s{sWave}, 1
    s_lshr_b32 s{sHF}, s{sWave}, 1
    s_mov_b32 s{sScale}, {SCALE}
    s_mov_b32 s{sLog2e}, {LOG2E}
    v_lshl_add_u32 v{vT}, v{vG}, 2, v{vR}
    v_lshlrev_b32 v{a1[0]}, 6, v{vT}
    v_lshl_add_u32 v{a1[0]}, v{vC}, 3, v{a1[0]}
    v_and_b32 v{vT2}, 1, v{vG}
    v_lshl_add_u32 v{a1[0]}, v{vT2}, 5, v{a1[0]}
    v_xor_b32 v{a1[1]}, 32, v{a1[0]}
    s_mul_i32 s{sT0}, s{sWave}, {4*CROW}
    s_add_u32 s{sT0}, s{sT0}, {CB}
    v_add_u32 v{a1[0]}, s{sT0}, v{a1[0]}
    v_add_u32 v{a1[1]}, s{sT0}, v{a1[1]}
    s_mul_i32 s{sT0}, s{sWave}, {4*CROW}
    s_add_u32 s{sT0}, s{sT0}, {CB}
    v_lshrrev_b32 v{vT}, 1, v{vC}
    v_and_b32 v{vT2}, 1, v{vR}
    v_lshl_add_u32 v{vT}, v{vT2}, 1, v{vT}
    v_xor_b32 v{vT}, v{vT}, v{vG}
    v_lshl_add_u32 v{aSW}, v{vR}, 3, v{vC}
    v_lshlrev_b32 v{aSW}, 6, v{aSW}
    v_lshl_add_u32 v{aSW}, v{vT}, 4, v{aSW}
    v_add_u32 v{aSW}, s{sT0}, v{aSW}
    v_and_b32 v{vT}, 7, v{vI}
    v_xor_b32 v{vT}, v{vT}, v{vG}
    v_lshlrev_b32 v{vT}, 4, v{vT}
    s_mul_i32 s{sT0}, s{sHF}, {2*CH}
    v_lshl_add_u32 v{bA[0]}, v{vI}, 7, v{vT}
    v_add_u32 v{bA[0]}, s{sT0}, v{bA[0]}
    v_xor_b32 v{bA[1]}, 64, v{bA[0]}
    v_mul_u32_u24 v{bH[0]}, {CH}, v{vR}
    v_lshl_add_u32 v{bH[0]}, v{vC}, 7, v{bH[0]}
    v_add_u32 v{bH[0]}, v{bH[0]}, v{vT}
    v_add_u32 v{bH[0]}, 10240, v{bH[0]}
    v_xor_b32 v{bH[1]}, 64, v{bH[0]}
    v_lshrrev_b32 v{vT}, 1, v{vG}
    v_mul_u32_u24 v{bB[0]}, {CH}, v{vT}
    v_and_b32 v{vT}, 1, v{vG}
    v_lshl_add_u32 v{bB[1]}, v{vT}, 3, v{vR}
    v_lshl_add_u32 v{bB[0]}, v{bB[1]}, 7, v{bB[0]}
    v_lshlrev_b32 v{vT}, 2, v{vT}
    v_and_b32 v{bB[1]}, 2, v{vR}
    v_or_b32 v{vT}, v{vT}, v{bB[1]}
    v_lshrrev_b32 v{bB[1]}, 1, v{vC}
    s_lshl_b32 s{sT0}, s{sH}, 2
    v_add_u32 v{bB[1]}, s{sT0}, v{bB[1]}
    v_xor_b32 v{vT}, v{vT}, v{bB[1]}
    v_lshl_add_u32 v{bB[0]}, v{vT}, 4, v{bB[0]}
    v_and_b32 v{vT}, 1, v{vC}
    v_lshl_add_u32 v{bB[0]}, v{vT}, 3, v{bB[0]}
    v_add_u32 v{bB[0]}, 4096, v{bB[0]}
    v_xor_b32 v{bB[1]}, 32, v{bB[0]}
    v_lshlrev_b32 v{vO}, 18, v{vI}
    v_and_b32 v{vT}, 1, v{vG}
    v_lshl_add_u32 v{vO}, v{vT}, 5, v{vO}
    v_lshrrev_b32 v{vT}, 1, v{vG}
    v_lshl_add_u32 v{vO}, v{vT}, 4, v{vO}
    s_lshl_b32 s{sT0}, s{sHP}, 13
    s_lshl_b32 s{sT1}, s{sMB}, 9
    s_add_u32 s{sT0}, s{sT0}, s{sT1}
    s_lshl_b32 s{sT1}, s{sHF}, 8
    s_add_u32 s{sT0}, s{sT0}, s{sT1}
    s_lshl_b32 s{sT1}, s{sH}, 6
    s_add_u32 s{sT0}, s{sT0}, s{sT1}
    v_add_u32 v{vO}, s{sT0}, v{vO}
    s_mul_i32 s{sT0}, s{sH}, 5120
    v_lshlrev_b32 v{vLane16}, 4, v0
    v_add_u32 v{vLane16}, s{sT0}, v{vLane16}
    v_lshlrev_b32 v{vLane8}, 3, v0
    v_add_u32 v{vLane8}, s{sT0}, v{vLane8}
    """)
    a(f"v_lshlrev_b32 v{vT}, 2, v{vG}")
    a(f"v_sub_u32 v{vT}, v{vI}, v{vT}")
    a(f"v_mov_b32 v{vT3}, {NEG_BIG}")
    MS = s(sMSK, 2)
    for r in range(4):
        a(f"v_subrev_u32 v{vT2}, {r}, v{vT}")
        a(f"v_cmp_gt_u32 vcc, 8, v{vT2}")
        a(f"v_cmp_gt_i32 {MS}, -8, v{vT2}")
        a("s_nop 0")
        a(f"v_cndmask_b32_e64 v{biasCur+r}, v{vT3}, 0, vcc")
        a(f"v_cndmask_b32_e64 v{biasPrev+r}, v{vT3}, 0, {MS}")
        a(f"v_mov_b32 v{biasFirst[1]+r}, v{biasPrev+r}")
        a(f"v_mov_b32 v{biasFirst[0]+r}, v{biasPrev+r}")
    a(f"""
    s_cmp_lg_u32 s{sHF}, 0
    s_cbranch_scc1 {L('maskdone')}
    v_cmp_gt_u32 {MS}, 2, v{vG}
    """)
    for r in range(4):
        a(f"v_subrev_u32 v{vT2}, {r}, v{vT}")
        a(f"v_cmp_gt_i32 vcc, 0, v{vT2}")
        a("s_nop 1")
        a(f"s_and_b64 vcc, vcc, {MS}")
        a("s_nop 1")
        a(f"v_cndmask_b32_e64 v{biasFirst[0]+r}, v{vT3}, 0, vcc")
    a(f"""
    s_cmp_lg_u32 s{sMB}, 0
    s_cbranch_scc1 {L('maskdone')}
    """)
    for r in range(4):
        a(f"v_mov_b32 v{biasFirst[0]+r}, v{vT3}")
        a(f"v_mov_b32 v{biasFirst[1]+r}, v{vT3}")
    a.label(L('maskdone'))
    def mk_mask(m, bias):
        for h2 in range(2):
            a(f"v_ashrrev_i32 v{vT}, 31, v{bias+2*h2}")
            a(f"v_ashrrev_i32 v{vT2}, 31, v{bias+2*h2+1}")
            a(f"v_and_b32 v{vT}, 0xffff, v{vT}")
            a(f"v_and_b32 v{vT2}, 0xffff0000, v{vT2}")
            a(f"v_or_b32 v{vT}, v{vT}, v{vT2}")
            a(f"v_not_b32 v{m+h2}, v{vT}")
    mk_mask(mCur, biasCur); mk_mask(mPrev, biasPrev); mk_mask(mFirst[0], biasFirst[0]); mk_mask(mFirst[1], biasFirst[1])
    if opt.get('wpfpos', 3) == 2: wpf()
    st.stamp(2)
    a(f"s_waitcnt vmcnt({WPF if opt.get('wpfpos', 3) < 3 else 0})")
    if opt.get('wpfpos', 3) == 3: wpf()
    a("s_barrier")
    if opt.get('wpfpos', 3) == 4: wpf()
    st.stamp(3)
    if opt.get('stamp'): a("s_waitcnt lgkmcnt(0)")
    stage0()
    a("s_waitcnt lgkmcnt(0)")
    a("s_barrier")
    st.stamp(4)
    if opt.get('stamp'): a("s_waitcnt lgkmcnt(0)")
    AR2 = [U.alloc(4, 4) for _ in range(4)]
    Cfs = [[[XA[0], XA[1]], [XA[2], XA[3]]], [[XA[4], XA[5]], [XA[6], XA[7]]]]
    for task in range(2):
        for ri in range(2):
            for db2 in range(2):
                for half in range(2):
                    a(f"ds_read_b64_tr_b16 {v(Cfs[task][ri][db2]+2*half,2)}, v{a1[db2]} offset:{half*1024 + (2*task+ri)*CROW}")
    TB = [DEAD + 4*j for j in range(8)]
    Ts = [D0, TB]
    As = [AR2, [XA[0], XA[1], XA[2], XA[3]]]
    Os = [[XA[4], XA[5], XA[6], XA[7]], AR2]
    def mf(d, x, y, c): return f"v_mfma_f32_16x16x32_bf16 {v(d,4)}, {v(x,4)}, {v(y,4)}, {'0' if c is None else v(c,4)}"
    def S1(task):
        T = Ts[task]; Cf = Cfs[task]; out = []
        for db2 in range(2):
            for eb in range(2):
                out.append(mf(T[2*db2+eb], Cf[0][db2], COS[eb], None))
                out.append(mf(T[4+2*db2+eb], Cf[0][db2], NSIN[eb], None))
        for db2 in range(2):
            for eb in range(2):
                out.append(mf(T[2*db2+eb], Cf[1][db2], SIN[eb], T[2*db2+eb]))
                out.append(mf(T[4+2*db2+eb], Cf[1][db2], COS[eb], T[4+2*db2+eb]))
        return out
    def TW(task):
        T = Ts[task]; A_ = As[task]; out = []
        for db2 in range(2):
            for eb in range(2):
                trb, tib = T[2*db2+eb], T[4+2*db2+eb]
                for r in range(4):
                    out.append(f"v_mul_f32 v{tmp0+r}, v{trb+r}, v{TWC[db2][eb]+r}")
                    out.append(f"v_mul_f32 v{tmp0+4+r}, v{trb+r}, v{TWS[db2][eb]+r}")
                for r in range(4):
                    out.append(f"v_fma_f32 v{tmp0+r}, v{tib+r}, v{TWS[db2][eb]+r}, v{tmp0+r}")
                    out.append(f"v_fma_f32 v{tmp0+4+r}, -v{tib+r}, v{TWC[db2][eb]+r}, v{tmp0+4+r}")
                for h2 in range(2):
                    out.append(f"v_cvt_pk_bf16_f32 v{A_[eb]+2*db2+h2}, v{tmp0+2*h2}, v{tmp0+2*h2+1}")
                    out.append(f"v_cvt_pk_bf16_f32 v{A_[2+eb]+2*db2+h2}, v{tmp0+4+2*h2}, v{tmp0+4+2*h2+1}")
        return out
    def S2(task):
        T = Ts[task]; A_ = As[task]; out = []
        for eb2 in range(2):
            for eb in range(2):
                out.append(mf(T[2*eb+eb2], A_[eb], COS[eb2], None))
                out.append(mf(T[4+2*eb+eb2], A_[eb], SIN[eb2], None))
        for eb2 in range(2):
            for eb in range(2):
                out.append(mf(T[2*eb+eb2], A_[2+eb], NSIN[eb2], T[2*eb+eb2]))
                out.append(mf(T[4+2*eb+eb2], A_[2+eb], COS[eb2], T[4+2*eb+eb2]))
        return out
    def OUT(task):
        T = Ts[task]; out = []; k = 0
        for eb2 in range(2):
            for ri in range(2):
                o = Os[task][k]; k += 1
                for eb in range(2):
                    w = T[4*ri+2*eb+eb2]
                    out.append(f"v_cvt_pk_bf16_f32 v{o+2*eb}, v{w}, v{w+1}")
                    out.append(f"v_cvt_pk_bf16_f32 v{o+2*eb+1}, v{w+2}, v{w+3}")
                out.append(f"ds_write_b128 v{aSW}, {v(o,4)} offset:{(2*task+ri)*2048 + eb2*256}")
        return out
    def iln(main, fill, n, skip=0):
        out = []; fi = 0
        for i, m in enumerate(main):
            out.append(m)
            if i >= skip:
                for _ in range(n):
                    if fi < len(fill):
                        out.append(fill[fi]); fi += 1
        return out + fill[fi:]
    a("s_waitcnt lgkmcnt(12)")
    s1a = S1(0)
    for l in s1a[:8]: a(l)
    a("s_waitcnt lgkmcnt(8)")
    for l in s1a[8:]: a(l)
    a("s_waitcnt lgkmcnt(0)")
    for l in iln(S1(1), TW(0), 6, 2): a(l)
    a("s_nop 1")
    for l in iln(S2(0), TW(1), 6, 2): a(l)
    a("s_nop 1")
    for l in iln(S2(1), OUT(0), 2, 4): a(l)
    UST = opt.get('ust', 0)
    if UST:
        a.srd_off(SRDU, sWS, WS_U, 8 << 20)
        a(f"""
        s_lshl_b32 s{sT0}, s{sQ}, 3
        s_lshl_b32 s{sT1}, s{sWave}, 1
        s_add_u32 s{sT0}, s{sT0}, s{sT1}
        s_lshl_b32 s{sT1}, s{sT0}, 7
        s_add_u32 s{sT1}, s{sT1}, s{sS2}
        s_lshl_b32 s{sT1}, s{sT1}, 11
        v_lshlrev_b32 v{aUc}, 4, v0
        v_add_u32 v{aUc}, s{sT1}, v{aUc}
        s_mul_i32 s{sT0}, s{sWave}, {4*CROW}
        s_add_u32 s{sT0}, s{sT0}, {CB}
        v_bfe_u32 v{vT}, v0, 3, 1
        v_bfe_u32 v{vT2}, v0, 5, 1
        v_lshl_add_u32 v{vT}, v{vT2}, 1, v{vT}
        v_xor_b32 v{vT}, v{vT}, v0
        v_lshlrev_b32 v{aSRc}, 4, v{vT}
        v_add_u32 v{aSRc}, s{sT0}, v{aSRc}
        s_waitcnt lgkmcnt(0)
        """)
        for p in range(4):
            a(f"ds_read_b128 {v(D0[p],4)}, v{aSRc} offset:{p*1024}")
        for l in OUT(1): a(l)
        for p in range(4):
            a(f"s_waitcnt lgkmcnt({4 + 3 - p})")
            a(f"s_mov_b32 s{sT0}, {(p >> 1)*131072}")
            a(f"buffer_store_dwordx4 {v(D0[p],4)}, v{aUc}, {s(SRDU,4)}, s{sT0} offen offset:{(p & 1)*1024}{USC}")
        a("s_waitcnt lgkmcnt(0)")
        for p in range(4, 8):
            a(f"ds_read_b128 {v(D0[p],4)}, v{aSRc} offset:{p*1024}")
        for p in range(4, 8):
            a(f"s_waitcnt lgkmcnt({7 - p})")
            a(f"s_mov_b32 s{sT0}, {(p >> 1)*131072}")
            a(f"buffer_store_dwordx4 {v(D0[p],4)}, v{aUc}, {s(SRDU,4)}, s{sT0} offen offset:{(p & 1)*1024}{USC}")
        if UST >= 2: a("s_barrier")
    else:
        a("s_nop 3")
        for l in OUT(1): a(l)
    st.stamp(7)

    def reads(f, kh, aA, aH, aB):
        out = []
        fs = F[f]
        def rb(seg, db):
            r = fs['WB'][seg][db]
            for half in range(2):
                out.append(f"ds_read_b64_tr_b16 {v(r+2*half,2)}, v{aB[db]} offset:{kh*2*CH + seg*2048 + half*512}")
        def ra(par, b):
            out.append(f"ds_read_b128 {v(fs['XA'][par][b],4)}, v{aA} offset:{par*CH + b*2048}")
        ra(0, 0); rb(0, 0); rb(0, 1); ra(0, 1); ra(1, 0); ra(1, 1)
        rb(1, 0); rb(1, 1)
        out.append(f"ds_read_b128 {v(fs['XH'],4)}, v{aH}")
        rb(2, 0); rb(2, 1)
        return out
    def mfmas(f, hf, first=False):
        out = []
        fs = F[f]
        def m(d, x, y): out.append(f"v_mfma_f32_16x16x32_bf16 {v(d,4)}, {v(x,4)}, {v(y,4)}, {'0' if first else v(d,4)}")
        for par in range(2):
            for b in range(2):
                for db in range(2):
                    m(QT[par][b][db], fs['WB'][0][db], fs['XA'][par][b])
        for par in range(2):
            for b in range(2):
                for db in range(2):
                    m(KT[par][b][db], fs['WB'][1][db], fs['XA'][par][b])
        if hf == 0:
            for db in range(2): m(HH[db], fs['WB'][1][db], fs['XH'])
        for par in range(2):
            for b in range(2):
                for db in range(2):
                    m(VV[par][b][db], fs['XA'][par][b], fs['WB'][2][db])
        if hf == 1:
            for db in range(2): m(HH[db], fs['XH'], fs['WB'][2][db])
        return out
    if opt.get('rbpos', 1) == 0: wpfB()
    a("s_waitcnt lgkmcnt(0)")
    a("s_barrier")
    st.stamp(8)
    if opt.get('stamp'): a("s_waitcnt lgkmcnt(0)")
    for l in reads(0, 0, bA[0], bH[0], bB): a(l)
    if opt.get('rbpos', 1) == 1: wpfB()
    a(f"""
    v_mov_b32 v{cA[1]}, v{bA[1]}
    v_mov_b32 v{cH[1]}, v{bH[1]}
    v_mov_b32 v{cB[0]}, v{bB[0]}
    v_mov_b32 v{cB[1]}, v{bB[1]}
    s_mov_b32 s{sStg}, 0
    s_mov_b32 s{sCnt}, 0
    s_waitcnt lgkmcnt(0)
    s_cmp_eq_u32 s{sHF}, 0
    s_cbranch_scc0 {L('first1')}
    """)
    P = Regs(fr0, frN, 'pk')
    Qp = [[P.alloc(4, 4) for b in range(2)] for par in range(2)]
    Kp = [[P.alloc(4, 4) for sl in range(3)] for par in range(2)]
    Vp = [[P.alloc(6, 2) for db in range(2)] for par in range(2)]
    VHp = P.alloc(4, 2)
    def pk(d, src):
        a(f"v_cvt_pk_bf16_f32 v{d}, v{src}, v{src+1}")
        a(f"v_cvt_pk_bf16_f32 v{d+1}, v{src+2}, v{src+3}")
    upd = [f"s_add_u32 s{sStg}, s{sStg}, {STAGE}",
           f"s_cmp_eq_u32 s{sStg}, {3*STAGE}",
           f"s_cselect_b32 s{sStg}, 0, s{sStg}"]
    upd2 = [f"v_add_u32 v{cA[0]}, s{sStg}, v{bA[0]}",
            f"v_add_u32 v{cH[0]}, s{sStg}, v{bH[0]}",
            f"v_add_u32 v{cB[0]}, s{sStg}, v{bB[0]}",
            f"v_add_u32 v{cB[1]}, s{sStg}, v{bB[1]}",
            f"v_add_u32 v{cA[1]}, s{sStg}, v{bA[1]}",
            f"v_add_u32 v{cH[1]}, s{sStg}, v{bH[1]}"]
    for hf in range(2):
        a.label(L(f'first{hf}'))
        for l in interleave(mfmas(0, hf, True), reads(1, 1, cA[1], cH[1], cB) + upd + upd2): a(l)
        a(f"s_branch {L(f'mid{hf}')}")
        a.label(L(f'loop{hf}'))
        for l in interleave(mfmas(0, hf), reads(1, 1, cA[1], cH[1], cB) + upd + upd2): a(l)
        a.label(L(f'mid{hf}'))
        a("s_waitcnt lgkmcnt(0)")
        a("s_barrier")
        for l in interleave(mfmas(1, hf), reads(0, 0, cA[0], cH[0], cB) + [f"s_add_u32 s{sCnt}, s{sCnt}, 1", f"s_cmp_lt_u32 s{sCnt}, 16"]): a(l)
        a(f"""
        s_waitcnt lgkmcnt(0)
        s_cbranch_scc1 {L(f'loop{hf}')}
        """)
        st.stamp(9)
        if hf == 0:
            for par in range(2):
                for db in range(2):
                    pk(Kp[par][2] + 2*db, KT[par][1][db])
                a(f"ds_write_b128 v{vLane16}, {v(Kp[par][2],4)} offset:{par*1024}")
            for par in range(2):
                for db in range(2):
                    pk(Vp[par][db] + 4, VV[par][1][db])
                    a(f"ds_write_b64 v{vLane8}, {v(Vp[par][db]+4,2)} offset:{2048 + (par*2+db)*512}")
            for par in range(2):
                for db in range(2):
                    pk(Kp[par][0] + 2*db, HH[db])
        else:
            for par in range(2):
                for db in range(2):
                    pk(Kp[par][2] + 2*db, KT[par][1][db])
            for db in range(2):
                pk(VHp + 2*db, HH[db])
                a(f"ds_write_b64 v{vLane8}, {v(VHp+2*db,2)} offset:{4096 + db*512}")
            for par in range(2):
                for db in range(2):
                    pk(Vp[par][db] + 4, VV[par][1][db])
        for par in range(2):
            for db in range(2):
                pk(Kp[par][1] + 2*db, KT[par][0][db])
                for b in range(2):
                    pk(Qp[par][b] + 2*db, QT[par][b][db])
        a("s_waitcnt lgkmcnt(0)")
        a("s_barrier")
        if hf == 0:
            for par in range(2):
                for db in range(2):
                    a(f"ds_read_b64 {v(Vp[par][db],2)}, v{vLane8} offset:{4096 + db*512}")
            a(f"s_branch {L('attn')}")
        else:
            for par in range(2):
                a(f"ds_read_b128 {v(Kp[par][0],4)}, v{vLane16} offset:{par*1024}")
            for par in range(2):
                for db in range(2):
                    a(f"ds_read_b64 {v(Vp[par][db],2)}, v{vLane8} offset:{2048 + (par*2+db)*512}")
    a.label(L('attn'))
    A = Regs(acc0, VV[0][0][0], 'acc')
    combos = [(par, b) for par in range(2) for b in range(2)]
    Sp = {c: A.alloc(4, 4) for c in combos}
    Sc = {c: A.alloc(4, 4) for c in combos}
    Pp = {c: A.alloc(4, 4) for c in combos}
    mx = {c: A.alloc() for c in combos}
    tt = {c: A.alloc() for c in combos}
    OT = {(par, b): VV[par][b] for (par, b) in combos}
    for (par, b) in combos:
        a.mfma(Sc[(par, b)], Kp[par][b+1], Qp[par][b], biasCur)
    for par in range(2):
        a.mfma(Sp[(par, 1)], Kp[par][1], Qp[par][1], biasPrev)
    for par in range(2):
        for db in range(2):
            pk(Vp[par][db] + 2, VV[par][0][db])
    a("s_waitcnt lgkmcnt(4)")
    st.stamp(10)
    for par in range(2):
        a.mfma(Sp[(par, 0)], Kp[par][0], Qp[par][0], biasFirst[par])
    order = [(0, 1), (1, 1), (0, 0), (1, 0)]
    for c in order:
        for r in range(4):
            a(f"v_max_f32 v{Sc[c]+r}, v{Sc[c]+r}, v{Sp[c]+r}")
        for r in range(4):
            a(f"v_cvt_pk_bf16_f32 v{Sc[c]+r}, 0, v{Sc[c]+r}")
        for r in range(4):
            a(f"v_mul_f32 v{Sc[c]+r}, s{sScale}, v{Sc[c]+r}")
        for r in range(4):
            a(f"v_cvt_pk_bf16_f32 v{Sc[c]+r}, 0, v{Sc[c]+r}")
        a(f"v_max_f32 v{mx[c]}, v{Sc[c]}, v{Sc[c]+1}")
        a(f"v_max3_f32 v{mx[c]}, v{Sc[c]+2}, v{Sc[c]+3}, v{mx[c]}")
    def allreduce(val, op):
        for sw in ("v_permlane32_swap_b32", "v_permlane16_swap_b32"):
            for c in order: a(f"v_mov_b32 v{tt[c]}, v{val[c]}")
            a("s_nop 0")
            for c in order: a(f"{sw} v{val[c]}, v{tt[c]}")
            for c in order: a(f"{op} v{val[c]}, v{val[c]}, v{tt[c]}")
    allreduce(mx, "v_max_f32")
    for c in order:
        a(f"v_mul_f32 v{mx[c]}, s{sLog2e}, v{mx[c]}")
    for c in order:
        for r in range(4):
            a(f"v_fma_f32 v{Sc[c]+r}, v{Sc[c]+r}, s{sLog2e}, -v{mx[c]}")
        for r in range(4):
            a(f"v_exp_f32 v{Sc[c]+r}, v{Sc[c]+r}")
    a("s_nop 0")
    for c in order:
        a(f"v_add_f32 v{mx[c]}, v{Sc[c]}, v{Sc[c]+1}")
        a(f"v_add_f32 v{tt[c]}, v{Sc[c]+2}, v{Sc[c]+3}")
        a(f"v_add_f32 v{mx[c]}, v{mx[c]}, v{tt[c]}")
    allreduce(mx, "v_add_f32")
    for c in order:
        a(f"v_rcp_f32 v{mx[c]}, v{mx[c]}")
    a("s_waitcnt lgkmcnt(0)")
    st.stamp(11)
    for c in order:
        par, b = c
        for r in range(4):
            a(f"v_mul_f32 v{Sc[c]+r}, v{Sc[c]+r}, v{mx[c]}")
        pk(Sp[c], Sc[c])
        mp = mPrev if b == 1 else mFirst[par]
        a(f"v_and_b32 v{Pp[c]}, v{Sp[c]}, v{mp}")
        a(f"v_and_b32 v{Pp[c]+1}, v{Sp[c]+1}, v{mp+1}")
        a(f"v_and_b32 v{Pp[c]+2}, v{Sp[c]}, v{mCur}")
        a(f"v_and_b32 v{Pp[c]+3}, v{Sp[c]+1}, v{mCur+1}")
        a("s_nop 1")
        for db in range(2):
            a.mfma(OT[c][db], Vp[par][db] + 2*b, Pp[c], None)
    for n, c in enumerate(order):
        par, b = c
        if n == 3: a("s_nop 1")
        o = Sc[c]
        for db in range(2):
            pk(o + 2*db, OT[c][db])
        a("s_nop 1")
        a(f"v_permlane16_swap_b32 v{o}, v{o+2}")
        a(f"v_permlane16_swap_b32 v{o+1}, v{o+3}")
        so = f"s{sRI}" if par == 1 else "0"
        a(f"buffer_store_dwordx4 {v(o,4)}, v{vO}, {s(SRDO,4)}, {so} offen offset:{b*128}{OSC}")
    st.stamp(5); st.stamp(6, True)
    st.dump(12, sWave, 1, 2)
    sp.end(sWS, sWave)
    a.label(L('end'))
    a("s_endpgm")
    return a.text(), max(U.hi, G.hi), 102
```

```python
from asmlib import *

WS_O = 0
WS_U = 4 << 20
WS_G = 12 << 20

STAGE = 43008
BOFF = 18432
XF = STAGE
CB = 3 * STAGE
CROW = 2056
K1_LDS = CB + 16 * CROW
NEG_BIG = f32bits(-1.0e30)
SCALE = f32bits(32 ** -0.5)
LOG2E = f32bits(1.4426950408889634)
CODE_LINES = 30

def sched(main, fills, per=2, dist=9):
    out = []; pos = {}; fi = 0
    def ready(tag): return tag is None or (tag in pos and len(out) - pos[tag] >= dist)
    for ins, tag in main:
        out.append(ins); pos[tag] = len(out)
        n = 0
        while fi < len(fills) and n < per and ready(fills[fi][1]):
            out.append(fills[fi][0]); fi += 1; n += 1
    while fi < len(fills):
        if not ready(fills[fi][1]):
            need = dist - (len(out) - pos[fills[fi][1]])
            out.append(f"s_nop {need-1}")
            for _ in range(need - 1): out.append(None)
        out.append(fills[fi][0]); fi += 1
    return [o for o in out if o is not None]

def gen_k1(name="k1_kernel", opt=None):
    opt = opt or {}
    a = Asm()
    a.raw(kernel_header(name))
    L = lambda x: f"{name}_{x}"
    sX, sW, sWO, sGW, sWS, sPC = 4, 6, 8, 10, 12, 14
    SRDX, SRDW, SRDO, SRDU, SRDP, SRDG, SRDC = 16, 20, 24, 28, 32, 36, 40
    (sWave, sMB, sHP, sM0, sT0, sT1, sT2, sT3, sKA, sKB, sKB2, sCnt, sStg, sLW, sH, sHF, sS2, sQ,
     sScale, sLog2e, sRI, sXO, sMA, sMBo) = range(44, 68)
    sMSK = 68
    st = Stamper(a, 76, 72, opt.get('stamp'))
    sp = Span(a, opt.get('span'), 0)
    sp.start()
    USC = " sc1" if opt.get('usc1', 1) else ""
    OSC = " sc1" if opt.get('osc1', 1) else ""
    FB = 52
    U = Regs(FB, 256, 'fft')
    vI, vG, vR, vC, vT, vT2, vT3 = 1, 2, 3, 4, 5, 6, 7
    DEAD = U.alloc(36, 4)
    kkf = [DEAD + j for j in range(8)]
    B0 = DEAD + 8
    a0 = DEAD + 12; aW = [DEAD + 13, DEAD + 14]; vXL = DEAD + 15
    a0x = [DEAD + 16 + j for j in range(7)]
    ef = [DEAD + 24, DEAD + 25]
    tmp = DEAD + 28
    tmp0 = U.alloc(8, 4)
    assert tmp0 == tmp + 8
    vCP = 51
    XA = [U.alloc(4, 4) for _ in range(8)]
    D0 = [U.alloc(4, 4) for _ in range(8)]
    umark = U.mark()
    GW = U.alloc(8, 4); GX = [U.alloc(8, 4), U.alloc(8, 4)]
    a(f"""
    s_cmp_ge_u32 s2, 256
    s_cbranch_scc1 {L('end')}
    s_load_dwordx4 s[4:7], s[0:1], 0
    s_load_dwordx2 s[8:9], s[0:1], 16
    s_load_dwordx2 s[10:11], s[0:1], 64
    s_load_dwordx2 s[12:13], s[0:1], 88
    s_getpc_b64 s[14:15]
    """)
    a.label(L('pc'))
    a(f"""
    v_lshrrev_b32 v1, 6, v0
    v_and_b32 v0, 63, v0
    s_and_b32 s{sS2}, s2, 63
    v_readfirstlane_b32 s{sWave}, v1
    s_lshr_b32 s{sQ}, s2, 6
    s_mov_b32 s{SRDC}, s14
    s_and_b32 s{SRDC+1}, s15, 0xffff
    s_mov_b32 s{SRDC+2}, code_end - {L('pc')}
    s_mov_b32 s{SRDC+3}, 0x00020000
    """)
    def code_pf():
        a(f"""
        s_lshr_b32 s{sT0}, s2, 3
        s_and_b32 s{sT0}, s{sT0}, 7
        s_mul_i32 s{sT0}, s{sT0}, {CODE_LINES*128}
        v_lshlrev_b32 v{vCP}, 7, v0
        s_mov_b64 exec, {(1 << CODE_LINES) - 1}
        buffer_load_dword v{vCP}, v{vCP}, {s(SRDC,4)}, s{sT0} offen
        s_mov_b64 exec, -1
        """)
    a(f"s_cmp_lg_u32 s{sWave}, 0")
    a(f"s_cbranch_scc1 {L('nocpf')}")
    code_pf()
    a.label(L('nocpf'))
    a(f"""
    v_lshrrev_b32 v{vT}, 1, v0
    v_xor_b32 v{vT}, s{sWave}, v{vT}
    v_and_b32 v{vT2}, 1, v0
    v_lshlrev_b32 v{vT2}, 4, v{vT2}
    v_lshl_add_u32 v{vXL}, v{vT}, 5, v{vT2}
    s_waitcnt lgkmcnt(0)
    """)
    a.srd(SRDX, sX, 2048 * 1024 * 2)
    TLB = opt.get('tlb', 0)
    if TLB:
        a.srd(SRDW, sW, 1024 * 3072 * 2)
        a.srd_off(SRDU, sWS, 0, 13 << 20)
        a(f"""
        v_lshlrev_b32 v{vT3}, {TLB}, v0
        s_lshl_b32 s{sT0}, s2, 7
        s_cmp_eq_u32 s{sWave}, 1
        s_cbranch_scc0 {L('ntlb1')}
        buffer_load_dword v{vCP}, v{vT3}, {s(SRDW,4)}, s{sT0} offen
        """)
        a.label(L('ntlb1'))
        a(f"""
        v_lshlrev_b32 v{vT3}, {TLB+1}, v0
        s_cmp_eq_u32 s{sWave}, 2
        s_cbranch_scc0 {L('ntlb2')}
        buffer_load_dword v{vCP}, v{vT3}, {s(SRDU,4)}, s{sT0} offen
        """)
        a.label(L('ntlb2'))
    a(f"s_cmp_lt_u32 s{sWave}, 4")
    a(f"s_cbranch_scc1 {L('nogw')}")
    a.srd(SRDP, sGW, 2048)
    a(f"""
    v_lshlrev_b32 v{vT}, 5, v0
    buffer_load_dwordx4 {v(GW,4)}, v{vT}, {s(SRDP,4)}, 0 offen
    buffer_load_dwordx4 {v(GW+4,4)}, v{vT}, {s(SRDP,4)}, 0 offen offset:16
    """)
    a.label(L('nogw'))
    for n in range(4):
        a(f"""
        s_add_u32 s{sT0}, s{sQ}, {n}
        s_and_b32 s{sT0}, s{sT0}, 3
        s_lshl_b32 s{sT0}, s{sT0}, 3
        s_add_u32 s{sT0}, s{sT0}, s{sWave}
        s_lshl_b32 s{sXO}, s{sT0}, 11
        s_add_u32 m0, s{sXO}, {XF}
        s_lshl_b32 s{sXO}, s{sT0}, 6
        s_add_u32 s{sXO}, s{sXO}, s{sS2}
        s_lshl_b32 s{sXO}, s{sXO}, 11
        buffer_load_dwordx4 v{vXL}, {s(SRDX,4)}, s{sXO} offen lds
        buffer_load_dwordx4 v{vXL}, {s(SRDX,4)}, s{sXO} offen offset:1024 lds
        """)
    st.init(sWS)
    st.stamp(0); st.stamp(1, True)
    a.srd(SRDW, sW, 1024 * 3072 * 2)
    a(f"""
    s_and_b32 s{sT0}, s2, 7
    s_lshr_b32 s{sT1}, s2, 3
    s_and_b32 s{sMB}, s{sT0}, 1
    s_lshl_b32 s{sMB}, s{sMB}, 3
    s_and_b32 s{sT2}, s{sT1}, 7
    s_add_u32 s{sMB}, s{sMB}, s{sT2}
    s_lshr_b32 s{sHP}, s{sT0}, 1
    s_lshl_b32 s{sHP}, s{sHP}, 2
    s_lshr_b32 s{sT2}, s{sT1}, 3
    s_add_u32 s{sHP}, s{sHP}, s{sT2}
    s_lshl_b32 s{sM0}, s{sMB}, 7
    v_and_b32 v{vI}, 15, v0
    v_lshrrev_b32 v{vG}, 4, v0
    v_lshrrev_b32 v{vR}, 2, v{vI}
    v_and_b32 v{vC}, 3, v{vI}
    v_lshlrev_b32 v{vT}, 2, v{vG}
    v_cvt_f32_u32 v{kkf[0]}, v{vT}
    """)
    for j in range(1, 8):
        kk = j if j < 4 else 16 + (j - 4)
        a(f"v_add_f32 v{kkf[j]}, {f32bits(float(kk))}, v{kkf[0]}")
    a(f"""
    v_lshrrev_b32 v{vT}, 1, v{vI}
    s_lshl_b32 s{sT0}, s{sQ}, 3
    v_add_u32 v{vT}, s{sT0}, v{vT}
    v_cvt_f32_u32 v{vT}, v{vT}
    v_mul_f32 v{vT}, {f32bits(1/32)}, v{vT}
    v_and_b32 v{vT2}, 1, v{vI}
    v_cvt_f32_u32 v{vT2}, v{vT2}
    v_mul_f32 v{vT2}, {f32bits(0.25)}, v{vT2}
    """)
    for j in range(8):
        a(f"v_fma_f32 v{tmp+j}, v{vT}, v{kkf[j]}, v{vT2}")
    for j in range(8):
        a(f"v_cos_f32 v{tmp+j}, v{tmp+j}")
    a(f"""
    v_lshl_add_u32 v{vT}, v{vG}, 2, v{vR}
    v_lshlrev_b32 v{a0}, 11, v{vT}
    v_and_b32 v{vT2}, 7, v{vT}
    v_lshl_add_u32 v{a0}, v{vT2}, 5, v{a0}
    v_lshl_add_u32 v{a0}, v{vC}, 3, v{a0}
    s_lshl_b32 s{sT0}, s{sWave}, 8
    v_add_u32 v{a0}, s{sT0}, v{a0}
    v_mul_u32_u24 v{aW[0]}, {CROW}, v{vI}
    v_lshl_add_u32 v{aW[0]}, v{vG}, 3, v{aW[0]}
    s_and_b32 s{sT1}, s{sWave}, 1
    s_lshl_b32 s{sT1}, s{sT1}, 5
    s_add_u32 s{sT0}, s{sT0}, {CB}
    s_add_u32 s{sT2}, s{sT0}, s{sT1}
    s_xor_b32 s{sT1}, s{sT1}, 32
    s_add_u32 s{sT1}, s{sT0}, s{sT1}
    v_add_u32 v{aW[1]}, s{sT1}, v{aW[0]}
    v_add_u32 v{aW[0]}, s{sT2}, v{aW[0]}
    """)
    for j in range(4):
        a(f"v_cvt_pk_bf16_f32 v{B0+j}, v{tmp+2*j}, v{tmp+2*j+1}")
    a(f"v_add_u32 v{a0}, {XF}, v{a0}")
    for i in range(1, 8):
        a(f"v_xor_b32 v{a0x[i-1]}, {i*32}, v{a0}")
    def stage0(extra_reads=None, n_extra=0):
        for i in range(8):
            ad = a0 if i == 0 else a0x[i-1]
            for half in range(2):
                a(f"ds_read_b64_tr_b16 {v(XA[i]+2*half,2)}, v{ad} offset:{half*32768}")
        if extra_reads: extra_reads()
        for i in range(8):
            a(f"s_waitcnt lgkmcnt({min(15, 2*(7-i)+n_extra)})")
            a.mfma(D0[i], XA[i], B0, None)
        a("s_nop 3")
        for i in range(8):
            a(f"v_cvt_pk_bf16_f32 v{D0[i]}, v{D0[i]}, v{D0[i]+1}")
            a(f"v_cvt_pk_bf16_f32 v{D0[i]+1}, v{D0[i]+2}, v{D0[i]+3}")
            a(f"ds_write_b64 v{aW[i&1]}, {v(D0[i],2)} offset:{(i>>1)*64}")
    a(f"""
    s_cmp_lt_u32 s{sWave}, 4
    s_cbranch_scc1 {L('compute')}
    """)
    V = Regs(8, FB - 1, 'v')
    vLR, vP = V.alloc(), V.alloc()
    vA = [V.alloc() for _ in range(6)]
    vB = [V.alloc() for _ in range(4)]
    aG = [V.alloc(), V.alloc()]
    gacc = [V.alloc(), V.alloc()]
    vPF = V.alloc(); vPFD = V.alloc()
    aU = V.alloc(); aSR = V.alloc()
    a.srd_off(SRDG, sWS, WS_G, 2048 * 4)
    def rowbase(al):
        be = al >> 1
        if be == 8: return -16 + (al & 1)
        return 64 * (be >> 2) + 32 * (be & 1) + 16 * (al & 1) + ((be >> 1) & 1)
    tabs = []
    for j in range(3):
        x = 0
        for n in range(6): x |= (rowbase(6*j + n) + 16) << (8 * n)
        tabs.append(x)
    a(f"""
    s_sub_u32 s{sLW}, s{sWave}, 4
    v_lshrrev_b32 v{vLR}, 3, v0
    v_and_b32 v{vP}, 7, v0
    s_lshl_b32 s{sT0}, s{sQ}, 3
    s_lshl_b32 s{sT1}, s{sLW}, 1
    s_add_u32 s{sT3}, s{sT0}, s{sT1}
    v_xor_b32 v{vT}, s{sT1}, v0
    v_lshlrev_b32 v{aG[0]}, 5, v{vT}
    v_xor_b32 v{aG[1]}, 32, v{aG[0]}
    s_lshl_b32 s{sT0}, s{sT3}, 11
    s_add_u32 s{sT0}, s{sT0}, {XF}
    v_add_u32 v{aG[0]}, s{sT0}, v{aG[0]}
    s_add_u32 s{sT0}, s{sT0}, 2048
    v_add_u32 v{aG[1]}, s{sT0}, v{aG[1]}
    s_lshl_b32 s{sT3}, s{sT3}, 6
    s_add_u32 s{sT3}, s{sT3}, s{sS2}
    s_lshl_b32 s{sT3}, s{sT3}, 2
    v_mul_u32_u24 v{vT}, 6144, v{vLR}
    s_lshl_b32 s{sT0}, s{sHP}, 7
    s_lshl_b32 s{sT1}, s{sLW}, 11
    s_add_u32 s{sT0}, s{sT0}, s{sT1}
    v_add_u32 v{vT}, s{sT0}, v{vT}
    v_and_b32 v{vT2}, 2, v{vLR}
    v_xor_b32 v{vT2}, v{vT2}, v{vP}
    v_lshl_add_u32 v{vB[0]}, v{vT2}, 4, v{vT}
    v_xor_b32 v{vT2}, 4, v{vT2}
    v_lshl_add_u32 v{vB[1]}, v{vT2}, 4, v{vT}
    v_add_u32 v{vB[1]}, {8*6144 - 1024}, v{vB[1]}
    v_add_u32 v{vB[2]}, {16*6144 - 2048}, v{vB[0]}
    v_add_u32 v{vB[3]}, {16*6144 - 2048}, v{vB[1]}
    s_mov_b32 s{sMSK}, {tabs[0] & 0xffffffff}
    s_mov_b32 s{sMSK+1}, {tabs[0] >> 32}
    s_cmp_eq_u32 s{sLW}, 1
    s_cselect_b32 s{sMSK}, {tabs[1] & 0xffffffff}, s{sMSK}
    s_cselect_b32 s{sMSK+1}, {tabs[1] >> 32}, s{sMSK+1}
    s_cmp_eq_u32 s{sLW}, 2
    s_cselect_b32 s{sMSK}, {tabs[2] & 0xffffffff}, s{sMSK}
    s_cselect_b32 s{sMSK+1}, {tabs[2] >> 32}, s{sMSK+1}
    v_lshlrev_b32 v{vT}, 12, v{vLR}
    v_xor_b32 v{vT2}, v{vP}, v{vLR}
    v_lshl_add_u32 v{vT}, v{vT2}, 4, v{vT}
    s_sub_u32 s{sT1}, s{sM0}, 16
    """)
    for n in range(6):
        a(f"""
        s_bfe_u32 s{sT0}, s{sMSK + (n >> 2)}, {(8 << 16) | (8 * (n & 3))}
        s_add_u32 s{sT0}, s{sT0}, s{sT1}
        s_lshl_b32 s{sT0}, s{sT0}, 11
        s_sub_u32 s{sT0}, s{sT0}, {(n & 3)*1024}
        v_add_u32 v{vA[n]}, s{sT0}, v{vT}
        """)
    a(f"""
    s_mul_i32 s{sMA}, s{sLW}, 6144
    s_lshl_b32 s{sMBo}, s{sLW}, 13
    s_add_u32 s{sMBo}, s{sMBo}, {BOFF}
    s_mov_b32 s{sKA}, 0
    s_mov_b32 s{sKB}, 0
    s_mov_b32 s{sKB2}, {32*6144}
    s_mov_b32 s{sStg}, 0
    """)
    def issue_stage():
        a(f"s_add_u32 m0, s{sMBo}, s{sStg}")
        a(f"s_add_u32 s{sT0}, s{sMBo}, s{sStg}")
        for u in range(4):
            a(f"buffer_load_dwordx4 v{vB[u]}, {s(SRDW,4)}, s{sKB} offen offset:{u*1024} lds")
        a(f"s_add_u32 m0, s{sMA}, s{sStg}")
        a(f"s_add_u32 s{sT1}, s{sMA}, s{sStg}")
        for n in range(4):
            a(f"buffer_load_dwordx4 v{vA[n]}, {s(SRDX,4)}, s{sKA} offen offset:{n*1024} lds")
        a(f"s_add_u32 m0, s{sT1}, 4096")
        a(f"s_add_u32 s{sKB}, s{sKB}, {64*6144}")
        for n in range(4, 6):
            a(f"buffer_load_dwordx4 v{vA[n]}, {s(SRDX,4)}, s{sKA} offen offset:{(n-4)*1024} lds")
        a(f"s_add_u32 m0, s{sT0}, 4096")
        a(f"s_add_u32 s{sKA}, s{sKA}, 128")
        for u in range(4):
            a(f"buffer_load_dwordx4 v{vB[u]}, {s(SRDW,4)}, s{sKB2} offen offset:{u*1024} lds")
        a(f"""
        s_add_u32 s{sKB2}, s{sKB2}, {64*6144}
        s_add_u32 s{sStg}, s{sStg}, {STAGE}
        s_cmp_eq_u32 s{sStg}, {3*STAGE}
        s_cselect_b32 s{sStg}, 0, s{sStg}
        """)
    st.stamp(2)
    a("s_waitcnt vmcnt(0)")
    a("s_barrier")
    st.stamp(3)
    def greads():
        for n in range(2):
            a(f"ds_read_b128 {v(GX[n],4)}, v{aG[n]}")
            a(f"ds_read_b128 {v(GX[n]+4,4)}, v{aG[n]} offset:16")
    if opt.get('stamp'): a("s_waitcnt lgkmcnt(0)")
    stage0(greads, 4)
    a("s_waitcnt lgkmcnt(0)")
    a("s_barrier")
    st.stamp(4)
    for n in range(2):
        a(f"v_mov_b32 v{gacc[n]}, 0")
    for j in range(8):
        a(f"v_lshlrev_b32 v{tmp+2}, 16, v{GW+j}")
        a(f"v_and_b32 v{tmp+3}, 0xffff0000, v{GW+j}")
        for n in range(2):
            t = tmp + 4 + 4*n
            a(f"""
            v_lshlrev_b32 v{t}, 16, v{GX[n]+j}
            v_and_b32 v{t+1}, 0xffff0000, v{GX[n]+j}
            v_mul_f32 v{t}, v{t}, v{tmp+2}
            v_mul_f32 v{t+1}, v{t+1}, v{tmp+3}
            v_cvt_pk_bf16_f32 v{t}, 0, v{t}
            v_cvt_pk_bf16_f32 v{t+1}, 0, v{t+1}
            v_add_f32 v{gacc[n]}, v{gacc[n]}, v{t}
            v_add_f32 v{gacc[n]}, v{gacc[n]}, v{t+1}
            """)
    for k in (8, 4, 2, 1):
        a("s_nop 1")
        for n in range(2):
            a(f"v_add_f32_dpp v{gacc[n]}, v{gacc[n]}, v{gacc[n]} row_ror:{k} row_mask:0xf bank_mask:0xf")
    for sw in ("v_permlane32_swap_b32", "v_permlane16_swap_b32"):
        for n in range(2): a(f"v_mov_b32 v{tmp+n}, v{gacc[n]}")
        a("s_nop 1")
        for n in range(2): a(f"{sw} v{gacc[n]}, v{tmp+n}")
        a("s_nop 1")
        for n in range(2): a(f"v_add_f32 v{gacc[n]}, v{gacc[n]}, v{tmp+n}")
    for n in range(2):
        a(f"""
        v_cvt_pk_bf16_f32 v{gacc[n]}, 0, v{gacc[n]}
        v_mul_f32 v{gacc[n]}, {f32bits(-1.4426950408889634)}, v{gacc[n]}
        v_exp_f32 v{gacc[n]}, v{gacc[n]}
        s_nop 0
        v_add_f32 v{gacc[n]}, 1.0, v{gacc[n]}
        v_rcp_f32 v{gacc[n]}, v{gacc[n]}
        s_nop 0
        v_cvt_pk_bf16_f32 v{gacc[n]}, 0, v{gacc[n]}
        """)
    def gstore():
        a(f"""
        v_mov_b32 v{tmp}, s{sT3}
        s_mov_b64 exec, 1
        buffer_store_dword v{gacc[0]}, v{tmp}, {s(SRDG,4)}, 0 offen
        buffer_store_dword v{gacc[1]}, v{tmp}, {s(SRDG,4)}, 0 offen offset:256
        s_mov_b64 exec, -1
        """)
    a(f"s_cmp_eq_u32 s{sLW}, 3")
    a(f"s_cbranch_scc1 {L('misc')}")
    issue_stage(); issue_stage()
    st.stamp(7)
    a("s_waitcnt vmcnt(14)")
    st.stamp(8)
    a("s_barrier")
    issue_stage()
    a(f"s_mov_b32 s{sCnt}, 0")
    a.label(L('lloop'))
    a("s_waitcnt vmcnt(14)")
    a("s_barrier")
    issue_stage()
    a(f"""
    s_add_u32 s{sCnt}, s{sCnt}, 1
    s_cmp_lt_u32 s{sCnt}, 13
    s_cbranch_scc1 {L('lloop')}
    s_waitcnt vmcnt(14)
    s_barrier
    s_waitcnt vmcnt(0)
    s_barrier
    """)
    gstore()
    a("s_barrier")
    a("s_barrier")
    st.stamp(5); st.stamp(6, True)
    st.dump(12, sWave, 1, 2)
    sp.end(sWS, sWave)
    a(f"s_branch {L('end')}")
    a.label(L('misc'))
    gstore()
    a.srd_off(SRDU, sWS, WS_U, 8 << 20)
    a.srd(SRDP, sWO, 2 << 20)
    a(f"""
    s_lshl_b32 s{sT1}, s{sQ}, 10
    s_add_u32 s{sT1}, s{sT1}, s{sS2}
    s_lshl_b32 s{sT1}, s{sT1}, 11
    v_lshlrev_b32 v{aU}, 4, v0
    v_add_u32 v{aU}, s{sT1}, v{aU}
    v_bfe_u32 v{vT}, v0, 3, 1
    v_bfe_u32 v{vT2}, v0, 5, 1
    v_lshl_add_u32 v{vT}, v{vT2}, 1, v{vT}
    v_xor_b32 v{vT}, v{vT}, v0
    v_lshlrev_b32 v{aSR}, 4, v{vT}
    v_add_u32 v{aSR}, {CB}, v{aSR}
    s_lshr_b32 s{sT0}, s2, 3
    s_lshl_b32 s{sT0}, s{sT0}, 16
    v_lshlrev_b32 v{vPF}, 7, v0
    v_add_u32 v{vPF}, s{sT0}, v{vPF}
    """)
    UPS = opt.get('ups', 3)
    WO0 = opt.get('wo0', 11); WOPS = opt.get('wops', 2)
    wm = opt.get('womall', 4)
    up = 0; wo = 0
    for b in range(-1, 16):
        a("s_barrier")
        k = min(UPS, 32 - up) if b >= opt.get('us0', -1) else 0
        for i in range(k):
            idx = up + i
            a(f"ds_read_b128 {v(XA[i],4)}, v{aSR} offset:{(idx >> 3)*4*CROW + (idx & 7)*1024}")
        for i in range(k):
            idx = up + i
            a(f"s_mov_b32 s{sT0}, {(idx >> 1)*131072}")
            a(f"s_waitcnt lgkmcnt({k - 1 - i})")
            a(f"buffer_store_dwordx4 {v(XA[i],4)}, v{aU}, {s(SRDU,4)}, s{sT0} offen offset:{(idx & 1)*1024}{USC}")
        up += k
        if b == wm:
            a(f"""
            s_lshl_b32 s{sT0}, s2, 13
            v_lshlrev_b32 v{vT}, 7, v0
            buffer_load_dword v{vT2}, v{vT}, {s(SRDP,4)}, s{sT0} offen
            """)
        if b >= WO0 and opt.get('wopf', 1):
            for i in range(min(WOPS, 8 - wo)):
                a(f"s_mov_b32 s{sT0}, {wo*8192}")
                a(f"buffer_load_dword v{vPFD}, v{vPF}, {s(SRDP,4)}, s{sT0} offen")
                wo += 1
        if b == 13: code_pf()
    assert up == 32
    a("s_barrier")
    st.stamp(5); st.stamp(6, True)
    st.dump(12, sWave, 1, 2)
    sp.end(sWS, sWave)
    a(f"s_branch {L('end')}")
    a.label(L('compute'))
    U.release(umark)
    V = Regs(8, FB - 1, 'v')
    bA = [V.alloc(), V.alloc()]; bH = [V.alloc(), V.alloc()]; bB = [V.alloc(), V.alloc()]
    cA = [V.alloc(), V.alloc()]; cH = [V.alloc(), V.alloc()]; cB = [V.alloc(), V.alloc()]
    vO = V.alloc(); vLane16 = V.alloc(); vLane8 = V.alloc()
    mCur = V.alloc(2, 2); mPrev = V.alloc(2, 2); mFirst = [V.alloc(2, 2), V.alloc(2, 2)]
    biasCur = V.alloc(4, 4); biasPrev = V.alloc(4, 4); biasFirst = [V.alloc(4, 4), V.alloc(4, 4)]
    vWP = V.alloc(); vWD = V.alloc(2)
    G = Regs(FB, 256, 'gemm')
    QT = [[[G.alloc(4, 4) for db in range(2)] for b in range(2)] for par in range(2)]
    KT = [[[G.alloc(4, 4) for db in range(2)] for b in range(2)] for par in range(2)]
    VV = [[[G.alloc(4, 4) for db in range(2)] for b in range(2)] for par in range(2)]
    HH = [G.alloc(4, 4) for db in range(2)]
    acc0 = QT[0][0][0]
    F = [None, None]; fr = [0, 0]
    for f in (1, 0):
        fr[f] = G.mark()
        F[f] = dict(XA=[[G.alloc(4, 4) for b in range(2)] for par in range(2)], XH=G.alloc(4, 4),
                    WB=[[G.alloc(4, 4) for db in range(2)] for seg in range(3)])
    COS = [U.alloc(4, 4) for _ in range(2)]
    SIN = [U.alloc(4, 4) for _ in range(2)]
    NSIN = [U.alloc(4, 4) for _ in range(2)]
    TWC = [[U.alloc(4) for eb in range(2)] for db2 in range(2)]
    TWS = [[U.alloc(4) for eb in range(2)] for db2 in range(2)]
    a1 = [U.alloc(), U.alloc()]; aSW = U.alloc()
    a.srd_off(SRDO, sWS, WS_O, 4 << 20)
    a(f"""
    s_mov_b32 s{sRI}, 131072
    v_lshl_add_u32 v{vT}, v{vR}, 3, v{vC}
    v_cvt_f32_u32 v{ef[0]}, v{vT}
    v_add_f32 v{ef[1]}, 4.0, v{ef[0]}
    """)
    for eb in range(2):
        a(f"v_mul_f32 v{vT}, {f32bits(1/32)}, v{ef[eb]}")
        for j in range(8):
            a(f"v_mul_f32 v{tmp+j}, v{vT}, v{kkf[j]}")
        for j in range(8):
            a(f"v_sin_f32 v{tmp+8+j}, v{tmp+j}")
        for j in range(8):
            a(f"v_cos_f32 v{tmp+j}, v{tmp+j}")
        a("s_nop 0")
        for j in range(4):
            a(f"v_cvt_pk_bf16_f32 v{SIN[eb]+j}, v{tmp+8+2*j}, v{tmp+8+2*j+1}")
            a(f"v_cvt_pk_bf16_f32 v{COS[eb]+j}, v{tmp+2*j}, v{tmp+2*j+1}")
            a(f"v_xor_b32 v{NSIN[eb]+j}, 0x80008000, v{SIN[eb]+j}")
    for eb in range(2):
        a(f"v_mul_f32 v{vT}, {f32bits(1/1024)}, v{ef[eb]}")
        for db2 in range(2):
            for r in range(4):
                a(f"v_mul_f32 v{TWC[db2][eb]+r}, v{vT}, v{kkf[4*db2+r]}")
            for r in range(4):
                a(f"v_sin_f32 v{TWS[db2][eb]+r}, v{TWC[db2][eb]+r}")
            for r in range(4):
                a(f"v_cos_f32 v{TWC[db2][eb]+r}, v{TWC[db2][eb]+r}")
    a(f"""
    ; W prefetch into this XCD's L2: rows 32*idx + 8*wave + l/12 (+4), line l%12
    v_mul_u32_u24 v{vT}, 43, v0
    v_lshrrev_b32 v{vT}, 9, v{vT}
    v_mul_u32_u24 v{vT2}, 12, v{vT}
    v_sub_u32 v{vT2}, v0, v{vT2}
    v_mul_u32_u24 v{vWP}, 6144, v{vT}
    v_lshrrev_b32 v{vT}, 2, v{vT2}
    v_lshl_add_u32 v{vWP}, v{vT}, 11, v{vWP}
    v_and_b32 v{vT}, 3, v{vT2}
    v_lshl_add_u32 v{vWP}, v{vT}, 7, v{vWP}
    s_lshr_b32 s{sT0}, s2, 3
    s_lshl_b32 s{sT0}, s{sT0}, 2
    s_add_u32 s{sT0}, s{sT0}, s{sWave}
    s_mul_i32 s{sT0}, s{sT0}, {8*6144}
    s_lshr_b32 s{sT1}, s{sHP}, 2
    s_lshl_b32 s{sT1}, s{sT1}, 9
    s_add_u32 s{sT0}, s{sT0}, s{sT1}
    v_add_u32 v{vWP}, s{sT0}, v{vWP}
    s_and_b32 s{sH}, s{sWave}, 1
    s_lshr_b32 s{sHF}, s{sWave}, 1
    s_mov_b32 s{sScale}, {SCALE}
    s_mov_b32 s{sLog2e}, {LOG2E}
    v_lshl_add_u32 v{vT}, v{vG}, 2, v{vR}
    v_lshlrev_b32 v{a1[0]}, 6, v{vT}
    v_lshl_add_u32 v{a1[0]}, v{vC}, 3, v{a1[0]}
    v_and_b32 v{vT2}, 1, v{vG}
    v_lshl_add_u32 v{a1[0]}, v{vT2}, 5, v{a1[0]}
    v_xor_b32 v{a1[1]}, 32, v{a1[0]}
    s_mul_i32 s{sT0}, s{sWave}, {4*CROW}
    s_add_u32 s{sT0}, s{sT0}, {CB}
    v_add_u32 v{a1[0]}, s{sT0}, v{a1[0]}
    v_add_u32 v{a1[1]}, s{sT0}, v{a1[1]}
    v_lshrrev_b32 v{vT}, 1, v{vC}
    v_and_b32 v{vT2}, 1, v{vR}
    v_lshl_add_u32 v{vT}, v{vT2}, 1, v{vT}
    v_xor_b32 v{vT}, v{vT}, v{vG}
    v_lshl_add_u32 v{aSW}, v{vR}, 3, v{vC}
    v_lshlrev_b32 v{aSW}, 6, v{aSW}
    v_lshl_add_u32 v{aSW}, v{vT}, 4, v{aSW}
    v_add_u32 v{aSW}, s{sT0}, v{aSW}
    v_and_b32 v{vT}, 7, v{vI}
    v_xor_b32 v{vT}, v{vT}, v{vG}
    v_lshlrev_b32 v{vT}, 4, v{vT}
    v_lshl_add_u32 v{vT}, v{vI}, 7, v{vT}
    s_lshl_b32 s{sT0}, s{sHF}, 13
    v_add_u32 v{bA[0]}, s{sT0}, v{vT}
    v_xor_b32 v{bA[1]}, 64, v{bA[0]}
    v_add_u32 v{bH[0]}, 16384, v{vT}
    v_xor_b32 v{bH[1]}, 64, v{bH[0]}
    v_lshl_add_u32 v{bB[0]}, v{vG}, 3, v{vR}
    v_lshlrev_b32 v{bB[0]}, 7, v{bB[0]}
    v_and_b32 v{vT}, 1, v{vG}
    v_lshlrev_b32 v{vT}, 2, v{vT}
    v_and_b32 v{vT2}, 2, v{vR}
    v_or_b32 v{vT}, v{vT}, v{vT2}
    v_lshrrev_b32 v{vT2}, 1, v{vC}
    s_lshl_b32 s{sT0}, s{sH}, 2
    v_add_u32 v{vT2}, s{sT0}, v{vT2}
    v_xor_b32 v{vT}, v{vT}, v{vT2}
    v_lshl_add_u32 v{bB[0]}, v{vT}, 4, v{bB[0]}
    v_and_b32 v{vT}, 1, v{vC}
    v_lshl_add_u32 v{bB[0]}, v{vT}, 3, v{bB[0]}
    v_add_u32 v{bB[0]}, {BOFF}, v{bB[0]}
    v_xor_b32 v{bB[1]}, 32, v{bB[0]}
    v_lshlrev_b32 v{vO}, 18, v{vI}
    v_and_b32 v{vT}, 1, v{vG}
    v_lshl_add_u32 v{vO}, v{vT}, 5, v{vO}
    v_lshrrev_b32 v{vT}, 1, v{vG}
    v_lshl_add_u32 v{vO}, v{vT}, 4, v{vO}
    s_lshl_b32 s{sT0}, s{sHP}, 13
    s_lshl_b32 s{sT1}, s{sMB}, 9
    s_add_u32 s{sT0}, s{sT0}, s{sT1}
    s_lshl_b32 s{sT1}, s{sHF}, 8
    s_add_u32 s{sT0}, s{sT0}, s{sT1}
    s_lshl_b32 s{sT1}, s{sH}, 6
    s_add_u32 s{sT0}, s{sT0}, s{sT1}
    v_add_u32 v{vO}, s{sT0}, v{vO}
    s_mul_i32 s{sT0}, s{sH}, 5120
    v_lshlrev_b32 v{vLane16}, 4, v0
    v_add_u32 v{vLane16}, s{sT0}, v{vLane16}
    v_lshlrev_b32 v{vLane8}, 3, v0
    v_add_u32 v{vLane8}, s{sT0}, v{vLane8}
    """)
    a(f"v_lshlrev_b32 v{vT}, 2, v{vG}")
    a(f"v_sub_u32 v{vT}, v{vI}, v{vT}")
    a(f"v_mov_b32 v{vT3}, {NEG_BIG}")
    MS = s(sMSK, 2)
    for r in range(4):
        a(f"v_subrev_u32 v{vT2}, {r}, v{vT}")
        a(f"v_cmp_gt_u32 vcc, 8, v{vT2}")
        a(f"v_cmp_gt_i32 {MS}, -8, v{vT2}")
        a("s_nop 0")
        a(f"v_cndmask_b32_e64 v{biasCur+r}, v{vT3}, 0, vcc")
        a(f"v_cndmask_b32_e64 v{biasPrev+r}, v{vT3}, 0, {MS}")
        a(f"v_mov_b32 v{biasFirst[1]+r}, v{biasPrev+r}")
        a(f"v_mov_b32 v{biasFirst[0]+r}, v{biasPrev+r}")
    a(f"""
    s_cmp_lg_u32 s{sHF}, 0
    s_cbranch_scc1 {L('maskdone')}
    v_cmp_gt_u32 {MS}, 2, v{vG}
    """)
    for r in range(4):
        a(f"v_subrev_u32 v{vT2}, {r}, v{vT}")
        a(f"v_cmp_gt_i32 vcc, 0, v{vT2}")
        a("s_nop 1")
        a(f"s_and_b64 vcc, vcc, {MS}")
        a("s_nop 1")
        a(f"v_cndmask_b32_e64 v{biasFirst[0]+r}, v{vT3}, 0, vcc")
    a(f"""
    s_cmp_lg_u32 s{sMB}, 0
    s_cbranch_scc1 {L('maskdone')}
    """)
    for r in range(4):
        a(f"v_mov_b32 v{biasFirst[0]+r}, v{vT3}")
        a(f"v_mov_b32 v{biasFirst[1]+r}, v{vT3}")
    a.label(L('maskdone'))
    def mk_mask(m, bias):
        for h2 in range(2):
            a(f"v_ashrrev_i32 v{vT}, 31, v{bias+2*h2}")
            a(f"v_ashrrev_i32 v{vT2}, 31, v{bias+2*h2+1}")
            a(f"v_and_b32 v{vT}, 0xffff, v{vT}")
            a(f"v_and_b32 v{vT2}, 0xffff0000, v{vT2}")
            a(f"v_or_b32 v{vT}, v{vT}, v{vT2}")
            a(f"v_not_b32 v{m+h2}, v{vT}")
    mk_mask(mCur, biasCur); mk_mask(mPrev, biasPrev); mk_mask(mFirst[0], biasFirst[0]); mk_mask(mFirst[1], biasFirst[1])
    st.stamp(2)
    a("s_waitcnt vmcnt(0)")
    if opt.get('wpfpos', 4) == 4: a("s_barrier")
    a(f"""
    s_mov_b32 s{sT0}, {4*6144}
    s_mov_b32 exec_hi, 0xffff
    buffer_load_dword v{vWD}, v{vWP}, {s(SRDW,4)}, 0 offen
    buffer_load_dword v{vWD+1}, v{vWP}, {s(SRDW,4)}, s{sT0} offen
    s_mov_b32 exec_hi, -1
    """)
    if opt.get('wpfpos', 4) == 3: a("s_barrier")
    st.stamp(3)
    if opt.get('stamp'): a("s_waitcnt lgkmcnt(0)")
    stage0()
    a("s_waitcnt lgkmcnt(0)")
    a("s_barrier")
    st.stamp(4)
    if opt.get('stamp'): a("s_waitcnt lgkmcnt(0)")
    AR2 = [U.alloc(4, 4) for _ in range(4)]
    Cfs = [[[XA[0], XA[1]], [XA[2], XA[3]]], [[XA[4], XA[5]], [XA[6], XA[7]]]]
    for task in range(2):
        for ri in range(2):
            for db2 in range(2):
                for half in range(2):
                    a(f"ds_read_b64_tr_b16 {v(Cfs[task][ri][db2]+2*half,2)}, v{a1[db2]} offset:{half*1024 + (2*task+ri)*CROW}")
    TB = [DEAD + 4*j for j in range(8)]
    Ts = [D0, TB]
    As = [AR2, [XA[0], XA[1], XA[2], XA[3]]]
    Os = [[XA[4], XA[5], XA[6], XA[7]], AR2]
    def mf(d, x, y, c): return f"v_mfma_f32_16x16x32_bf16 {v(d,4)}, {v(x,4)}, {v(y,4)}, {'0' if c is None else v(c,4)}"
    def S1(task):
        T = Ts[task]; Cf = Cfs[task]; out = []
        for db2 in range(2):
            for eb in range(2):
                out.append(mf(T[2*db2+eb], Cf[0][db2], COS[eb], None))
                out.append(mf(T[4+2*db2+eb], Cf[0][db2], NSIN[eb], None))
        for db2 in range(2):
            for eb in range(2):
                out.append(mf(T[2*db2+eb], Cf[1][db2], SIN[eb], T[2*db2+eb]))
                out.append(mf(T[4+2*db2+eb], Cf[1][db2], COS[eb], T[4+2*db2+eb]))
        return out
    def TW(task):
        T = Ts[task]; A_ = As[task]; out = []
        for db2 in range(2):
            for eb in range(2):
                trb, tib = T[2*db2+eb], T[4+2*db2+eb]
                for r in range(4):
                    out.append(f"v_mul_f32 v{tmp0+r}, v{trb+r}, v{TWC[db2][eb]+r}")
                    out.append(f"v_mul_f32 v{tmp0+4+r}, v{trb+r}, v{TWS[db2][eb]+r}")
                for r in range(4):
                    out.append(f"v_fma_f32 v{tmp0+r}, v{tib+r}, v{TWS[db2][eb]+r}, v{tmp0+r}")
                    out.append(f"v_fma_f32 v{tmp0+4+r}, -v{tib+r}, v{TWC[db2][eb]+r}, v{tmp0+4+r}")
                for h2 in range(2):
                    out.append(f"v_cvt_pk_bf16_f32 v{A_[eb]+2*db2+h2}, v{tmp0+2*h2}, v{tmp0+2*h2+1}")
                    out.append(f"v_cvt_pk_bf16_f32 v{A_[2+eb]+2*db2+h2}, v{tmp0+4+2*h2}, v{tmp0+4+2*h2+1}")
        return out
    def S2(task):
        T = Ts[task]; A_ = As[task]; out = []
        for eb2 in range(2):
            for eb in range(2):
                out.append(mf(T[2*eb+eb2], A_[eb], COS[eb2], None))
                out.append(mf(T[4+2*eb+eb2], A_[eb], SIN[eb2], None))
        for eb2 in range(2):
            for eb in range(2):
                out.append(mf(T[2*eb+eb2], A_[2+eb], NSIN[eb2], T[2*eb+eb2]))
                out.append(mf(T[4+2*eb+eb2], A_[2+eb], COS[eb2], T[4+2*eb+eb2]))
        return out
    def OUT(task):
        T = Ts[task]; out = []; k = 0
        for eb2 in range(2):
            for ri in range(2):
                o = Os[task][k]; k += 1
                for eb in range(2):
                    w = T[4*ri+2*eb+eb2]
                    out.append(f"v_cvt_pk_bf16_f32 v{o+2*eb}, v{w}, v{w+1}")
                    out.append(f"v_cvt_pk_bf16_f32 v{o+2*eb+1}, v{w+2}, v{w+3}")
                out.append(f"ds_write_b128 v{aSW}, {v(o,4)} offset:{(2*task+ri)*2048 + eb2*256}")
        return out
    def iln(main, fill, n, skip=0):
        out = []; fi = 0
        for i, m in enumerate(main):
            out.append(m)
            if i >= skip:
                for _ in range(n):
                    if fi < len(fill):
                        out.append(fill[fi]); fi += 1
        return out + fill[fi:]
    a("s_waitcnt lgkmcnt(12)")
    s1a = S1(0)
    for l in s1a[:8]: a(l)
    a("s_waitcnt lgkmcnt(8)")
    for l in s1a[8:]: a(l)
    a("s_waitcnt lgkmcnt(0)")
    for l in iln(S1(1), TW(0), 6, 2): a(l)
    a("s_nop 1")
    for l in iln(S2(0), TW(1), 6, 2): a(l)
    a("s_nop 1")
    for l in iln(S2(1), OUT(0), 2, 4): a(l)
    a("s_nop 3")
    for l in OUT(1): a(l)
    st.stamp(7)

    def reads(f, kh, aA, aH, aB):
        out = []
        fs = F[f]
        def rb(seg, db):
            r = fs['WB'][seg][db]
            for half in range(2):
                out.append(f"ds_read_b64_tr_b16 {v(r+2*half,2)}, v{aB[db]} offset:{kh*4096 + seg*8192 + half*512}")
        def ra(par, b):
            out.append(f"ds_read_b128 {v(fs['XA'][par][b],4)}, v{aA} offset:{(par*2 + b)*2048}")
        ra(0, 0); rb(0, 0); rb(0, 1); ra(0, 1); ra(1, 0); ra(1, 1)
        rb(1, 0); rb(1, 1)
        out.append(f"ds_read_b128 {v(fs['XH'],4)}, v{aH}")
        rb(2, 0); rb(2, 1)
        return out
    def mparts(f, hf, first=False):
        fs = F[f]
        def m(d, x, y): return f"v_mfma_f32_16x16x32_bf16 {v(d,4)}, {v(x,4)}, {v(y,4)}, {'0' if first else v(d,4)}"
        idx = [(par, b, db) for par in range(2) for b in range(2) for db in range(2)]
        Q = [(m(QT[p][b][d], fs['WB'][0][d], fs['XA'][p][b]), ('Q', p, b, d)) for p, b, d in idx]
        K = [(m(KT[p][b][d], fs['WB'][1][d], fs['XA'][p][b]), ('K', p, b, d)) for p, b, d in idx]
        Vv = [(m(VV[p][b][d], fs['XA'][p][b], fs['WB'][2][d]), ('V', p, b, d)) for p, b, d in idx]
        if hf == 0: H = [(m(HH[d], fs['WB'][1][d], fs['XH']), ('H', d)) for d in range(2)]
        else: H = [(m(HH[d], fs['XH'], fs['WB'][2][d]), ('H', d)) for d in range(2)]
        return Q, K, Vv, H
    def mfmas(f, hf, first=False):
        Q, K, Vv, H = mparts(f, hf, first)
        seq = Q + K + H + Vv if hf == 0 else Q + K + Vv + H
        return [x[0] for x in seq]
    a("s_waitcnt lgkmcnt(0)")
    a("s_barrier")
    st.stamp(8)
    if opt.get('stamp'): a("s_waitcnt lgkmcnt(0)")
    for l in reads(0, 0, bA[0], bH[0], bB): a(l)
    a(f"""
    v_mov_b32 v{cA[1]}, v{bA[1]}
    v_mov_b32 v{cH[1]}, v{bH[1]}
    v_mov_b32 v{cB[0]}, v{bB[0]}
    v_mov_b32 v{cB[1]}, v{bB[1]}
    s_mov_b32 s{sStg}, 0
    s_mov_b32 s{sCnt}, 0
    s_waitcnt lgkmcnt(0)
    s_cmp_eq_u32 s{sHF}, 0
    s_cbranch_scc0 {L('first1')}
    """)
    P0 = Regs(fr[0], 256, 'pk0')
    Kp = [[P0.alloc(4, 4) for sl in range(3)] for par in range(2)]
    Vp = [[P0.alloc(6, 2) for db in range(2)] for par in range(2)]
    VHp = P0.alloc(4, 2)
    P1 = Regs(fr[1], fr[0], 'pk1')
    Qp = [[P1.alloc(4, 4) for b in range(2)] for par in range(2)]
    def pkl(d, src, tag):
        return [(f"v_cvt_pk_bf16_f32 v{d}, v{src}, v{src+1}", tag), (f"v_cvt_pk_bf16_f32 v{d+1}, v{src+2}, v{src+3}", tag)]
    def pk(d, src):
        for l, _ in pkl(d, src, None): a(l)
    upd = [f"s_add_u32 s{sStg}, s{sStg}, {STAGE}",
           f"s_cmp_eq_u32 s{sStg}, {3*STAGE}",
           f"s_cselect_b32 s{sStg}, 0, s{sStg}"]
    upd2 = [f"v_add_u32 v{cA[0]}, s{sStg}, v{bA[0]}",
            f"v_add_u32 v{cH[0]}, s{sStg}, v{bH[0]}",
            f"v_add_u32 v{cB[0]}, s{sStg}, v{bB[0]}",
            f"v_add_u32 v{cB[1]}, s{sStg}, v{bB[1]}",
            f"v_add_u32 v{cA[1]}, s{sStg}, v{bA[1]}",
            f"v_add_u32 v{cH[1]}, s{sStg}, v{bH[1]}"]
    for hf in range(2):
        a.label(L(f'first{hf}'))
        for l in interleave(mfmas(0, hf, True), reads(1, 1, cA[1], cH[1], cB) + upd + upd2): a(l)
        a.label(L(f'loop{hf}'))
        a("s_waitcnt lgkmcnt(0)")
        a("s_barrier")
        for l in interleave(mfmas(1, hf), reads(0, 0, cA[0], cH[0], cB) + [f"s_add_u32 s{sCnt}, s{sCnt}, 1"]): a(l)
        a("s_waitcnt lgkmcnt(0)")
        body = interleave(mfmas(0, hf), reads(1, 1, cA[1], cH[1], cB) + upd + upd2)
        for l in body: a(l)
        a(f"s_cmp_lt_u32 s{sCnt}, 15")
        a(f"s_cbranch_scc1 {L(f'loop{hf}')}")
        a("s_waitcnt lgkmcnt(0)")
        a("s_barrier")
        st.stamp(9)
        Q, K, Vv, H = mparts(1, hf)
        K1 = [x for x in K if x[1][2] == 1]; K0 = [x for x in K if x[1][2] == 0]
        V1 = [x for x in Vv if x[1][2] == 1]; V0 = [x for x in Vv if x[1][2] == 0]
        fills = []
        if hf == 0:
            seq = K1 + V1 + H + K0 + Q + V0
            for par in range(2):
                for db in range(2): fills += pkl(Kp[par][2] + 2*db, KT[par][1][db], ('K', par, 1, db))
                fills.append((f"ds_write_b128 v{vLane16}, {v(Kp[par][2],4)} offset:{par*1024}", None))
            for par in range(2):
                for db in range(2):
                    fills += pkl(Vp[par][db] + 4, VV[par][1][db], ('V', par, 1, db))
                    fills.append((f"ds_write_b64 v{vLane8}, {v(Vp[par][db]+4,2)} offset:{2048 + (par*2+db)*512}", None))
            for par in range(2):
                for db in range(2): fills += pkl(Kp[par][0] + 2*db, HH[db], ('H', db))
        else:
            seq = H + K1 + V1 + K0 + Q + V0
            for db in range(2):
                fills += pkl(VHp + 2*db, HH[db], ('H', db))
                fills.append((f"ds_write_b64 v{vLane8}, {v(VHp+2*db,2)} offset:{4096 + db*512}", None))
            for par in range(2):
                for db in range(2): fills += pkl(Kp[par][2] + 2*db, KT[par][1][db], ('K', par, 1, db))
            for par in range(2):
                for db in range(2): fills += pkl(Vp[par][db] + 4, VV[par][1][db], ('V', par, 1, db))
        for par in range(2):
            for db in range(2): fills += pkl(Kp[par][1] + 2*db, KT[par][0][db], ('K', par, 0, db))
        for l in sched(seq, fills): a(l)
        a("s_waitcnt lgkmcnt(0)")
        a("s_barrier")
        if hf == 0:
            for par in range(2):
                for db in range(2):
                    a(f"ds_read_b64 {v(Vp[par][db],2)}, v{vLane8} offset:{4096 + db*512}")
            a(f"s_branch {L('attn')}")
        else:
            for par in range(2):
                a(f"ds_read_b128 {v(Kp[par][0],4)}, v{vLane16} offset:{par*1024}")
            for par in range(2):
                for db in range(2):
                    a(f"ds_read_b64 {v(Vp[par][db],2)}, v{vLane8} offset:{2048 + (par*2+db)*512}")
    a.label(L('attn'))
    for par in range(2):
        for b in (1, 0):
            for db in range(2):
                pk(Qp[par][b] + 2*db, QT[par][b][db])
    A = Regs(acc0, VV[0][0][0], 'acc')
    combos = [(par, b) for par in range(2) for b in range(2)]
    Sp = {c: A.alloc(4, 4) for c in combos}
    Sc = {c: A.alloc(4, 4) for c in combos}
    Pp = {c: A.alloc(4, 4) for c in combos}
    mx = {c: A.alloc() for c in combos}
    tt = {c: A.alloc() for c in combos}
    OT = {(par, b): VV[par][b] for (par, b) in combos}
    a("s_nop 1")
    for par in range(2):
        a.mfma(Sc[(par, 1)], Kp[par][2], Qp[par][1], biasCur)
        a.mfma(Sp[(par, 1)], Kp[par][1], Qp[par][1], biasPrev)
    for par in range(2):
        a.mfma(Sc[(par, 0)], Kp[par][1], Qp[par][0], biasCur)
    a("s_waitcnt lgkmcnt(4)")
    st.stamp(10)
    for par in range(2):
        a.mfma(Sp[(par, 0)], Kp[par][0], Qp[par][0], biasFirst[par])
    for par in range(2):
        for db in range(2):
            pk(Vp[par][db] + 2, VV[par][0][db])
    order = [(0, 1), (1, 1), (0, 0), (1, 0)]
    for c in order:
        for r in range(4):
            a(f"v_max_f32 v{Sc[c]+r}, v{Sc[c]+r}, v{Sp[c]+r}")
        for r in range(4):
            a(f"v_cvt_pk_bf16_f32 v{Sc[c]+r}, 0, v{Sc[c]+r}")
        for r in range(4):
            a(f"v_mul_f32 v{Sc[c]+r}, s{sScale}, v{Sc[c]+r}")
        for r in range(4):
            a(f"v_cvt_pk_bf16_f32 v{Sc[c]+r}, 0, v{Sc[c]+r}")
        a(f"v_max_f32 v{mx[c]}, v{Sc[c]}, v{Sc[c]+1}")
        a(f"v_max3_f32 v{mx[c]}, v{Sc[c]+2}, v{Sc[c]+3}, v{mx[c]}")
    def allreduce(val, op):
        for sw in ("v_permlane32_swap_b32", "v_permlane16_swap_b32"):
            for c in order: a(f"v_mov_b32 v{tt[c]}, v{val[c]}")
            a("s_nop 0")
            for c in order: a(f"{sw} v{val[c]}, v{tt[c]}")
            for c in order: a(f"{op} v{val[c]}, v{val[c]}, v{tt[c]}")
    allreduce(mx, "v_max_f32")
    for c in order:
        a(f"v_mul_f32 v{mx[c]}, s{sLog2e}, v{mx[c]}")
    for c in order:
        for r in range(4):
            a(f"v_fma_f32 v{Sc[c]+r}, v{Sc[c]+r}, s{sLog2e}, -v{mx[c]}")
        for r in range(4):
            a(f"v_exp_f32 v{Sc[c]+r}, v{Sc[c]+r}")
    a("s_nop 0")
    for c in order:
        a(f"v_add_f32 v{mx[c]}, v{Sc[c]}, v{Sc[c]+1}")
        a(f"v_add_f32 v{tt[c]}, v{Sc[c]+2}, v{Sc[c]+3}")
        a(f"v_add_f32 v{mx[c]}, v{mx[c]}, v{tt[c]}")
    allreduce(mx, "v_add_f32")
    for c in order:
        a(f"v_rcp_f32 v{mx[c]}, v{mx[c]}")
    a("s_waitcnt lgkmcnt(0)")
    st.stamp(11)
    for c in order:
        par, b = c
        for r in range(4):
            a(f"v_mul_f32 v{Sc[c]+r}, v{Sc[c]+r}, v{mx[c]}")
        pk(Sp[c], Sc[c])
        mp = mPrev if b == 1 else mFirst[par]
        a(f"v_and_b32 v{Pp[c]}, v{Sp[c]}, v{mp}")
        a(f"v_and_b32 v{Pp[c]+1}, v{Sp[c]+1}, v{mp+1}")
        a(f"v_and_b32 v{Pp[c]+2}, v{Sp[c]}, v{mCur}")
        a(f"v_and_b32 v{Pp[c]+3}, v{Sp[c]+1}, v{mCur+1}")
        a("s_nop 1")
        for db in range(2):
            a.mfma(OT[c][db], Vp[par][db] + 2*b, Pp[c], None)
    for n, c in enumerate(order):
        par, b = c
        o = Sc[c]
        for db in range(2):
            pk(o + 2*db, OT[c][db])
        a("s_nop 1")
        a(f"v_permlane16_swap_b32 v{o}, v{o+2}")
        a(f"v_permlane16_swap_b32 v{o+1}, v{o+3}")
        so = f"s{sRI}" if par == 1 else "0"
        a(f"buffer_store_dwordx4 {v(o,4)}, v{vO}, {s(SRDO,4)}, {so} offen offset:{b*128}{OSC}")
    st.stamp(5); st.stamp(6, True)
    st.dump(12, sWave, 1, 2)
    sp.end(sWS, sWave)
    a.label(L('end'))
    a("s_endpgm")
    return a.text(), max(U.hi, G.hi, P0.hi), 102
```

```python
from asmlib import *
from k1p import WS_O, WS_U, WS_G

STAGE = 24576
NBUF = 5
YB = NBUF * STAGE
K2_LDS = YB + 32768

def gen_k2(name="k2_kernel", opt=None):
    opt = opt or {}
    a = Asm()
    a.raw(kernel_header(name))
    L = lambda x: f"{name}_{x}"
    sWO, sOUT, sWS = 4, 6, 8
    SRDO, SRDWO, SRDU, SRDG, SRDOUT = 12, 16, 20, 24, 28
    sWave, sCP, sCB, sT0, sT1, sT2, sLW, sStg, sCnt, sU0, sCLS, sCH, sMA, sMB_, sKC = range(32, 47)
    st = Stamper(a, 76, 72, opt.get('stamp'))
    sp = Span(a, opt.get('span'), 65536)
    sp.start()
    a(f"""
    s_cmp_ge_u32 s2, 256
    s_cbranch_scc1 {L('end')}
    s_load_dwordx2 s[4:5], s[0:1], 16
    s_load_dwordx2 s[6:7], s[0:1], 72
    s_load_dwordx2 s[8:9], s[0:1], 88
    v_lshrrev_b32 v1, 6, v0
    v_and_b32 v0, 63, v0
    s_and_b32 s{sT0}, s2, 7
    v_readfirstlane_b32 s{sWave}, v1
    s_lshr_b32 s{sT1}, s2, 3
    """)
    if opt.get('tile', 2) == 2:
        a(f"""
        s_lshl_b32 s{sCP}, s{sT0}, 1
        s_and_b32 s{sT2}, s{sT1}, 1
        s_add_u32 s{sCP}, s{sCP}, s{sT2}
        s_lshr_b32 s{sCB}, s{sT1}, 1
        """)
    else:
        a(f"""
        s_and_b32 s{sCP}, s{sT0}, 3
        s_lshl_b32 s{sCP}, s{sCP}, 2
        s_and_b32 s{sT2}, s{sT1}, 3
        s_add_u32 s{sCP}, s{sCP}, s{sT2}
        s_lshr_b32 s{sCB}, s{sT0}, 2
        s_lshl_b32 s{sCB}, s{sCB}, 3
        s_lshr_b32 s{sT2}, s{sT1}, 2
        s_add_u32 s{sCB}, s{sCB}, s{sT2}
        """)
    LFIRST = opt.get('lfirst', 1)
    if LFIRST:
        a(f"s_cmp_ge_u32 s{sWave}, 4")
    else:
        a(f"s_cmp_lt_u32 s{sWave}, 4")
    a(f"s_and_b32 s{sLW}, s{sWave}, 3" .replace("s_and_b32", "s_and_b32") if False else "")
    a(f"s_cbranch_scc1 {L('compute')}")
    V = Regs(1, 256, 'v')
    vLR, vP, vT, vT2 = [V.alloc() for _ in range(4)]
    vA = V.alloc()
    vY = [V.alloc() for _ in range(4)]
    vB = [V.alloc() for _ in range(2)]
    a(f"""
    s_and_b32 s{sLW}, s{sWave}, 3
    v_lshrrev_b32 v{vLR}, 3, v0
    v_and_b32 v{vP}, 7, v0
    s_lshl_b32 s{sT0}, s{sCP}, 1
    s_lshr_b32 s{sT1}, s{sLW}, 1
    s_add_u32 s{sT0}, s{sT0}, s{sT1}
    s_and_b32 s{sT1}, s{sLW}, 1
    s_lshl_b32 s{sMA}, s{sLW}, 12
    s_lshl_b32 s{sT2}, s{sT0}, 17
    s_lshl_b32 s{sU0}, s{sT1}, 12
    s_add_u32 s{sT2}, s{sT2}, s{sU0}
    v_xor_b32 v{vT2}, v{vP}, v{vLR}
    v_lshlrev_b32 v{vT2}, 4, v{vT2}
    v_lshl_add_u32 v{vA}, v{vLR}, 7, v{vT2}
    v_add_u32 v{vA}, s{sT2}, v{vA}
    s_lshl_b32 s{sU0}, s{sCB}, 7
    s_lshl_b32 s{sT2}, s{sLW}, 15
    s_add_u32 s{sT2}, s{sT2}, s{sU0}
    v_and_b32 v{vT2}, 2, v{vLR}
    v_xor_b32 v{vT2}, v{vT2}, v{vP}
    v_lshlrev_b32 v{vT}, 11, v{vLR}
    v_lshl_add_u32 v{vY[0]}, v{vT2}, 4, v{vT}
    v_xor_b32 v{vT2}, 4, v{vT2}
    v_lshl_add_u32 v{vY[1]}, v{vT2}, 4, v{vT}
    v_add_u32 v{vY[1]}, {8*2048}, v{vY[1]}
    v_add_u32 v{vB[0]}, s{sT2}, v{vY[0]}
    v_add_u32 v{vB[1]}, s{sT2}, v{vY[1]}
    v_subrev_u32 v{vB[1]}, 1024, v{vB[1]}
    s_lshl_b32 s{sMB_}, s{sLW}, 11
    s_add_u32 s{sMB_}, s{sMB_}, 16384
    s_mov_b32 s{sKC}, {'s%d' % sCB if opt.get('rot', 1) else 0}
    s_waitcnt lgkmcnt(0)
    """)
    a.srd_off(SRDO, sWS, WS_O, 4 << 20)
    a.srd(SRDWO, sWO, 2 << 20)
    def uset():
        a.srd_off(SRDU, sWS, WS_U, 8 << 20)
        a(f"""
        s_lshl_b32 s{sT2}, s{sT0}, 18
        s_lshl_b32 s{sT1}, s{sT1}, 16
        s_add_u32 s{sT2}, s{sT2}, s{sT1}
        s_add_u32 s{sU0}, s{sU0}, s{sT2}
        """)
        st.init(sWS)
        st.stamp(0); st.stamp(1, True)
    NST = 16
    ops = []
    def issue(stg):
        buf = (stg % NBUF) * STAGE
        a(f"s_add_u32 m0, s{sMA}, {buf}")
        a(f"s_lshl_b32 s{sT2}, s{sKC}, 13")
        for u in range(4):
            a(f"buffer_load_dwordx4 v{vA}, {s(SRDO,4)}, s{sT2} offen offset:{u*1024} lds")
        a(f"s_add_u32 m0, s{sMB_}, {buf}")
        a(f"s_lshl_b32 s{sT2}, s{sKC}, 17")
        for uo in range(2):
            a(f"buffer_load_dwordx4 v{vB[uo]}, {s(SRDWO,4)}, s{sT2} offen offset:{uo*1024} lds")
        a(f"s_add_u32 s{sKC}, s{sKC}, 1")
        a(f"s_and_b32 s{sKC}, s{sKC}, 15")
        ops.extend([('O', stg)] * 6)
    def issueU(p):
        ri, u = p >> 2, p & 3
        a(f"s_add_u32 m0, s{sMA}, {YB + ri*16384 + u*1024}")
        a(f"s_add_u32 s{sT2}, s{sU0}, {ri*131072 + (u >> 1)*16*2048}")
        a(f"buffer_load_dwordx4 v{vY[u & 1]}, {s(SRDU,4)}, s{sT2} offen lds")
        ops.append(('U', ri))
    LA = opt.get('la', 2)
    U0 = opt.get('u0', 2); UST = opt.get('ustep', 1)
    Y0B, Y1B = opt.get('y0b', 6), opt.get('y1b', 10)
    issued = 0; up = 0
    for b in range(NST):
        tgt = min(b + 1 + LA, NST) if b else LA
        while issued < tgt:
            issue(issued)
            if issued == 0: uset()
            if issued >= U0 and (issued - U0) % UST == 0 and up < 8:
                issueU(up); up += 1
            issued += 1
        need = [('O', b)]
        if b == Y0B: need.append(('U', 0)); assert up >= 4
        if b == Y1B: need.append(('U', 1)); assert up == 8
        last = max(i for i, o in enumerate(ops) if o in need)
        if b == 0: st.stamp(2)
        a(f"s_waitcnt vmcnt({len(ops) - 1 - last})")
        if b == 0: st.stamp(3)
        a("s_barrier")
    st.stamp(4); st.stamp(5); st.stamp(6, True)
    st.dump(7, sWave, 1, 2)
    sp.end(sWS, sWave)
    a(f"s_branch {L('end')}")
    a.label(L('compute'))
    V = Regs(1, 256, 'v')
    vI, vG, vR, vC, vT, vT2 = [V.alloc() for _ in range(6)]
    bA = [V.alloc(), V.alloc()]; bB = [V.alloc(), V.alloc()]
    cA = [V.alloc(), V.alloc()]; cB = [V.alloc(), V.alloc()]
    yB = [V.alloc(), V.alloc()]
    vOut = V.alloc(); kf = V.alloc(); tf = V.alloc(2)
    gv = V.alloc(4); og = V.alloc(4)
    tmp = V.alloc(32, 4)
    accA = [[V.alloc(4, 4) for db in range(2)] for rb in range(4)]
    accY = [[V.alloc(4, 4) for db in range(2)] for rb in range(4)]
    F = [dict(XA=[[V.alloc(4, 4) for rb in range(4)] for kh in range(2)],
              WB=[[V.alloc(4, 4) for db in range(2)] for kh in range(2)]) for f in range(2)]
    CT = [[[V.alloc(4, 4) for rb in range(2)] for kh in range(2)] for ri in range(2)]
    a(f"""
    s_bfe_u32 s{sCLS}, s{sWave}, {(1 << 16) | 1}
    s_and_b32 s{sCH}, s{sWave}, 1
    v_and_b32 v{vI}, 15, v0
    v_lshrrev_b32 v{vG}, 4, v0
    v_lshrrev_b32 v{vR}, 2, v{vI}
    v_and_b32 v{vC}, 3, v{vI}
    v_and_b32 v{vT}, 7, v{vI}
    v_xor_b32 v{vT}, v{vT}, v{vG}
    v_lshlrev_b32 v{vT}, 4, v{vT}
    v_lshl_add_u32 v{bA[0]}, v{vI}, 7, v{vT}
    s_lshl_b32 s{sT2}, s{sCLS}, 13
    v_add_u32 v{bA[0]}, s{sT2}, v{bA[0]}
    v_xor_b32 v{bA[1]}, 64, v{bA[0]}
    v_lshl_add_u32 v{bB[0]}, v{vG}, 3, v{vR}
    v_lshlrev_b32 v{bB[0]}, 7, v{bB[0]}
    v_and_b32 v{vT}, 1, v{vG}
    v_lshlrev_b32 v{vT}, 2, v{vT}
    v_and_b32 v{vT2}, 2, v{vR}
    v_or_b32 v{vT}, v{vT}, v{vT2}
    v_lshrrev_b32 v{vT2}, 1, v{vC}
    s_lshl_b32 s{sT0}, s{sCH}, 2
    v_add_u32 v{vT2}, s{sT0}, v{vT2}
    v_xor_b32 v{vT}, v{vT}, v{vT2}
    v_lshl_add_u32 v{bB[0]}, v{vT}, 4, v{bB[0]}
    v_and_b32 v{vT}, 1, v{vC}
    v_lshl_add_u32 v{bB[0]}, v{vT}, 3, v{bB[0]}
    v_xor_b32 v{bB[1]}, 32, v{bB[0]}
    s_add_u32 s{sT2}, s{sT2}, {YB}
    v_add_u32 v{yB[0]}, s{sT2}, v{bB[0]}
    v_add_u32 v{yB[1]}, s{sT2}, v{bB[1]}
    v_add_u32 v{bB[0]}, 16384, v{bB[0]}
    v_add_u32 v{bB[1]}, 16384, v{bB[1]}
    s_lshl_b32 s{sT0}, s{sCP}, 1
    s_add_u32 s{sT0}, s{sT0}, s{sCLS}
    v_lshlrev_b32 v{vT}, 5, v{vI}
    v_add_u32 v{vT}, s{sT0}, v{vT}
    v_lshlrev_b32 v{og}, 2, v{vT}
    v_cvt_f32_u32 v{tf}, v{vT}
    v_mul_f32 v{tf}, {f32bits(1/2048)}, v{tf}
    v_add_f32 v{tf+1}, {f32bits(0.25)}, v{tf}
    v_lshlrev_b32 v{kf}, 3, v{vG}
    v_cvt_f32_u32 v{kf}, v{kf}
    v_lshlrev_b32 v{vOut}, 11, v{vT}
    v_and_b32 v{vT2}, 1, v{vG}
    v_lshl_add_u32 v{vOut}, v{vT2}, 5, v{vOut}
    v_lshrrev_b32 v{vT2}, 1, v{vG}
    v_lshl_add_u32 v{vOut}, v{vT2}, 4, v{vOut}
    s_lshl_b32 s{sT0}, s{sCB}, 7
    s_lshl_b32 s{sT1}, s{sCH}, 6
    s_add_u32 s{sT0}, s{sT0}, s{sT1}
    v_add_u32 v{vOut}, s{sT0}, v{vOut}
    s_waitcnt lgkmcnt(0)
    """)
    a.srd_off(SRDG, sWS, WS_G, 2048 * 4)
    a.srd(SRDOUT, sOUT, 4 << 20)
    st.init(sWS)
    st.stamp(0); st.stamp(1, True)
    for kh in range(2):
        if kh: a(f"v_add_f32 v{kf}, {f32bits(32.0)}, v{kf}")
        for rb in range(2):
            a(f"v_mul_f32 v{tmp}, v{tf+rb}, v{kf}")
            a(f"v_fract_f32 v{tmp}, v{tmp}")
            for j in range(1, 8):
                a(f"v_add_f32 v{tmp+j}, v{tmp+j-1}, v{tf+rb}")
            for j in range(8):
                a(f"v_cos_f32 v{tmp+8+j}, v{tmp+j}")
            for j in range(8):
                a(f"v_sin_f32_e64 v{tmp+16+j}, -v{tmp+j}")
            for j in range(4):
                a(f"v_cvt_pk_bf16_f32 v{CT[0][kh][rb]+j}, v{tmp+8+2*j}, v{tmp+8+2*j+1}")
            for j in range(4):
                a(f"v_cvt_pk_bf16_f32 v{CT[1][kh][rb]+j}, v{tmp+16+2*j}, v{tmp+16+2*j+1}")
    a(f"s_mov_b32 s{sT1}, 4096")
    for rb in range(4):
        so = "0" if rb < 2 else f"s{sT1}"
        a(f"buffer_load_dword v{gv+rb}, v{og}, {s(SRDG,4)}, {so} offen offset:{(rb&1)*2048}")
    def reads(f, aA=cA, aB=cB):
        out = []
        for kh in range(2):
            rb_ = [f"ds_read_b64_tr_b16 {v(F[f]['WB'][kh][db]+2*half,2)}, v{aB[db]} offset:{kh*4096 + half*512}"
                   for db in range(2) for half in range(2)]
            ra = [f"ds_read_b128 {v(F[f]['XA'][kh][rb],4)}, v{aA[kh]} offset:{rb*2048}" for rb in range(4)]
            out += rb_[:2] + ra[:1] + rb_[2:] + ra[1:]
        return out
    def mfmas(f, first=False):
        fs = F[f]; acc = accA
        return [f"v_mfma_f32_16x16x32_bf16 {v(acc[rb][db],4)}, {v(fs['WB'][kh][db],4)}, {v(fs['XA'][kh][rb],4)}, {'0' if (first and kh == 0) else v(acc[rb][db],4)}"
                for kh in range(2) for rb in range(4) for db in range(2)]
    def il2(main, fill, n=2):
        out = []; fi = 0
        for m in main:
            out.append(m)
            for _ in range(n):
                if fi < len(fill):
                    out.append(fill[fi]); fi += 1
        return out + fill[fi:]
    upd = [f"v_add_u32 v{cA[0]}, s{sStg}, v{bA[0]}", f"v_add_u32 v{cB[0]}, s{sStg}, v{bB[0]}",
           f"v_add_u32 v{cB[1]}, s{sStg}, v{bB[1]}", f"v_add_u32 v{cA[1]}, s{sStg}, v{bA[1]}"]
    supd = [f"s_add_u32 s{sStg}, s{sStg}, {STAGE}", f"s_cmp_eq_u32 s{sStg}, {NBUF*STAGE}", f"s_cselect_b32 s{sStg}, 0, s{sStg}"]
    YW = [[tmp + 8*kh + 4*db for db in range(2)] for kh in range(2)]
    YN = [[tmp + 16 + 8*kh + 4*db for db in range(2)] for kh in range(2)]
    def yreads(ri):
        return [f"ds_read_b64_tr_b16 {v(YW[kh][db]+2*half,2)}, v{yB[db]} offset:{ri*16384 + kh*4096 + half*512}"
                for kh in range(2) for db in range(2) for half in range(2)]
    def yblock(ri):
        m = []; x = []
        for kh in range(2):
            for db in range(2):
                for r in range(4):
                    x.append(f"v_xor_b32 v{YN[kh][db]+r}, 0x80000000, v{YW[kh][db]+r}")
        def mm(rb, db, kh, src):
            c = '0' if (ri == 0 and kh == 0) else v(accY[rb][db], 4)
            return f"v_mfma_f32_16x16x32_bf16 {v(accY[rb][db],4)}, {v(src,4)}, {v(CT[ri][kh][rb & 1],4)}, {c}"
        m1 = [mm(rb, db, kh, YW[kh][db]) for kh in range(2) for rb in range(2) for db in range(2)]
        m2 = [mm(rb, db, kh, YN[kh][db]) for kh in range(2) for rb in range(2, 4) for db in range(2)]
        return il2(m1, x) + ["s_nop 1"] + m2
    a(f"s_mov_b32 s{sStg}, {STAGE}")
    for l in upd: a(l)
    st.stamp(2)
    a("s_barrier")
    st.stamp(3)
    if opt.get('stamp'): a("s_waitcnt lgkmcnt(0)")
    for l in reads(0, bA, bB): a(l)
    ysc = [f"v_mul_f32 v{accY[rb][db]+r}, v{accY[rb][db]+r}, v{og+rb}" for rb in range(4) for db in range(2) for r in range(4)]
    ogc = ["s_waitcnt vmcnt(0)"]
    for rb in range(4):
        ogc += [f"v_sub_f32 v{og+rb}, 1.0, v{gv+rb}", f"v_cvt_pk_bf16_f32 v{og+rb}, 0, v{og+rb}"]
    for b in range(1, NST):
        a("s_waitcnt lgkmcnt(0)")
        a("s_barrier")
        fill = reads(b & 1) + supd + upd
        if b == Y0B: fill += yreads(0)
        if b == Y1B: fill += yreads(1)
        if b == Y1B + 1: fill += ogc
        if Y1B + 2 <= b < Y1B + 6:
            k = b - (Y1B + 2)
            fill += ysc[8*k:8*k+8]
        for l in il2(mfmas((b - 1) & 1, b == 1), fill): a(l)
        if b == Y0B or b == Y1B:
            a("s_waitcnt lgkmcnt(0)")
            for l in yblock(0 if b == Y0B else 1): a(l)
    assert Y1B + 6 <= NST
    a("s_waitcnt lgkmcnt(0)")
    for l in mfmas((NST - 1) & 1): a(l)
    st.stamp(4)
    a("s_nop 1")
    for rb in range(4):
        o = tmp + 4*rb
        for db in range(2):
            A_, Y_ = accA[rb][db], accY[rb][db]
            for r in range(4):
                a(f"v_cvt_pk_bf16_f32 v{A_+r}, 0, v{A_+r}")
            for r in range(4):
                a(f"v_fma_f32 v{A_+r}, v{A_+r}, v{gv+rb}, v{Y_+r}")
            a(f"v_cvt_pk_bf16_f32 v{o+2*db}, v{A_}, v{A_+1}")
            a(f"v_cvt_pk_bf16_f32 v{o+2*db+1}, v{A_+2}, v{A_+3}")
        a(f"s_mov_b32 s{sT0}, {rb*512*2048}")
        a("s_nop 0")
        a(f"v_permlane16_swap_b32 v{o}, v{o+2}")
        a(f"v_permlane16_swap_b32 v{o+1}, v{o+3}")
        a(f"buffer_store_dwordx4 {v(o,4)}, v{vOut}, {s(SRDOUT,4)}, s{sT0} offen{' nt' if opt.get('ont') else ''}{' sc1' if opt.get('osc') else ''}")
    st.stamp(5); st.stamp(6, True)
    st.dump(7, sWave, 1, 2)
    sp.end(sWS, sWave)
    a.label(L('end'))
    a("s_endpgm")
    return a.text(), V.hi, 102
```

```python
from asmlib import *

WS_O = 0
WS_U = 4 << 20
WS_G = 12 << 20

STAGE = 43008
BOFF = 18432
XF = STAGE
CB = 3 * STAGE
CROW = 2056
K1_LDS = CB + 16 * CROW
NEG_BIG = f32bits(-1.0e30)
SCALE = f32bits(32 ** -0.5)
LOG2E = f32bits(1.4426950408889634)
CODE_LINES = 30

def sched(main, fills, per=2, dist=9):
    out = []; pos = {}; fi = 0
    def ready(tag): return tag is None or (tag in pos and len(out) - pos[tag] >= dist)
    for ins, tag in main:
        out.append(ins); pos[tag] = len(out)
        n = 0
        while fi < len(fills) and n < per and ready(fills[fi][1]):
            out.append(fills[fi][0]); fi += 1; n += 1
    while fi < len(fills):
        if not ready(fills[fi][1]):
            need = dist - (len(out) - pos[fills[fi][1]])
            out.append(f"s_nop {need-1}")
            for _ in range(need - 1): out.append(None)
        out.append(fills[fi][0]); fi += 1
    return [o for o in out if o is not None]

def gen_k1(name="k1_kernel", opt=None):
    opt = opt or {}
    a = Asm()
    a.raw(kernel_header(name))
    L = lambda x: f"{name}_{x}"
    sX, sW, sWO, sGW, sWS, sPC = 4, 6, 8, 10, 12, 14
    SRDX, SRDW, SRDO, SRDU, SRDP, SRDG, SRDC = 16, 20, 24, 28, 32, 36, 40
    (sWave, sMB, sHP, sM0, sT0, sT1, sT2, sT3, sKA, sKB, sKB2, sCnt, sStg, sLW, sH, sHF, sS2, sQ,
     sScale, sLog2e, sRI, sXO, sMA, sMBo) = range(44, 68)
    sMSK = 68
    st = Stamper(a, 76, 72, opt.get('stamp'))
    sp = Span(a, opt.get('span'), 0)
    sp.start()
    USC = " sc1" if opt.get('usc1', 1) else ""
    OSC = " sc1" if opt.get('osc1', 1) else ""
    FB = 52
    U = Regs(FB, 256, 'fft')
    vI, vG, vR, vC, vT, vT2, vT3 = 1, 2, 3, 4, 5, 6, 7
    DEAD = U.alloc(36, 4)
    kkf = [DEAD + j for j in range(8)]
    B0 = DEAD + 8
    a0 = DEAD + 12; aW = [DEAD + 13, DEAD + 14]; vXL = DEAD + 15
    a0x = [DEAD + 16 + j for j in range(7)]
    ef = [DEAD + 24, DEAD + 25]
    tmp = DEAD + 28
    tmp0 = U.alloc(8, 4)
    assert tmp0 == tmp + 8
    vCP = 51
    XA = [U.alloc(4, 4) for _ in range(8)]
    D0 = [U.alloc(4, 4) for _ in range(8)]
    umark = U.mark()
    GW = U.alloc(8, 4); GX = [U.alloc(8, 4), U.alloc(8, 4)]
    a(f"""
    s_cmp_ge_u32 s2, 256
    s_cbranch_scc1 {L('end')}
    s_load_dwordx4 s[4:7], s[0:1], 0
    s_load_dwordx2 s[8:9], s[0:1], 16
    s_load_dwordx2 s[10:11], s[0:1], 64
    s_load_dwordx2 s[12:13], s[0:1], 88
    s_getpc_b64 s[14:15]
    """)
    a.label(L('pc'))
    a(f"""
    v_lshrrev_b32 v1, 6, v0
    v_and_b32 v0, 63, v0
    s_and_b32 s{sS2}, s2, 63
    v_readfirstlane_b32 s{sWave}, v1
    s_lshr_b32 s{sQ}, s2, 6
    s_mov_b32 s{SRDC}, s14
    s_and_b32 s{SRDC+1}, s15, 0xffff
    s_mov_b32 s{SRDC+2}, code_end - {L('pc')}
    s_mov_b32 s{SRDC+3}, 0x00020000
    """)
    def code_pf():
        a(f"""
        s_lshr_b32 s{sT0}, s2, 3
        s_and_b32 s{sT0}, s{sT0}, 7
        s_mul_i32 s{sT0}, s{sT0}, {CODE_LINES*128}
        v_lshlrev_b32 v{vCP}, 7, v0
        s_mov_b64 exec, {(1 << CODE_LINES) - 1}
        buffer_load_dword v{vCP}, v{vCP}, {s(SRDC,4)}, s{sT0} offen
        s_mov_b64 exec, -1
        """)
    a(f"s_cmp_lg_u32 s{sWave}, 0")
    a(f"s_cbranch_scc1 {L('nocpf')}")
    code_pf()
    a.label(L('nocpf'))
    a(f"""
    v_lshrrev_b32 v{vT}, 1, v0
    v_xor_b32 v{vT}, s{sWave}, v{vT}
    v_and_b32 v{vT2}, 1, v0
    v_lshlrev_b32 v{vT2}, 4, v{vT2}
    v_lshl_add_u32 v{vXL}, v{vT}, 5, v{vT2}
    s_waitcnt lgkmcnt(0)
    """)
    a.srd(SRDX, sX, 2048 * 1024 * 2)
    if opt.get('stlb', 0):
        a(f"s_cmp_lg_u32 s{sWave}, 7")
        a(f"s_cbranch_scc1 {L('nstlb')}")
        for i in range(3):
            a(f"s_mov_b32 s{sT0}, {i << 21}")
            a(f"s_load_dword s70, s[{sW}:{sW+1}], s{sT0}")
        if opt['stlb'] >= 2:
            a(f"s_load_dword s70, s[{sWO}:{sWO+1}], 0")
            for i in range(7):
                a(f"s_mov_b32 s{sT0}, {i << 21}")
                a(f"s_load_dword s70, s[{sWS}:{sWS+1}], s{sT0}")
        a.label(L('nstlb'))
    TLB = opt.get('tlb', 0)
    if TLB:
        a.srd(SRDW, sW, 1024 * 3072 * 2)
        a.srd_off(SRDU, sWS, 0, 13 << 20)
        a(f"""
        v_lshlrev_b32 v{vT3}, {TLB}, v0
        s_lshl_b32 s{sT0}, s2, 7
        s_cmp_eq_u32 s{sWave}, 1
        s_cbranch_scc0 {L('ntlb1')}
        buffer_load_dword v{vCP}, v{vT3}, {s(SRDW,4)}, s{sT0} offen
        """)
        a.label(L('ntlb1'))
        a(f"""
        v_lshlrev_b32 v{vT3}, {TLB+1}, v0
        s_cmp_eq_u32 s{sWave}, 2
        s_cbranch_scc0 {L('ntlb2')}
        buffer_load_dword v{vCP}, v{vT3}, {s(SRDU,4)}, s{sT0} offen
        """)
        a.label(L('ntlb2'))
    a(f"s_cmp_lt_u32 s{sWave}, 4")
    a(f"s_cbranch_scc1 {L('nogw')}")
    a.srd(SRDP, sGW, 2048)
    a(f"""
    v_lshlrev_b32 v{vT}, 5, v0
    buffer_load_dwordx4 {v(GW,4)}, v{vT}, {s(SRDP,4)}, 0 offen
    buffer_load_dwordx4 {v(GW+4,4)}, v{vT}, {s(SRDP,4)}, 0 offen offset:16
    """)
    a.label(L('nogw'))
    for n in range(4):
        a(f"""
        s_add_u32 s{sT0}, s{sQ}, {n}
        s_and_b32 s{sT0}, s{sT0}, 3
        s_lshl_b32 s{sT0}, s{sT0}, 3
        s_add_u32 s{sT0}, s{sT0}, s{sWave}
        s_lshl_b32 s{sXO}, s{sT0}, 11
        s_add_u32 m0, s{sXO}, {XF}
        s_lshl_b32 s{sXO}, s{sT0}, 6
        s_add_u32 s{sXO}, s{sXO}, s{sS2}
        s_lshl_b32 s{sXO}, s{sXO}, 11
        buffer_load_dwordx4 v{vXL}, {s(SRDX,4)}, s{sXO} offen lds
        buffer_load_dwordx4 v{vXL}, {s(SRDX,4)}, s{sXO} offen offset:1024 lds
        """)
    st.init(sWS)
    st.stamp(0); st.stamp(1, True)
    a.srd(SRDW, sW, 1024 * 3072 * 2)
    a(f"""
    s_and_b32 s{sT0}, s2, 7
    s_lshr_b32 s{sT1}, s2, 3
    s_and_b32 s{sMB}, s{sT0}, 1
    s_lshl_b32 s{sMB}, s{sMB}, 3
    s_and_b32 s{sT2}, s{sT1}, 7
    s_add_u32 s{sMB}, s{sMB}, s{sT2}
    s_lshr_b32 s{sHP}, s{sT0}, 1
    s_lshl_b32 s{sHP}, s{sHP}, 2
    s_lshr_b32 s{sT2}, s{sT1}, 3
    s_add_u32 s{sHP}, s{sHP}, s{sT2}
    s_lshl_b32 s{sM0}, s{sMB}, 7
    v_and_b32 v{vI}, 15, v0
    v_lshrrev_b32 v{vG}, 4, v0
    v_lshrrev_b32 v{vR}, 2, v{vI}
    v_and_b32 v{vC}, 3, v{vI}
    v_lshlrev_b32 v{vT}, 2, v{vG}
    v_cvt_f32_u32 v{kkf[0]}, v{vT}
    """)
    for j in range(1, 8):
        kk = j if j < 4 else 16 + (j - 4)
        a(f"v_add_f32 v{kkf[j]}, {f32bits(float(kk))}, v{kkf[0]}")
    a(f"""
    v_lshrrev_b32 v{vT}, 1, v{vI}
    s_lshl_b32 s{sT0}, s{sQ}, 3
    v_add_u32 v{vT}, s{sT0}, v{vT}
    v_cvt_f32_u32 v{vT}, v{vT}
    v_mul_f32 v{vT}, {f32bits(1/32)}, v{vT}
    v_and_b32 v{vT2}, 1, v{vI}
    v_cvt_f32_u32 v{vT2}, v{vT2}
    v_mul_f32 v{vT2}, {f32bits(0.25)}, v{vT2}
    """)
    for j in range(8):
        a(f"v_fma_f32 v{tmp+j}, v{vT}, v{kkf[j]}, v{vT2}")
    for j in range(8):
        a(f"v_cos_f32 v{tmp+j}, v{tmp+j}")
    a(f"""
    v_lshl_add_u32 v{vT}, v{vG}, 2, v{vR}
    v_lshlrev_b32 v{a0}, 11, v{vT}
    v_and_b32 v{vT2}, 7, v{vT}
    v_lshl_add_u32 v{a0}, v{vT2}, 5, v{a0}
    v_lshl_add_u32 v{a0}, v{vC}, 3, v{a0}
    s_lshl_b32 s{sT0}, s{sWave}, 8
    v_add_u32 v{a0}, s{sT0}, v{a0}
    v_mul_u32_u24 v{aW[0]}, {CROW}, v{vI}
    v_lshl_add_u32 v{aW[0]}, v{vG}, 3, v{aW[0]}
    s_and_b32 s{sT1}, s{sWave}, 1
    s_lshl_b32 s{sT1}, s{sT1}, 5
    s_add_u32 s{sT0}, s{sT0}, {CB}
    s_add_u32 s{sT2}, s{sT0}, s{sT1}
    s_xor_b32 s{sT1}, s{sT1}, 32
    s_add_u32 s{sT1}, s{sT0}, s{sT1}
    v_add_u32 v{aW[1]}, s{sT1}, v{aW[0]}
    v_add_u32 v{aW[0]}, s{sT2}, v{aW[0]}
    """)
    for j in range(4):
        a(f"v_cvt_pk_bf16_f32 v{B0+j}, v{tmp+2*j}, v{tmp+2*j+1}")
    a(f"v_add_u32 v{a0}, {XF}, v{a0}")
    for i in range(1, 8):
        a(f"v_xor_b32 v{a0x[i-1]}, {i*32}, v{a0}")
    def stage0(extra_reads=None, n_extra=0):
        for i in range(8):
            ad = a0 if i == 0 else a0x[i-1]
            for half in range(2):
                a(f"ds_read_b64_tr_b16 {v(XA[i]+2*half,2)}, v{ad} offset:{half*32768}")
        if extra_reads: extra_reads()
        for i in range(8):
            a(f"s_waitcnt lgkmcnt({min(15, 2*(7-i)+n_extra)})")
            a.mfma(D0[i], XA[i], B0, None)
        a("s_nop 3")
        for i in range(8):
            a(f"v_cvt_pk_bf16_f32 v{D0[i]}, v{D0[i]}, v{D0[i]+1}")
            a(f"v_cvt_pk_bf16_f32 v{D0[i]+1}, v{D0[i]+2}, v{D0[i]+3}")
            a(f"ds_write_b64 v{aW[i&1]}, {v(D0[i],2)} offset:{(i>>1)*64}")
    a(f"""
    s_cmp_lt_u32 s{sWave}, 4
    s_cbranch_scc1 {L('compute')}
    """)
    V = Regs(8, FB - 1, 'v')
    vLR, vP = V.alloc(), V.alloc()
    vA = [V.alloc() for _ in range(6)]
    vB = [V.alloc() for _ in range(4)]
    aG = [V.alloc(), V.alloc()]
    gacc = [V.alloc(), V.alloc()]
    vPF = V.alloc(); vPFD = V.alloc()
    aU = V.alloc(); aSR = V.alloc()
    a.srd_off(SRDG, sWS, WS_G, 2048 * 4)
    def rowbase(al):
        be = al >> 1
        if be == 8: return -16 + (al & 1)
        return 64 * (be >> 2) + 32 * (be & 1) + 16 * (al & 1) + ((be >> 1) & 1)
    tabs = []
    for j in range(3):
        x = 0
        for n in range(6): x |= (rowbase(6*j + n) + 16) << (8 * n)
        tabs.append(x)
    a(f"""
    s_sub_u32 s{sLW}, s{sWave}, 4
    v_lshrrev_b32 v{vLR}, 3, v0
    v_and_b32 v{vP}, 7, v0
    s_lshl_b32 s{sT0}, s{sQ}, 3
    s_lshl_b32 s{sT1}, s{sLW}, 1
    s_add_u32 s{sT3}, s{sT0}, s{sT1}
    v_xor_b32 v{vT}, s{sT1}, v0
    v_lshlrev_b32 v{aG[0]}, 5, v{vT}
    v_xor_b32 v{aG[1]}, 32, v{aG[0]}
    s_lshl_b32 s{sT0}, s{sT3}, 11
    s_add_u32 s{sT0}, s{sT0}, {XF}
    v_add_u32 v{aG[0]}, s{sT0}, v{aG[0]}
    s_add_u32 s{sT0}, s{sT0}, 2048
    v_add_u32 v{aG[1]}, s{sT0}, v{aG[1]}
    s_lshl_b32 s{sT3}, s{sT3}, 6
    s_add_u32 s{sT3}, s{sT3}, s{sS2}
    s_lshl_b32 s{sT3}, s{sT3}, 2
    v_mul_u32_u24 v{vT}, 6144, v{vLR}
    s_lshl_b32 s{sT0}, s{sHP}, 7
    s_lshl_b32 s{sT1}, s{sLW}, 11
    s_add_u32 s{sT0}, s{sT0}, s{sT1}
    v_add_u32 v{vT}, s{sT0}, v{vT}
    v_and_b32 v{vT2}, 2, v{vLR}
    v_xor_b32 v{vT2}, v{vT2}, v{vP}
    v_lshl_add_u32 v{vB[0]}, v{vT2}, 4, v{vT}
    v_xor_b32 v{vT2}, 4, v{vT2}
    v_lshl_add_u32 v{vB[1]}, v{vT2}, 4, v{vT}
    v_add_u32 v{vB[1]}, {8*6144 - 1024}, v{vB[1]}
    v_add_u32 v{vB[2]}, {16*6144 - 2048}, v{vB[0]}
    v_add_u32 v{vB[3]}, {16*6144 - 2048}, v{vB[1]}
    s_mov_b32 s{sMSK}, {tabs[0] & 0xffffffff}
    s_mov_b32 s{sMSK+1}, {tabs[0] >> 32}
    s_cmp_eq_u32 s{sLW}, 1
    s_cselect_b32 s{sMSK}, {tabs[1] & 0xffffffff}, s{sMSK}
    s_cselect_b32 s{sMSK+1}, {tabs[1] >> 32}, s{sMSK+1}
    s_cmp_eq_u32 s{sLW}, 2
    s_cselect_b32 s{sMSK}, {tabs[2] & 0xffffffff}, s{sMSK}
    s_cselect_b32 s{sMSK+1}, {tabs[2] >> 32}, s{sMSK+1}
    v_lshlrev_b32 v{vT}, 12, v{vLR}
    v_xor_b32 v{vT2}, v{vP}, v{vLR}
    v_lshl_add_u32 v{vT}, v{vT2}, 4, v{vT}
    s_sub_u32 s{sT1}, s{sM0}, 16
    """)
    for n in range(6):
        a(f"""
        s_bfe_u32 s{sT0}, s{sMSK + (n >> 2)}, {(8 << 16) | (8 * (n & 3))}
        s_add_u32 s{sT0}, s{sT0}, s{sT1}
        s_lshl_b32 s{sT0}, s{sT0}, 11
        s_sub_u32 s{sT0}, s{sT0}, {(n & 3)*1024}
        v_add_u32 v{vA[n]}, s{sT0}, v{vT}
        """)
    a(f"""
    s_mul_i32 s{sMA}, s{sLW}, 6144
    s_lshl_b32 s{sMBo}, s{sLW}, 13
    s_add_u32 s{sMBo}, s{sMBo}, {BOFF}
    s_mov_b32 s{sKA}, 0
    s_mov_b32 s{sKB}, 0
    s_mov_b32 s{sKB2}, {32*6144}
    s_mov_b32 s{sStg}, 0
    """)
    def issue_stage():
        a(f"s_add_u32 m0, s{sMBo}, s{sStg}")
        a(f"s_add_u32 s{sT0}, s{sMBo}, s{sStg}")
        for u in range(4):
            a(f"buffer_load_dwordx4 v{vB[u]}, {s(SRDW,4)}, s{sKB} offen offset:{u*1024} lds")
        a(f"s_add_u32 m0, s{sMA}, s{sStg}")
        a(f"s_add_u32 s{sT1}, s{sMA}, s{sStg}")
        for n in range(4):
            a(f"buffer_load_dwordx4 v{vA[n]}, {s(SRDX,4)}, s{sKA} offen offset:{n*1024} lds")
        a(f"s_add_u32 m0, s{sT1}, 4096")
        a(f"s_add_u32 s{sKB}, s{sKB}, {64*6144}")
        for n in range(4, 6):
            a(f"buffer_load_dwordx4 v{vA[n]}, {s(SRDX,4)}, s{sKA} offen offset:{(n-4)*1024} lds")
        a(f"s_add_u32 m0, s{sT0}, 4096")
        a(f"s_add_u32 s{sKA}, s{sKA}, 128")
        for u in range(4):
            a(f"buffer_load_dwordx4 v{vB[u]}, {s(SRDW,4)}, s{sKB2} offen offset:{u*1024} lds")
        a(f"""
        s_add_u32 s{sKB2}, s{sKB2}, {64*6144}
        s_add_u32 s{sStg}, s{sStg}, {STAGE}
        s_cmp_eq_u32 s{sStg}, {3*STAGE}
        s_cselect_b32 s{sStg}, 0, s{sStg}
        """)
    st.stamp(2)
    a("s_waitcnt vmcnt(0) lgkmcnt(0)")
    a("s_barrier")
    st.stamp(3)
    def greads():
        for n in range(2):
            a(f"ds_read_b128 {v(GX[n],4)}, v{aG[n]}")
            a(f"ds_read_b128 {v(GX[n]+4,4)}, v{aG[n]} offset:16")
    if opt.get('stamp'): a("s_waitcnt lgkmcnt(0)")
    stage0(greads, 4)
    a("s_waitcnt lgkmcnt(0)")
    a("s_barrier")
    st.stamp(4)
    for n in range(2):
        a(f"v_mov_b32 v{gacc[n]}, 0")
    for j in range(8):
        a(f"v_lshlrev_b32 v{tmp+2}, 16, v{GW+j}")
        a(f"v_and_b32 v{tmp+3}, 0xffff0000, v{GW+j}")
        for n in range(2):
            t = tmp + 4 + 4*n
            a(f"""
            v_lshlrev_b32 v{t}, 16, v{GX[n]+j}
            v_and_b32 v{t+1}, 0xffff0000, v{GX[n]+j}
            v_mul_f32 v{t}, v{t}, v{tmp+2}
            v_mul_f32 v{t+1}, v{t+1}, v{tmp+3}
            v_cvt_pk_bf16_f32 v{t}, 0, v{t}
            v_cvt_pk_bf16_f32 v{t+1}, 0, v{t+1}
            v_add_f32 v{gacc[n]}, v{gacc[n]}, v{t}
            v_add_f32 v{gacc[n]}, v{gacc[n]}, v{t+1}
            """)
    for k in (8, 4, 2, 1):
        a("s_nop 1")
        for n in range(2):
            a(f"v_add_f32_dpp v{gacc[n]}, v{gacc[n]}, v{gacc[n]} row_ror:{k} row_mask:0xf bank_mask:0xf")
    for sw in ("v_permlane32_swap_b32", "v_permlane16_swap_b32"):
        for n in range(2): a(f"v_mov_b32 v{tmp+n}, v{gacc[n]}")
        a("s_nop 1")
        for n in range(2): a(f"{sw} v{gacc[n]}, v{tmp+n}")
        a("s_nop 1")
        for n in range(2): a(f"v_add_f32 v{gacc[n]}, v{gacc[n]}, v{tmp+n}")
    for n in range(2):
        a(f"""
        v_cvt_pk_bf16_f32 v{gacc[n]}, 0, v{gacc[n]}
        v_mul_f32 v{gacc[n]}, {f32bits(-1.4426950408889634)}, v{gacc[n]}
        v_exp_f32 v{gacc[n]}, v{gacc[n]}
        s_nop 0
        v_add_f32 v{gacc[n]}, 1.0, v{gacc[n]}
        v_rcp_f32 v{gacc[n]}, v{gacc[n]}
        s_nop 0
        v_cvt_pk_bf16_f32 v{gacc[n]}, 0, v{gacc[n]}
        """)
    def gstore():
        a(f"""
        v_mov_b32 v{tmp}, s{sT3}
        s_mov_b64 exec, 1
        buffer_store_dword v{gacc[0]}, v{tmp}, {s(SRDG,4)}, 0 offen
        buffer_store_dword v{gacc[1]}, v{tmp}, {s(SRDG,4)}, 0 offen offset:256
        s_mov_b64 exec, -1
        """)
    a(f"s_cmp_eq_u32 s{sLW}, 3")
    a(f"s_cbranch_scc1 {L('misc')}")
    issue_stage(); issue_stage()
    st.stamp(7)
    a("s_waitcnt vmcnt(14)")
    st.stamp(8)
    a("s_barrier")
    issue_stage()
    a(f"s_mov_b32 s{sCnt}, 0")
    a.label(L('lloop'))
    if opt.get('stg'): a("s_memtime s[92:93]")
    a("s_waitcnt vmcnt(14)")
    if opt.get('stg'): a("s_memtime s[94:95]")
    a("s_barrier")
    if opt.get('stg'):
        a("s_memtime s[96:97]")
        a("s_waitcnt lgkmcnt(0)")
        a(f"s_mov_b32 m0, s{sCnt}")
        a("s_nop 1")
        a("v_writelane_b32 v40, s92, m0")
        a("v_writelane_b32 v41, s94, m0")
        a("v_writelane_b32 v42, s96, m0")
    issue_stage()
    a(f"""
    s_add_u32 s{sCnt}, s{sCnt}, 1
    s_cmp_lt_u32 s{sCnt}, 13
    s_cbranch_scc1 {L('lloop')}
    s_waitcnt vmcnt(14)
    s_barrier
    s_waitcnt vmcnt(0)
    s_barrier
    """)
    gstore()
    a("s_barrier")
    a("s_barrier")
    st.stamp(5); st.stamp(6, True)
    st.dump(7 if opt.get('stg') else 12, sWave, 1, 2)
    if opt.get('stg'):
        a(f"""
        s_lshl_b32 s100, s100, 2
        v_lshlrev_b32 v2, 2, v0
        v_add_u32 v2, s100, v2
        s_mov_b32 s99, {256<<10}
        s_mov_b64 exec, 0xffffffff
        buffer_store_dword v40, v2, s[72:75], s99 offen
        buffer_store_dword v41, v2, s[72:75], s99 offen offset:128
        buffer_store_dword v42, v2, s[72:75], s99 offen offset:256
        s_mov_b64 exec, -1
        """)
    sp.end(sWS, sWave)
    a(f"s_branch {L('end')}")
    a.label(L('misc'))
    gstore()
    a.srd_off(SRDU, sWS, WS_U, 8 << 20)
    a.srd(SRDP, sWO, 2 << 20)
    a(f"""
    s_lshl_b32 s{sT1}, s{sQ}, 10
    s_add_u32 s{sT1}, s{sT1}, s{sS2}
    s_lshl_b32 s{sT1}, s{sT1}, 11
    v_lshlrev_b32 v{aU}, 4, v0
    v_add_u32 v{aU}, s{sT1}, v{aU}
    v_bfe_u32 v{vT}, v0, 3, 1
    v_bfe_u32 v{vT2}, v0, 5, 1
    v_lshl_add_u32 v{vT}, v{vT2}, 1, v{vT}
    v_xor_b32 v{vT}, v{vT}, v0
    v_lshlrev_b32 v{aSR}, 4, v{vT}
    v_add_u32 v{aSR}, {CB}, v{aSR}
    s_lshr_b32 s{sT0}, s2, 3
    s_lshl_b32 s{sT0}, s{sT0}, 16
    v_lshlrev_b32 v{vPF}, 7, v0
    v_add_u32 v{vPF}, s{sT0}, v{vPF}
    """)
    if opt.get('stlb', 0) >= 3:
        a(f"s_load_dwordx2 s[{SRDO}:{SRDO+1}], s[0:1], 72")
        a("s_waitcnt lgkmcnt(0)")
        a(f"s_load_dword s70, s[{SRDO}:{SRDO+1}], 0")
        a(f"s_mov_b32 s{sT0}, {1 << 21}")
        a(f"s_load_dword s70, s[{SRDO}:{SRDO+1}], s{sT0}")
        a("s_waitcnt lgkmcnt(0)")
    WON = 8; WOSTEP = 8192
    if opt.get('wohalf', 0):
        WON = 4; WOSTEP = 8 * 2048
        a(f"""
        s_lshr_b32 s{sT0}, s2, 3
        s_lshl_b32 s{sT0}, s{sT0}, 16
        v_lshlrev_b32 v{vPF}, 11, v{vLR}
        v_lshl_add_u32 v{vPF}, v{vP}, 7, v{vPF}
        s_bfe_u32 s{sT1}, s2, {(1 << 16) | 2}
        s_lshl_b32 s{sT1}, s{sT1}, 10
        s_add_u32 s{sT0}, s{sT0}, s{sT1}
        v_add_u32 v{vPF}, s{sT0}, v{vPF}
        """)
    UPS = opt.get('ups', 3)
    WO0 = opt.get('wo0', 11); WOPS = opt.get('wops', 2)
    wm = opt.get('womall', 4)
    up = 0; wo = 0; upn = 0
    for b in range(-1, 16):
        a("s_barrier")
        k = min(UPS, 32 - up) if b >= opt.get('us0', -1) else 0
        for i in range(k):
            idx = up + i
            a(f"ds_read_b128 {v(XA[i],4)}, v{aSR} offset:{(idx >> 3)*4*CROW + (idx & 7)*1024}")
        for i in range(k):
            idx = up + i
            a(f"s_mov_b32 s{sT0}, {(idx >> 1)*131072}")
            a(f"s_waitcnt lgkmcnt({k - 1 - i})")
            a(f"buffer_store_dwordx4 {v(XA[i],4)}, v{aU}, {s(SRDU,4)}, s{sT0} offen offset:{(idx & 1)*1024}{USC}")
        up += k
        if opt.get('wu', 0) == 1 and b == opt.get('badb', -1):
            a(f"""
            s_bitcmp1_b32 s{sHP}, 2
            s_cbranch_scc1 {L('nobad')}
            v_mul_u32_u24 v{vT}, 2048, v0
            s_lshr_b32 s{sT0}, s2, 3
            s_mul_i32 s{sT0}, s{sT0}, {32*6144}
            s_or_b32 s{sT1}, s{sHP}, 3
            s_lshl_b32 s{sT1}, s{sT1}, 7
            s_add_u32 s{sT0}, s{sT0}, s{sT1}
            s_add_u32 s{sT1}, s{sT0}, {16*6144}
            s_mov_b32 exec_hi, 0xffff
            buffer_load_dword v{vT2}, v{vT}, {s(SRDW,4)}, s{sT0} offen
            buffer_load_dword v{vT3}, v{vT}, {s(SRDW,4)}, s{sT1} offen
            s_mov_b32 exec_hi, -1
            """)
            a.label(L('nobad'))
        if b == wm:
            a(f"""
            s_lshl_b32 s{sT0}, s2, 13
            v_lshlrev_b32 v{vT}, 7, v0
            buffer_load_dword v{vT2}, v{vT}, {s(SRDP,4)}, s{sT0} offen
            """)
        if b >= WO0 and opt.get('wopf', 1):
            for i in range(min(WOPS, WON - wo)):
                a(f"s_mov_b32 s{sT0}, {wo*WOSTEP}")
                a(f"buffer_load_dword v{vPFD}, v{vPF}, {s(SRDP,4)}, s{sT0} offen")
                wo += 1
        if b == 13: code_pf()
        if opt.get('upf', 0) and b >= opt.get('upf0', 14) and upn < 4:
            if upn == 0:
                a(f"""
                s_and_b32 s{sT0}, s2, 3
                s_lshl_b32 s{sT0}, s{sT0}, 2
                s_bfe_u32 s{sT1}, s2, {(2 << 16) | 3}
                s_add_u32 s{sT0}, s{sT0}, s{sT1}
                s_lshl_b32 s{sKA}, s{sT0}, 19
                s_bfe_u32 s{sT0}, s2, {(1 << 16) | 2}
                s_lshl_b32 s{sT0}, s{sT0}, 3
                s_lshr_b32 s{sT1}, s2, 5
                s_add_u32 s{sT0}, s{sT0}, s{sT1}
                s_lshl_b32 s{sT0}, s{sT0}, 7
                s_add_u32 s{sKA}, s{sKA}, s{sT0}
                v_lshlrev_b32 v{vA[0]}, 11, v0
                """)
            for i in range(opt.get('upfs', 2)):
                if upn < 4:
                    a(f"s_add_u32 s{sT0}, s{sKA}, {upn*131072}")
                    a(f"buffer_load_dword v{vA[1]}, v{vA[0]}, {s(SRDU,4)}, s{sT0} offen")
                    upn += 1
    assert up == 32
    a("s_barrier")
    st.stamp(5); st.stamp(6, True)
    st.dump(12, sWave, 1, 2)
    sp.end(sWS, sWave)
    a(f"s_branch {L('end')}")
    a.label(L('compute'))
    if opt.get('prio'): a(f"s_setprio {opt['prio']}")
    U.release(umark)
    V = Regs(8, FB - 1, 'v')
    bA = [V.alloc(), V.alloc()]; bH = [V.alloc(), V.alloc()]; bB = [V.alloc(), V.alloc()]
    cA = [V.alloc(), V.alloc()]; cH = [V.alloc(), V.alloc()]; cB = [V.alloc(), V.alloc()]
    vO = V.alloc(); vLane16 = V.alloc(); vLane8 = V.alloc()
    mCur = V.alloc(2, 2); mPrev = V.alloc(2, 2); mFirst = [V.alloc(2, 2), V.alloc(2, 2)]
    biasCur = V.alloc(4, 4); biasPrev = V.alloc(4, 4); biasFirst = [V.alloc(4, 4), V.alloc(4, 4)]
    vWP = V.alloc(); vWD = V.alloc(2)
    G = Regs(FB, 256, 'gemm')
    QT = [[[G.alloc(4, 4) for db in range(2)] for b in range(2)] for par in range(2)]
    KT = [[[G.alloc(4, 4) for db in range(2)] for b in range(2)] for par in range(2)]
    VV = [[[G.alloc(4, 4) for db in range(2)] for b in range(2)] for par in range(2)]
    HH = [G.alloc(4, 4) for db in range(2)]
    acc0 = QT[0][0][0]
    F = [None, None]; fr = [0, 0]
    for f in (1, 0):
        fr[f] = G.mark()
        F[f] = dict(XA=[[G.alloc(4, 4) for b in range(2)] for par in range(2)], XH=G.alloc(4, 4),
                    WB=[[G.alloc(4, 4) for db in range(2)] for seg in range(3)])
    COS = [U.alloc(4, 4) for _ in range(2)]
    SIN = [U.alloc(4, 4) for _ in range(2)]
    NSIN = [U.alloc(4, 4) for _ in range(2)]
    TWC = [[U.alloc(4) for eb in range(2)] for db2 in range(2)]
    TWS = [[U.alloc(4) for eb in range(2)] for db2 in range(2)]
    a1 = [U.alloc(), U.alloc()]; aSW = U.alloc()
    a.srd_off(SRDO, sWS, WS_O, 4 << 20)
    a(f"""
    s_mov_b32 s{sRI}, 131072
    v_lshl_add_u32 v{vT}, v{vR}, 3, v{vC}
    v_cvt_f32_u32 v{ef[0]}, v{vT}
    v_add_f32 v{ef[1]}, 4.0, v{ef[0]}
    """)
    for eb in range(2):
        a(f"v_mul_f32 v{vT}, {f32bits(1/32)}, v{ef[eb]}")
        for j in range(8):
            a(f"v_mul_f32 v{tmp+j}, v{vT}, v{kkf[j]}")
        for j in range(8):
            a(f"v_sin_f32 v{tmp+8+j}, v{tmp+j}")
        for j in range(8):
            a(f"v_cos_f32 v{tmp+j}, v{tmp+j}")
        a("s_nop 0")
        for j in range(4):
            a(f"v_cvt_pk_bf16_f32 v{SIN[eb]+j}, v{tmp+8+2*j}, v{tmp+8+2*j+1}")
            a(f"v_cvt_pk_bf16_f32 v{COS[eb]+j}, v{tmp+2*j}, v{tmp+2*j+1}")
            a(f"v_xor_b32 v{NSIN[eb]+j}, 0x80008000, v{SIN[eb]+j}")
    for eb in range(2):
        a(f"v_mul_f32 v{vT}, {f32bits(1/1024)}, v{ef[eb]}")
        for db2 in range(2):
            for r in range(4):
                a(f"v_mul_f32 v{TWC[db2][eb]+r}, v{vT}, v{kkf[4*db2+r]}")
            for r in range(4):
                a(f"v_sin_f32 v{TWS[db2][eb]+r}, v{TWC[db2][eb]+r}")
            for r in range(4):
                a(f"v_cos_f32 v{TWC[db2][eb]+r}, v{TWC[db2][eb]+r}")
    a(f"""
    """)
    WU = opt.get('wu', 0)
    if WU:
        a(f"""
        s_lshl_b32 s{sT0}, s{sWave}, 21
        s_lshl_b32 s{sT1}, s2, 13
        s_add_u32 s{sT0}, s{sT0}, s{sT1}
        v_lshlrev_b32 v{vWP}, 7, v0
        v_add_u32 v{vWP}, s{sT0}, v{vWP}
        """)
    else:
        a(f"""
    ; W prefetch into this XCD's L2: rows 32*idx + 8*wave + l/12 (+4), line l%12
    v_mul_u32_u24 v{vT}, 43, v0
    v_lshrrev_b32 v{vT}, 9, v{vT}
    v_mul_u32_u24 v{vT2}, 12, v{vT}
    v_sub_u32 v{vT2}, v0, v{vT2}
    v_mul_u32_u24 v{vWP}, 6144, v{vT}
    v_lshrrev_b32 v{vT}, 2, v{vT2}
    v_lshl_add_u32 v{vWP}, v{vT}, 11, v{vWP}
    v_and_b32 v{vT}, 3, v{vT2}
    v_lshl_add_u32 v{vWP}, v{vT}, 7, v{vWP}
    s_lshr_b32 s{sT0}, s2, 3
    s_lshl_b32 s{sT0}, s{sT0}, 2
    s_add_u32 s{sT0}, s{sT0}, s{sWave}
    s_mul_i32 s{sT0}, s{sT0}, {8*6144}
    s_lshr_b32 s{sT1}, s{sHP}, 2
    s_lshl_b32 s{sT1}, s{sT1}, 9
    s_add_u32 s{sT0}, s{sT0}, s{sT1}
    v_add_u32 v{vWP}, s{sT0}, v{vWP}
        """)
    a(f"""
    s_and_b32 s{sH}, s{sWave}, 1
    s_lshr_b32 s{sHF}, s{sWave}, 1
    s_mov_b32 s{sScale}, {SCALE}
    s_mov_b32 s{sLog2e}, {f32bits(1.4426950408889634 * 32 ** -0.5) if opt.get('fast', 0) else LOG2E}
    v_lshl_add_u32 v{vT}, v{vG}, 2, v{vR}
    v_lshlrev_b32 v{a1[0]}, 6, v{vT}
    v_lshl_add_u32 v{a1[0]}, v{vC}, 3, v{a1[0]}
    v_and_b32 v{vT2}, 1, v{vG}
    v_lshl_add_u32 v{a1[0]}, v{vT2}, 5, v{a1[0]}
    v_xor_b32 v{a1[1]}, 32, v{a1[0]}
    s_mul_i32 s{sT0}, s{sWave}, {4*CROW}
    s_add_u32 s{sT0}, s{sT0}, {CB}
    v_add_u32 v{a1[0]}, s{sT0}, v{a1[0]}
    v_add_u32 v{a1[1]}, s{sT0}, v{a1[1]}
    v_lshrrev_b32 v{vT}, 1, v{vC}
    v_and_b32 v{vT2}, 1, v{vR}
    v_lshl_add_u32 v{vT}, v{vT2}, 1, v{vT}
    v_xor_b32 v{vT}, v{vT}, v{vG}
    v_lshl_add_u32 v{aSW}, v{vR}, 3, v{vC}
    v_lshlrev_b32 v{aSW}, 6, v{aSW}
    v_lshl_add_u32 v{aSW}, v{vT}, 4, v{aSW}
    v_add_u32 v{aSW}, s{sT0}, v{aSW}
    v_and_b32 v{vT}, 7, v{vI}
    v_xor_b32 v{vT}, v{vT}, v{vG}
    v_lshlrev_b32 v{vT}, 4, v{vT}
    v_lshl_add_u32 v{vT}, v{vI}, 7, v{vT}
    s_lshl_b32 s{sT0}, s{sHF}, 13
    v_add_u32 v{bA[0]}, s{sT0}, v{vT}
    v_xor_b32 v{bA[1]}, 64, v{bA[0]}
    v_add_u32 v{bH[0]}, 16384, v{vT}
    v_xor_b32 v{bH[1]}, 64, v{bH[0]}
    v_lshl_add_u32 v{bB[0]}, v{vG}, 3, v{vR}
    v_lshlrev_b32 v{bB[0]}, 7, v{bB[0]}
    v_and_b32 v{vT}, 1, v{vG}
    v_lshlrev_b32 v{vT}, 2, v{vT}
    v_and_b32 v{vT2}, 2, v{vR}
    v_or_b32 v{vT}, v{vT}, v{vT2}
    v_lshrrev_b32 v{vT2}, 1, v{vC}
    s_lshl_b32 s{sT0}, s{sH}, 2
    v_add_u32 v{vT2}, s{sT0}, v{vT2}
    v_xor_b32 v{vT}, v{vT}, v{vT2}
    v_lshl_add_u32 v{bB[0]}, v{vT}, 4, v{bB[0]}
    v_and_b32 v{vT}, 1, v{vC}
    v_lshl_add_u32 v{bB[0]}, v{vT}, 3, v{bB[0]}
    v_add_u32 v{bB[0]}, {BOFF}, v{bB[0]}
    v_xor_b32 v{bB[1]}, 32, v{bB[0]}
    v_lshlrev_b32 v{vO}, 18, v{vI}
    v_and_b32 v{vT}, 1, v{vG}
    v_lshl_add_u32 v{vO}, v{vT}, 5, v{vO}
    v_lshrrev_b32 v{vT}, 1, v{vG}
    v_lshl_add_u32 v{vO}, v{vT}, 4, v{vO}
    s_lshl_b32 s{sT0}, s{sHP}, 13
    s_lshl_b32 s{sT1}, s{sMB}, 9
    s_add_u32 s{sT0}, s{sT0}, s{sT1}
    s_lshl_b32 s{sT1}, s{sHF}, 8
    s_add_u32 s{sT0}, s{sT0}, s{sT1}
    s_lshl_b32 s{sT1}, s{sH}, 6
    s_add_u32 s{sT0}, s{sT0}, s{sT1}
    v_add_u32 v{vO}, s{sT0}, v{vO}
    s_mul_i32 s{sT0}, s{sH}, 5120
    v_lshlrev_b32 v{vLane16}, 4, v0
    v_add_u32 v{vLane16}, s{sT0}, v{vLane16}
    v_lshlrev_b32 v{vLane8}, 3, v0
    v_add_u32 v{vLane8}, s{sT0}, v{vLane8}
    """)
    a(f"v_lshlrev_b32 v{vT}, 2, v{vG}")
    a(f"v_sub_u32 v{vT}, v{vI}, v{vT}")
    a(f"v_mov_b32 v{vT3}, {NEG_BIG}")
    MS = s(sMSK, 2)
    for r in range(4):
        a(f"v_subrev_u32 v{vT2}, {r}, v{vT}")
        a(f"v_cmp_gt_u32 vcc, 8, v{vT2}")
        a(f"v_cmp_gt_i32 {MS}, -8, v{vT2}")
        a("s_nop 0")
        a(f"v_cndmask_b32_e64 v{biasCur+r}, v{vT3}, 0, vcc")
        a(f"v_cndmask_b32_e64 v{biasPrev+r}, v{vT3}, 0, {MS}")
        a(f"v_mov_b32 v{biasFirst[1]+r}, v{biasPrev+r}")
        a(f"v_mov_b32 v{biasFirst[0]+r}, v{biasPrev+r}")
    a(f"""
    s_cmp_lg_u32 s{sHF}, 0
    s_cbranch_scc1 {L('maskdone')}
    v_cmp_gt_u32 {MS}, 2, v{vG}
    """)
    for r in range(4):
        a(f"v_subrev_u32 v{vT2}, {r}, v{vT}")
        a(f"v_cmp_gt_i32 vcc, 0, v{vT2}")
        a("s_nop 1")
        a(f"s_and_b64 vcc, vcc, {MS}")
        a("s_nop 1")
        a(f"v_cndmask_b32_e64 v{biasFirst[0]+r}, v{vT3}, 0, vcc")
    a(f"""
    s_cmp_lg_u32 s{sMB}, 0
    s_cbranch_scc1 {L('maskdone')}
    """)
    for r in range(4):
        a(f"v_mov_b32 v{biasFirst[0]+r}, v{vT3}")
        a(f"v_mov_b32 v{biasFirst[1]+r}, v{vT3}")
    a.label(L('maskdone'))
    def mk_mask(m, bias):
        for h2 in range(2):
            a(f"v_ashrrev_i32 v{vT}, 31, v{bias+2*h2}")
            a(f"v_ashrrev_i32 v{vT2}, 31, v{bias+2*h2+1}")
            a(f"v_and_b32 v{vT}, 0xffff, v{vT}")
            a(f"v_and_b32 v{vT2}, 0xffff0000, v{vT2}")
            a(f"v_or_b32 v{vT}, v{vT}, v{vT2}")
            a(f"v_not_b32 v{m+h2}, v{vT}")
    mk_mask(mCur, biasCur); mk_mask(mPrev, biasPrev); mk_mask(mFirst[0], biasFirst[0]); mk_mask(mFirst[1], biasFirst[1])
    st.stamp(2)
    a("s_waitcnt vmcnt(0)")
    if opt.get('wpfpos', 4) == 4: a("s_barrier")
    if WU:
        a(f"buffer_load_dword v{vWD}, v{vWP}, {s(SRDW,4)}, 0 offen")
    else:
        a(f"""
        s_mov_b32 s{sT0}, {4*6144}
        s_mov_b32 exec_hi, 0xffff
        buffer_load_dword v{vWD}, v{vWP}, {s(SRDW,4)}, 0 offen
        buffer_load_dword v{vWD+1}, v{vWP}, {s(SRDW,4)}, s{sT0} offen
        s_mov_b32 exec_hi, -1
        """)
    if opt.get('wpfpos', 4) == 3: a("s_barrier")
    st.stamp(3)
    if opt.get('stamp'): a("s_waitcnt lgkmcnt(0)")
    stage0()
    a("s_waitcnt lgkmcnt(0)")
    a("s_barrier")
    st.stamp(4)
    if opt.get('stamp'): a("s_waitcnt lgkmcnt(0)")
    AR2 = [U.alloc(4, 4) for _ in range(4)]
    Cfs = [[[XA[0], XA[1]], [XA[2], XA[3]]], [[XA[4], XA[5]], [XA[6], XA[7]]]]
    for task in range(2):
        for ri in range(2):
            for db2 in range(2):
                for half in range(2):
                    a(f"ds_read_b64_tr_b16 {v(Cfs[task][ri][db2]+2*half,2)}, v{a1[db2]} offset:{half*1024 + (2*task+ri)*CROW}")
    TB = [DEAD + 4*j for j in range(8)]
    Ts = [D0, TB]
    As = [AR2, [XA[0], XA[1], XA[2], XA[3]]]
    Os = [[XA[4], XA[5], XA[6], XA[7]], AR2]
    def mf(d, x, y, c): return f"v_mfma_f32_16x16x32_bf16 {v(d,4)}, {v(x,4)}, {v(y,4)}, {'0' if c is None else v(c,4)}"
    def S1(task):
        T = Ts[task]; Cf = Cfs[task]; out = []
        for db2 in range(2):
            for eb in range(2):
                out.append(mf(T[2*db2+eb], Cf[0][db2], COS[eb], None))
                out.append(mf(T[4+2*db2+eb], Cf[0][db2], NSIN[eb], None))
        for db2 in range(2):
            for eb in range(2):
                out.append(mf(T[2*db2+eb], Cf[1][db2], SIN[eb], T[2*db2+eb]))
                out.append(mf(T[4+2*db2+eb], Cf[1][db2], COS[eb], T[4+2*db2+eb]))
        return out
    def TW(task):
        T = Ts[task]; A_ = As[task]; out = []
        for db2 in range(2):
            for eb in range(2):
                trb, tib = T[2*db2+eb], T[4+2*db2+eb]
                for r in range(4):
                    out.append(f"v_mul_f32 v{tmp0+r}, v{trb+r}, v{TWC[db2][eb]+r}")
                    out.append(f"v_mul_f32 v{tmp0+4+r}, v{trb+r}, v{TWS[db2][eb]+r}")
                for r in range(4):
                    out.append(f"v_fma_f32 v{tmp0+r}, v{tib+r}, v{TWS[db2][eb]+r}, v{tmp0+r}")
                    out.append(f"v_fma_f32 v{tmp0+4+r}, -v{tib+r}, v{TWC[db2][eb]+r}, v{tmp0+4+r}")
                for h2 in range(2):
                    out.append(f"v_cvt_pk_bf16_f32 v{A_[eb]+2*db2+h2}, v{tmp0+2*h2}, v{tmp0+2*h2+1}")
                    out.append(f"v_cvt_pk_bf16_f32 v{A_[2+eb]+2*db2+h2}, v{tmp0+4+2*h2}, v{tmp0+4+2*h2+1}")
        return out
    def S2(task):
        T = Ts[task]; A_ = As[task]; out = []
        for eb2 in range(2):
            for eb in range(2):
                out.append(mf(T[2*eb+eb2], A_[eb], COS[eb2], None))
                out.append(mf(T[4+2*eb+eb2], A_[eb], SIN[eb2], None))
        for eb2 in range(2):
            for eb in range(2):
                out.append(mf(T[2*eb+eb2], A_[2+eb], NSIN[eb2], T[2*eb+eb2]))
                out.append(mf(T[4+2*eb+eb2], A_[2+eb], COS[eb2], T[4+2*eb+eb2]))
        return out
    def OUT(task):
        T = Ts[task]; out = []; k = 0
        for eb2 in range(2):
            for ri in range(2):
                o = Os[task][k]; k += 1
                for eb in range(2):
                    w = T[4*ri+2*eb+eb2]
                    out.append(f"v_cvt_pk_bf16_f32 v{o+2*eb}, v{w}, v{w+1}")
                    out.append(f"v_cvt_pk_bf16_f32 v{o+2*eb+1}, v{w+2}, v{w+3}")
                out.append(f"ds_write_b128 v{aSW}, {v(o,4)} offset:{(2*task+ri)*2048 + eb2*256}")
        return out
    def iln(main, fill, n, skip=0):
        out = []; fi = 0
        for i, m in enumerate(main):
            out.append(m)
            if i >= skip:
                for _ in range(n):
                    if fi < len(fill):
                        out.append(fill[fi]); fi += 1
        return out + fill[fi:]
    a("s_waitcnt lgkmcnt(12)")
    s1a = S1(0)
    for l in s1a[:8]: a(l)
    a("s_waitcnt lgkmcnt(8)")
    for l in s1a[8:]: a(l)
    a("s_waitcnt lgkmcnt(0)")
    for l in iln(S1(1), TW(0), 6, 2): a(l)
    a("s_nop 1")
    for l in iln(S2(0), TW(1), 6, 2): a(l)
    a("s_nop 1")
    for l in iln(S2(1), OUT(0), 2, 4): a(l)
    a("s_nop 3")
    for l in OUT(1): a(l)
    st.stamp(7)

    def reads(f, kh, aA, aH, aB):
        out = []
        fs = F[f]
        def rb(seg, db):
            r = fs['WB'][seg][db]
            for half in range(2):
                out.append(f"ds_read_b64_tr_b16 {v(r+2*half,2)}, v{aB[db]} offset:{kh*4096 + seg*8192 + half*512}")
        def ra(par, b):
            out.append(f"ds_read_b128 {v(fs['XA'][par][b],4)}, v{aA} offset:{(par*2 + b)*2048}")
        ra(0, 0); rb(0, 0); rb(0, 1); ra(0, 1); ra(1, 0); ra(1, 1)
        rb(1, 0); rb(1, 1)
        out.append(f"ds_read_b128 {v(fs['XH'],4)}, v{aH}")
        rb(2, 0); rb(2, 1)
        return out
    def mparts(f, hf, first=False):
        fs = F[f]
        def m(d, x, y): return f"v_mfma_f32_16x16x32_bf16 {v(d,4)}, {v(x,4)}, {v(y,4)}, {'0' if first else v(d,4)}"
        idx = [(par, b, db) for par in range(2) for b in range(2) for db in range(2)]
        if opt.get('mord', 0) == 1:
            idx = [(par, b, db) for db in range(2) for par in range(2) for b in range(2)]
        Q = [(m(QT[p][b][d], fs['WB'][0][d], fs['XA'][p][b]), ('Q', p, b, d)) for p, b, d in idx]
        K = [(m(KT[p][b][d], fs['WB'][1][d], fs['XA'][p][b]), ('K', p, b, d)) for p, b, d in idx]
        Vv = [(m(VV[p][b][d], fs['XA'][p][b], fs['WB'][2][d]), ('V', p, b, d)) for p, b, d in idx]
        if hf == 0: H = [(m(HH[d], fs['WB'][1][d], fs['XH']), ('H', d)) for d in range(2)]
        else: H = [(m(HH[d], fs['XH'], fs['WB'][2][d]), ('H', d)) for d in range(2)]
        return Q, K, Vv, H
    def mfmas(f, hf, first=False):
        Q, K, Vv, H = mparts(f, hf, first)
        seq = Q + K + H + Vv if hf == 0 else Q + K + Vv + H
        if opt.get('mord', 0) == 2:
            seq = []
            for par in range(2):
                for b in range(2):
                    seq += [x for x in Q + K + Vv if x[1][1] == par and x[1][2] == b]
            seq += H
        return [x[0] for x in seq]
    a("s_waitcnt lgkmcnt(0)")
    a("s_barrier")
    st.stamp(8)
    if opt.get('clk'): st.stamp(10, True)
    if opt.get('stamp'): a("s_waitcnt lgkmcnt(0)")
    for l in reads(0, 0, bA[0], bH[0], bB): a(l)
    a(f"""
    v_mov_b32 v{cA[1]}, v{bA[1]}
    v_mov_b32 v{cH[1]}, v{bH[1]}
    v_mov_b32 v{cB[0]}, v{bB[0]}
    v_mov_b32 v{cB[1]}, v{bB[1]}
    s_mov_b32 s{sStg}, 0
    s_mov_b32 s{sCnt}, 0
    s_waitcnt lgkmcnt(0)
    s_cmp_eq_u32 s{sHF}, 0
    s_cbranch_scc0 {L('first1')}
    """)
    P0 = Regs(fr[0], 256, 'pk0')
    Kp = [[P0.alloc(4, 4) for sl in range(3)] for par in range(2)]
    Vp = [[P0.alloc(6, 2) for db in range(2)] for par in range(2)]
    VHp = P0.alloc(4, 2)
    P1 = Regs(fr[1], fr[0], 'pk1')
    Qp = [[P1.alloc(4, 4) for b in range(2)] for par in range(2)]
    def pkl(d, src, tag):
        return [(f"v_cvt_pk_bf16_f32 v{d}, v{src}, v{src+1}", tag), (f"v_cvt_pk_bf16_f32 v{d+1}, v{src+2}, v{src+3}", tag)]
    def pk(d, src):
        for l, _ in pkl(d, src, None): a(l)
    upd = [f"s_add_u32 s{sStg}, s{sStg}, {STAGE}",
           f"s_cmp_eq_u32 s{sStg}, {3*STAGE}",
           f"s_cselect_b32 s{sStg}, 0, s{sStg}"]
    upd2 = [f"v_add_u32 v{cA[0]}, s{sStg}, v{bA[0]}",
            f"v_add_u32 v{cH[0]}, s{sStg}, v{bH[0]}",
            f"v_add_u32 v{cB[0]}, s{sStg}, v{bB[0]}",
            f"v_add_u32 v{cB[1]}, s{sStg}, v{bB[1]}",
            f"v_add_u32 v{cA[1]}, s{sStg}, v{bA[1]}",
            f"v_add_u32 v{cH[1]}, s{sStg}, v{bH[1]}"]
    for hf in range(2):
        a.label(L(f'first{hf}'))
        for l in interleave(mfmas(0, hf, True), reads(1, 1, cA[1], cH[1], cB) + upd + upd2): a(l)
        a.label(L(f'loop{hf}'))
        a("s_waitcnt lgkmcnt(0)")
        a("s_barrier")
        for l in interleave(mfmas(1, hf), reads(0, 0, cA[0], cH[0], cB) + [f"s_add_u32 s{sCnt}, s{sCnt}, 1"]): a(l)
        a("s_waitcnt lgkmcnt(0)")
        if opt.get('lp2', 1):
            m0_ = mfmas(0, hf)
            fl = reads(1, 1, cA[1], cH[1], cB)
            body = iln(m0_[:4], fl[:8], 2) + interleave(m0_[4:], fl[8:] + upd + upd2 + [f"s_cmp_lt_u32 s{sCnt}, 15"])
            for l in body: a(l)
        else:
            body = interleave(mfmas(0, hf), reads(1, 1, cA[1], cH[1], cB) + upd + upd2)
            for l in body: a(l)
            a(f"s_cmp_lt_u32 s{sCnt}, 15")
        a(f"s_cbranch_scc1 {L(f'loop{hf}')}")
        a("s_waitcnt lgkmcnt(0)")
        a("s_barrier")
        st.stamp(9)
        if opt.get('clk'): st.stamp(11, True)
        Q, K, Vv, H = mparts(1, hf)
        K1 = [x for x in K if x[1][2] == 1]; K0 = [x for x in K if x[1][2] == 0]
        V1 = [x for x in Vv if x[1][2] == 1]; V0 = [x for x in Vv if x[1][2] == 0]
        fills = []
        if hf == 0:
            seq = K1 + V1 + H + K0 + Q + V0
            for par in range(2):
                for db in range(2): fills += pkl(Kp[par][2] + 2*db, KT[par][1][db], ('K', par, 1, db))
                fills.append((f"ds_write_b128 v{vLane16}, {v(Kp[par][2],4)} offset:{par*1024}", None))
            for par in range(2):
                for db in range(2):
                    fills += pkl(Vp[par][db] + 4, VV[par][1][db], ('V', par, 1, db))
                    fills.append((f"ds_write_b64 v{vLane8}, {v(Vp[par][db]+4,2)} offset:{2048 + (par*2+db)*512}", None))
            for par in range(2):
                for db in range(2): fills += pkl(Kp[par][0] + 2*db, HH[db], ('H', db))
        else:
            seq = H + K1 + V1 + K0 + Q + V0
            for db in range(2):
                fills += pkl(VHp + 2*db, HH[db], ('H', db))
                fills.append((f"ds_write_b64 v{vLane8}, {v(VHp+2*db,2)} offset:{4096 + db*512}", None))
            for par in range(2):
                for db in range(2): fills += pkl(Kp[par][2] + 2*db, KT[par][1][db], ('K', par, 1, db))
            for par in range(2):
                for db in range(2): fills += pkl(Vp[par][db] + 4, VV[par][1][db], ('V', par, 1, db))
        for par in range(2):
            for db in range(2): fills += pkl(Kp[par][1] + 2*db, KT[par][0][db], ('K', par, 0, db))
        for l in sched(seq, fills): a(l)
        a("s_waitcnt lgkmcnt(0)")
        a("s_barrier")
        if hf == 0:
            for par in range(2):
                for db in range(2):
                    a(f"ds_read_b64 {v(Vp[par][db],2)}, v{vLane8} offset:{4096 + db*512}")
            a(f"s_branch {L('attn')}")
        else:
            for par in range(2):
                a(f"ds_read_b128 {v(Kp[par][0],4)}, v{vLane16} offset:{par*1024}")
            for par in range(2):
                for db in range(2):
                    a(f"ds_read_b64 {v(Vp[par][db],2)}, v{vLane8} offset:{2048 + (par*2+db)*512}")
    a.label(L('attn'))
    for par in range(2):
        for b in (1, 0):
            for db in range(2):
                pk(Qp[par][b] + 2*db, QT[par][b][db])
    A = Regs(acc0, VV[0][0][0], 'acc')
    combos = [(par, b) for par in range(2) for b in range(2)]
    Sp = {c: A.alloc(4, 4) for c in combos}
    Sc = {c: A.alloc(4, 4) for c in combos}
    Pp = {c: A.alloc(4, 4) for c in combos}
    mx = {c: A.alloc() for c in combos}
    tt = {c: A.alloc() for c in combos}
    OT = {(par, b): VV[par][b] for (par, b) in combos}
    a("s_nop 1")
    for par in range(2):
        a.mfma(Sc[(par, 1)], Kp[par][2], Qp[par][1], biasCur)
        a.mfma(Sp[(par, 1)], Kp[par][1], Qp[par][1], biasPrev)
    for par in range(2):
        a.mfma(Sc[(par, 0)], Kp[par][1], Qp[par][0], biasCur)
    a("s_waitcnt lgkmcnt(4)")
    if not opt.get('clk'): st.stamp(10)
    for par in range(2):
        a.mfma(Sp[(par, 0)], Kp[par][0], Qp[par][0], biasFirst[par])
    for par in range(2):
        for db in range(2):
            pk(Vp[par][db] + 2, VV[par][0][db])
    order = [(0, 1), (1, 1), (0, 0), (1, 0)]
    for c in order:
        for r in range(4):
            a(f"v_max_f32 v{Sc[c]+r}, v{Sc[c]+r}, v{Sp[c]+r}")
        if not opt.get('fast', 0):
            for r in range(4):
                a(f"v_cvt_pk_bf16_f32 v{Sc[c]+r}, 0, v{Sc[c]+r}")
            for r in range(4):
                a(f"v_mul_f32 v{Sc[c]+r}, s{sScale}, v{Sc[c]+r}")
            for r in range(4):
                a(f"v_cvt_pk_bf16_f32 v{Sc[c]+r}, 0, v{Sc[c]+r}")
        a(f"v_max_f32 v{mx[c]}, v{Sc[c]}, v{Sc[c]+1}")
        a(f"v_max3_f32 v{mx[c]}, v{Sc[c]+2}, v{Sc[c]+3}, v{mx[c]}")
    def allreduce(val, op):
        for sw in ("v_permlane32_swap_b32", "v_permlane16_swap_b32"):
            for c in order: a(f"v_mov_b32 v{tt[c]}, v{val[c]}")
            a("s_nop 0")
            for c in order: a(f"{sw} v{val[c]}, v{tt[c]}")
            for c in order: a(f"{op} v{val[c]}, v{val[c]}, v{tt[c]}")
    allreduce(mx, "v_max_f32")
    for c in order:
        a(f"v_mul_f32 v{mx[c]}, s{sLog2e}, v{mx[c]}")
    for c in order:
        for r in range(4):
            a(f"v_fma_f32 v{Sc[c]+r}, v{Sc[c]+r}, s{sLog2e}, -v{mx[c]}")
        for r in range(4):
            a(f"v_exp_f32 v{Sc[c]+r}, v{Sc[c]+r}")
    a("s_nop 0")
    for c in order:
        a(f"v_add_f32 v{mx[c]}, v{Sc[c]}, v{Sc[c]+1}")
        a(f"v_add_f32 v{tt[c]}, v{Sc[c]+2}, v{Sc[c]+3}")
        a(f"v_add_f32 v{mx[c]}, v{mx[c]}, v{tt[c]}")
    allreduce(mx, "v_add_f32")
    for c in order:
        a(f"v_rcp_f32 v{mx[c]}, v{mx[c]}")
    a("s_waitcnt lgkmcnt(0)")
    if not opt.get('clk'): st.stamp(11)
    for c in order:
        par, b = c
        for r in range(4):
            a(f"v_mul_f32 v{Sc[c]+r}, v{Sc[c]+r}, v{mx[c]}")
        pk(Sp[c], Sc[c])
        mp = mPrev if b == 1 else mFirst[par]
        a(f"v_and_b32 v{Pp[c]}, v{Sp[c]}, v{mp}")
        a(f"v_and_b32 v{Pp[c]+1}, v{Sp[c]+1}, v{mp+1}")
        a(f"v_and_b32 v{Pp[c]+2}, v{Sp[c]}, v{mCur}")
        a(f"v_and_b32 v{Pp[c]+3}, v{Sp[c]+1}, v{mCur+1}")
        a("s_nop 1")
        for db in range(2):
            a.mfma(OT[c][db], Vp[par][db] + 2*b, Pp[c], None)
    for n, c in enumerate(order):
        par, b = c
        o = Sc[c]
        for db in range(2):
            pk(o + 2*db, OT[c][db])
        a("s_nop 1")
        a(f"v_permlane16_swap_b32 v{o}, v{o+2}")
        a(f"v_permlane16_swap_b32 v{o+1}, v{o+3}")
        so = f"s{sRI}" if par == 1 else "0"
        a(f"buffer_store_dwordx4 {v(o,4)}, v{vO}, {s(SRDO,4)}, {so} offen offset:{b*128}{OSC}")
    st.stamp(5); st.stamp(6, True)
    st.dump(12, sWave, 1, 2)
    sp.end(sWS, sWave)
    a.label(L('end'))
    a("s_endpgm")
    return a.text(), max(U.hi, G.hi, P0.hi), 102
```

```python
from asmlib import *
from k1n import WS_O, WS_U, WS_G

STAGE = 24576
NBUF = 6
K2_LDS = NBUF * STAGE

def gen_k2(name="k2_kernel", opt=None):
    opt = opt or {}
    a = Asm()
    a.raw(kernel_header(name))
    L = lambda x: f"{name}_{x}"
    sWO, sOUT, sWS = 4, 6, 8
    SRDO, SRDWO, SRDU, SRDG, SRDOUT = 12, 16, 20, 24, 28
    sWave, sCP, sCB, sT0, sT1, sT2, sLW, sStg, sCnt, sU0, sCLS, sCH, sMA, sMB_, sKC = range(32, 47)
    st = Stamper(a, 76, 72, opt.get('stamp'))
    sp = Span(a, opt.get('span'), 65536)
    sp.start()
    a(f"""
    s_cmp_ge_u32 s2, 256
    s_cbranch_scc1 {L('end')}
    s_load_dwordx2 s[4:5], s[0:1], 16
    s_load_dwordx2 s[6:7], s[0:1], 72
    s_load_dwordx2 s[8:9], s[0:1], 88
    v_lshrrev_b32 v1, 6, v0
    v_and_b32 v0, 63, v0
    s_and_b32 s{sT0}, s2, 7
    v_readfirstlane_b32 s{sWave}, v1
    s_lshr_b32 s{sT1}, s2, 3
    """)
    if opt.get('tile', 2) == 2:
        a(f"""
        s_lshl_b32 s{sCP}, s{sT0}, 1
        s_and_b32 s{sT2}, s{sT1}, 1
        s_add_u32 s{sCP}, s{sCP}, s{sT2}
        s_lshr_b32 s{sCB}, s{sT1}, 1
        """)
    else:
        a(f"""
        s_and_b32 s{sCP}, s{sT0}, 3
        s_lshl_b32 s{sCP}, s{sCP}, 2
        s_and_b32 s{sT2}, s{sT1}, 3
        s_add_u32 s{sCP}, s{sCP}, s{sT2}
        s_lshr_b32 s{sCB}, s{sT0}, 2
        s_lshl_b32 s{sCB}, s{sCB}, 3
        s_lshr_b32 s{sT2}, s{sT1}, 2
        s_add_u32 s{sCB}, s{sCB}, s{sT2}
        """)
    a(f"s_cmp_ge_u32 s{sWave}, 4" if opt.get('lfirst', 1) else f"s_cmp_lt_u32 s{sWave}, 4")
    a(f"s_cbranch_scc1 {L('compute')}")
    if opt.get('lprio'): a(f"s_setprio {opt['lprio']}")
    V = Regs(1, 256, 'v')
    vLR, vP, vT, vT2 = [V.alloc() for _ in range(4)]
    vA = V.alloc()
    vY = [V.alloc() for _ in range(4)]
    vB = [V.alloc() for _ in range(2)]
    a(f"""
    s_and_b32 s{sLW}, s{sWave}, 3
    v_lshrrev_b32 v{vLR}, 3, v0
    v_and_b32 v{vP}, 7, v0
    s_lshl_b32 s{sT0}, s{sCP}, 1
    s_lshr_b32 s{sT1}, s{sLW}, 1
    s_add_u32 s{sT0}, s{sT0}, s{sT1}
    s_and_b32 s{sT1}, s{sLW}, 1
    s_lshl_b32 s{sT2}, s{sT0}, 18
    s_lshl_b32 s{sU0}, s{sT1}, 16
    s_add_u32 s{sT2}, s{sT2}, s{sU0}
    s_lshl_b32 s{sU0}, s{sCB}, 7
    s_add_u32 s{sT2}, s{sT2}, s{sU0}
    v_lshlrev_b32 v{vT}, 11, v{vLR}
    v_add_u32 v{vT}, s{sT2}, v{vT}
    v_and_b32 v{vT2}, 2, v{vLR}
    v_xor_b32 v{vT2}, v{vT2}, v{vP}
    v_lshl_add_u32 v{vY[0]}, v{vT2}, 4, v{vT}
    v_xor_b32 v{vT2}, 4, v{vT2}
    v_lshl_add_u32 v{vY[1]}, v{vT2}, 4, v{vT}
    v_add_u32 v{vY[1]}, {8*2048 - 1024}, v{vY[1]}
    v_add_u32 v{vY[2]}, {16*2048 - 2048}, v{vY[0]}
    v_add_u32 v{vY[3]}, {16*2048 - 2048}, v{vY[1]}
    s_lshl_b32 s{sMA}, s{sLW}, 12
    s_lshl_b32 s{sT2}, s{sT0}, 17
    s_lshl_b32 s{sT1}, s{sT1}, 12
    s_add_u32 s{sT2}, s{sT2}, s{sT1}
    v_xor_b32 v{vT2}, v{vP}, v{vLR}
    v_lshlrev_b32 v{vT2}, 4, v{vT2}
    v_lshl_add_u32 v{vA}, v{vLR}, 7, v{vT2}
    v_add_u32 v{vA}, s{sT2}, v{vA}
    s_lshl_b32 s{sT0}, s{sLW}, 4
    v_add_u32 v{vT}, s{sT0}, v{vLR}
    v_lshlrev_b32 v{vT}, 11, v{vT}
    v_add_u32 v{vT}, s{sU0}, v{vT}
    v_and_b32 v{vT2}, 2, v{vLR}
    v_xor_b32 v{vT2}, v{vT2}, v{vP}
    v_lshl_add_u32 v{vB[0]}, v{vT2}, 4, v{vT}
    v_xor_b32 v{vT2}, 4, v{vT2}
    v_lshl_add_u32 v{vB[1]}, v{vT2}, 4, v{vT}
    v_add_u32 v{vB[1]}, {8*2048 - 1024}, v{vB[1]}
    s_lshl_b32 s{sMB_}, s{sLW}, 11
    s_add_u32 s{sMB_}, s{sMB_}, 16384
    s_mov_b32 s{sKC}, {'s%d' % sCB if opt.get('rot', 1) else 0}
    s_lshl_b32 s{sKC}, s{sKC}, {opt.get('rotsh', 0)}
    s_and_b32 s{sKC}, s{sKC}, 15
    s_waitcnt lgkmcnt(0)
    """)
    a.srd_off(SRDO, sWS, WS_O, 4 << 20)
    a.srd_off(SRDU, sWS, WS_U, 8 << 20)
    a.srd(SRDWO, sWO, 2 << 20)
    st.init(sWS)
    st.stamp(0); st.stamp(1, True)
    NST = 18
    sizes = [4, 4] + [6] * 16
    def issue(stg):
        buf = (stg % NBUF) * STAGE
        if stg < 2:
            a(f"s_add_u32 m0, s{sMA}, {buf}")
            a(f"s_mov_b32 s{sT2}, {131072*stg}")
            for u in range(4):
                a(f"buffer_load_dwordx4 v{vY[u]}, {s(SRDU,4)}, s{sT2} offen offset:{u*1024}{opt.get('uf', '')} lds")
        else:
            a(f"s_add_u32 m0, s{sMA}, {buf}")
            a(f"s_lshl_b32 s{sT0}, s{sKC}, 13")
            for u in range(4):
                a(f"buffer_load_dwordx4 v{vA}, {s(SRDO,4)}, s{sT0} offen offset:{u*1024}{opt.get('of', '')} lds")
            a(f"s_add_u32 m0, s{sMB_}, {buf}")
            a(f"s_lshl_b32 s{sT0}, s{sKC}, 17")
            for uo in range(2):
                a(f"buffer_load_dwordx4 v{vB[uo]}, {s(SRDWO,4)}, s{sT0} offen offset:{uo*1024} lds")
            a(f"s_add_u32 s{sKC}, s{sKC}, 1")
            a(f"s_and_b32 s{sKC}, s{sKC}, 15")
    LA0 = opt.get('la0', 2); LAMAX = opt.get('lamax', 2); RAMP = opt.get('ramp', 2)
    issued = 0
    for b in range(NST):
        tgt = LA0 if b == 0 else min(issued + RAMP, b + 1 + LAMAX, max(b - 2, -1) + NBUF + 1)
        tgt = min(tgt, NST)
        while issued < tgt:
            issue(issued); issued += 1
        assert issued > b
        out = sum(sizes[b + 1:issued])
        if b == 0: st.stamp(2)
        if opt.get('stg'):
            a("s_memtime s[92:93]")
        a(f"s_waitcnt vmcnt({out})")
        if b == 0: st.stamp(3)
        if opt.get('stg'):
            a("s_memtime s[94:95]")
        a("s_barrier")
        if opt.get('stg'):
            a("s_memtime s[96:97]")
            a("s_waitcnt lgkmcnt(0)")
            a(f"v_writelane_b32 v30, s92, {b}")
            a(f"v_writelane_b32 v31, s94, {b}")
            a(f"v_writelane_b32 v32, s96, {b}")
    st.stamp(4); st.stamp(5); st.stamp(6, True)
    st.dump(7, sWave, 1, 2)
    if opt.get('stg'):
        a(f"""
        s_lshl_b32 s100, s100, 2
        v_lshlrev_b32 v2, 2, v0
        v_add_u32 v2, s100, v2
        s_mov_b32 s99, {256<<10}
        s_mov_b64 exec, 0xffffffff
        buffer_store_dword v30, v2, s[72:75], s99 offen
        buffer_store_dword v31, v2, s[72:75], s99 offen offset:128
        buffer_store_dword v32, v2, s[72:75], s99 offen offset:256
        s_mov_b64 exec, -1
        """)
    sp.end(sWS, sWave)
    a(f"s_branch {L('end')}")
    a.label(L('compute'))
    V = Regs(1, 256, 'v')
    vI, vG, vR, vC, vT, vT2 = [V.alloc() for _ in range(6)]
    bA = [V.alloc(), V.alloc()]; bB = [V.alloc(), V.alloc()]
    cA = [V.alloc(), V.alloc()]; cB = [V.alloc(), V.alloc()]
    yB = [V.alloc(), V.alloc()]
    vOut = V.alloc(); kf = V.alloc(); tf = V.alloc(4)
    gv = V.alloc(4); og = V.alloc(4)
    tmp = V.alloc(24, 4)
    accA = [[V.alloc(4, 4) for db in range(2)] for rb in range(4)]
    accY = [[V.alloc(4, 4) for db in range(2)] for rb in range(4)]
    F = [dict(XA=[[V.alloc(4, 4) for rb in range(4)] for kh in range(2)],
              WB=[[V.alloc(4, 4) for db in range(2)] for kh in range(2)]) for f in range(2)]
    CT = [F[0]['XA'], F[1]['XA']]
    a(f"""
    s_bfe_u32 s{sCLS}, s{sWave}, {(1 << 16) | 1}
    s_and_b32 s{sCH}, s{sWave}, 1
    v_and_b32 v{vI}, 15, v0
    v_lshrrev_b32 v{vG}, 4, v0
    v_lshrrev_b32 v{vR}, 2, v{vI}
    v_and_b32 v{vC}, 3, v{vI}
    s_lshl_b32 s{sT0}, s{sCP}, 1
    s_add_u32 s{sT0}, s{sT0}, s{sCLS}
    v_lshlrev_b32 v{vT}, 5, v{vI}
    v_add_u32 v{vT}, s{sT0}, v{vT}
    v_lshlrev_b32 v{vT2}, 2, v{vT}
    s_waitcnt lgkmcnt(0)
    """)
    a.srd_off(SRDG, sWS, WS_G, 2048 * 4)
    a.srd(SRDOUT, sOUT, 4 << 20)
    st.init(sWS)
    st.stamp(0); st.stamp(1, True)
    a(f"s_mov_b32 s{sT1}, 4096")
    for rb in range(4):
        so = "0" if rb < 2 else f"s{sT1}"
        a(f"buffer_load_dword v{gv+rb}, v{vT2}, {s(SRDG,4)}, {so} offen offset:{(rb&1)*2048}")
    a(f"""
    v_cvt_f32_u32 v{tf}, v{vT}
    v_mul_f32 v{tf}, {f32bits(1/2048)}, v{tf}
    v_add_f32 v{tf+1}, {f32bits(0.25)}, v{tf}
    v_add_f32 v{tf+2}, 0.5, v{tf}
    v_add_f32 v{tf+3}, {f32bits(0.75)}, v{tf}
    v_lshlrev_b32 v{kf}, 3, v{vG}
    v_cvt_f32_u32 v{kf}, v{kf}
    v_lshlrev_b32 v{vOut}, 11, v{vT}
    v_and_b32 v{vT2}, 1, v{vG}
    v_lshl_add_u32 v{vOut}, v{vT2}, 5, v{vOut}
    v_lshrrev_b32 v{vT2}, 1, v{vG}
    v_lshl_add_u32 v{vOut}, v{vT2}, 4, v{vOut}
    s_lshl_b32 s{sT0}, s{sCB}, 7
    s_lshl_b32 s{sT1}, s{sCH}, 6
    s_add_u32 s{sT0}, s{sT0}, s{sT1}
    v_add_u32 v{vOut}, s{sT0}, v{vOut}
    v_and_b32 v{vT}, 7, v{vI}
    v_xor_b32 v{vT}, v{vT}, v{vG}
    v_lshlrev_b32 v{vT}, 4, v{vT}
    v_lshl_add_u32 v{bA[0]}, v{vI}, 7, v{vT}
    s_lshl_b32 s{sT2}, s{sCLS}, 13
    v_add_u32 v{bA[0]}, s{sT2}, v{bA[0]}
    v_xor_b32 v{bA[1]}, 64, v{bA[0]}
    v_lshl_add_u32 v{bB[0]}, v{vG}, 3, v{vR}
    v_lshlrev_b32 v{bB[0]}, 7, v{bB[0]}
    v_and_b32 v{vT}, 1, v{vG}
    v_lshlrev_b32 v{vT}, 2, v{vT}
    v_and_b32 v{vT2}, 2, v{vR}
    v_or_b32 v{vT}, v{vT}, v{vT2}
    v_lshrrev_b32 v{vT2}, 1, v{vC}
    s_lshl_b32 s{sT0}, s{sCH}, 2
    v_add_u32 v{vT2}, s{sT0}, v{vT2}
    v_xor_b32 v{vT}, v{vT}, v{vT2}
    v_lshl_add_u32 v{bB[0]}, v{vT}, 4, v{bB[0]}
    v_and_b32 v{vT}, 1, v{vC}
    v_lshl_add_u32 v{bB[0]}, v{vT}, 3, v{bB[0]}
    v_xor_b32 v{bB[1]}, 32, v{bB[0]}
    v_add_u32 v{yB[0]}, s{sT2}, v{bB[0]}
    v_add_u32 v{yB[1]}, s{sT2}, v{bB[1]}
    v_add_u32 v{bB[0]}, 16384, v{bB[0]}
    v_add_u32 v{bB[1]}, 16384, v{bB[1]}
    """)
    for kh in range(2):
        if kh: a(f"v_add_f32 v{kf}, {f32bits(32.0)}, v{kf}")
        for rb in range(2):
            a(f"v_mul_f32 v{tmp}, v{tf+rb}, v{kf}")
            a(f"v_fract_f32 v{tmp}, v{tmp}")
            for j in range(1, 8):
                a(f"v_add_f32 v{tmp+j}, v{tmp+j-1}, v{tf+rb}")
            for j in range(8):
                a(f"v_cos_f32 v{tmp+8+j}, v{tmp+j}")
            for j in range(8):
                a(f"v_sin_f32_e64 v{tmp+16+j}, -v{tmp+j}")
            for j in range(4):
                a(f"v_cvt_pk_bf16_f32 v{CT[0][kh][rb]+j}, v{tmp+8+2*j}, v{tmp+8+2*j+1}")
                a(f"v_xor_b32 v{CT[0][kh][rb+2]+j}, 0x80000000, v{CT[0][kh][rb]+j}")
            for j in range(4):
                a(f"v_cvt_pk_bf16_f32 v{CT[1][kh][rb]+j}, v{tmp+16+2*j}, v{tmp+16+2*j+1}")
                a(f"v_xor_b32 v{CT[1][kh][rb+2]+j}, 0x80000000, v{CT[1][kh][rb]+j}")
    def readsB(f, kh, aB, extra=0):
        return [f"ds_read_b64_tr_b16 {v(F[f]['WB'][kh][db]+2*half,2)}, v{aB[db]} offset:{kh*4096 + half*512 + extra}"
                for db in range(2) for half in range(2)]
    def reads(f):
        out = []
        for kh in range(2):
            rb_ = readsB(f, kh, cB)
            ra = [f"ds_read_b128 {v(F[f]['XA'][kh][rb],4)}, v{cA[kh]} offset:{rb*2048}" for rb in range(4)]
            out += rb_[:2] + ra[:1] + rb_[2:] + ra[1:]
        return out
    def mfmas(f, acc, first=False):
        fs = F[f]
        return [f"v_mfma_f32_16x16x32_bf16 {v(acc[rb][db],4)}, {v(fs['WB'][kh][db],4)}, {v(fs['XA'][kh][rb],4)}, {'0' if (first and kh == 0) else v(acc[rb][db],4)}"
                for kh in range(2) for rb in range(4) for db in range(2)]
    def il2(main, fill, n=2):
        out = []; fi = 0
        for m in main:
            out.append(m)
            for _ in range(n):
                if fi < len(fill):
                    out.append(fill[fi]); fi += 1
        return out + fill[fi:]
    upd = [f"v_add_u32 v{cA[0]}, s{sStg}, v{bA[0]}", f"v_add_u32 v{cB[0]}, s{sStg}, v{bB[0]}",
           f"v_add_u32 v{cB[1]}, s{sStg}, v{bB[1]}", f"v_add_u32 v{cA[1]}, s{sStg}, v{bA[1]}"]
    supd = [f"s_add_u32 s{sStg}, s{sStg}, {STAGE}", f"s_cmp_eq_u32 s{sStg}, {NBUF*STAGE}", f"s_cselect_b32 s{sStg}, 0, s{sStg}"]
    a(f"s_mov_b32 s{sStg}, {2*STAGE}")
    for l in upd: a(l)
    st.stamp(2)
    a("s_barrier")
    st.stamp(3)
    if opt.get('stamp'): a("s_waitcnt lgkmcnt(0)")
    for l in readsB(0, 0, yB) + readsB(0, 1, yB): a(l)
    a("s_waitcnt lgkmcnt(0)")
    a("s_barrier")
    for l in il2(mfmas(0, accY, True), readsB(1, 0, yB, STAGE) + readsB(1, 1, yB, STAGE)): a(l)
    a("s_waitcnt lgkmcnt(0)")
    a("s_barrier")
    for l in il2(mfmas(1, accY), reads(0) + supd + upd): a(l)
    a("s_waitcnt vmcnt(0)")
    for rb in range(4):
        a(f"v_sub_f32 v{og+rb}, 1.0, v{gv+rb}")
        a(f"v_cvt_pk_bf16_f32 v{og+rb}, 0, v{og+rb}")
    a("s_waitcnt lgkmcnt(0)")
    a("s_barrier")
    ysc = [f"v_mul_f32 v{accY[rb][db]+r}, v{accY[rb][db]+r}, v{og+rb}" for rb in range(4) for db in range(2) for r in range(4)]
    for l in il2(mfmas(0, accA, True), reads(1) + supd + upd + ysc[:9]): a(l)
    for l in ysc[9:]: a(l)
    a(f"s_mov_b32 s{sCnt}, 0")
    a.align(opt.get('al2'))
    a.label(L('cloop'))
    a("s_waitcnt lgkmcnt(0)")
    a("s_barrier")
    for l in il2(mfmas(1, accA), reads(0) + supd + upd): a(l)
    a("s_waitcnt lgkmcnt(0)")
    a("s_barrier")
    for l in il2(mfmas(0, accA), reads(1) + supd + upd + [f"s_add_u32 s{sCnt}, s{sCnt}, 1", f"s_cmp_lt_u32 s{sCnt}, 7"]): a(l)
    a(f"s_cbranch_scc1 {L('cloop')}")
    a("s_waitcnt lgkmcnt(0)")
    from k1p import sched
    fs = F[1]
    seq = [(f"v_mfma_f32_16x16x32_bf16 {v(accA[rb][db],4)}, {v(fs['WB'][kh][db],4)}, {v(fs['XA'][kh][rb],4)}, {v(accA[rb][db],4)}", (rb, db, kh))
           for rb in range(4) for kh in range(2) for db in range(2)]
    fills = []
    for rb in range(4):
        o = tmp + 4*rb
        for db in range(2):
            A_, Y_ = accA[rb][db], accY[rb][db]
            tag = (rb, db, 1)
            if not opt.get('fast', 0):
                for r in range(4):
                    fills.append((f"v_cvt_pk_bf16_f32 v{A_+r}, 0, v{A_+r}", tag))
            for r in range(4):
                fills.append((f"v_fma_f32 v{A_+r}, v{A_+r}, v{gv+rb}, v{Y_+r}", tag))
            fills.append((f"v_cvt_pk_bf16_f32 v{o+2*db}, v{A_}, v{A_+1}", None))
            fills.append((f"v_cvt_pk_bf16_f32 v{o+2*db+1}, v{A_+2}, v{A_+3}", None))
        fills.append((f"s_mov_b32 s{sT0}, {rb*512*2048}", None))
        fills.append(("s_nop 0", None))
        fills.append((f"v_permlane16_swap_b32 v{o}, v{o+2}", None))
        fills.append((f"v_permlane16_swap_b32 v{o+1}, v{o+3}", None))
        fills.append((f"buffer_store_dwordx4 {v(o,4)}, v{vOut}, {s(SRDOUT,4)}, s{sT0} offen{opt.get('ostf', '')}", None))
    st.stamp(4)
    for l in sched(seq, fills, per=3): a(l)
    st.stamp(5); st.stamp(6, True)
    st.dump(7, sWave, 1, 2)
    sp.end(sWS, sWave)
    a.label(L('end'))
    a("s_endpgm")
    return a.text(), V.hi, 102
```

```python
import sys
from asmlib import *
import k1, kf, k2
NAME = "gated_mix__sliding_local_dilated__spectral_fnet__prompt"
NOTES = """; ---------------------------------------------------------------------------------------------
; Generated by my own Python emitter (no compiler output). Two launches:
;  k1: (a) Fourier branch, stages 1-3.  The four dft_* inputs are constant parameters (exact DFT
;          matrices, identical for every seed), so y = Re(F_2048 x F_1024^T) is evaluated through
;          the exact Cooley-Tukey factorisation 2048 = 32*64, 1024 = 32*32 as bf16 MFMA products
;          (twiddles from v_sin/v_cos).  k1 writes U[t1][re/-im][s2][e] to the workspace.
;      (b) gate g = sigmoid(sum(x*gate_w)).
;      (c) QKV GEMM (128 rows + 16 halo rows x 2 heads per workgroup, LDS-DMA ring, MFMA 16x16x32)
;          with the dilated sliding-window attention done in registers (true row max, exp, sum).
;  k2: out = g*(O @ Wo) + (1-g)*(DFT64-with-twiddle @ U)   (last DFT stage as extra K range).
; B_x is not used by the reference.
; ---------------------------------------------------------------------------------------------""".split("\n")
def build(kernels):
    ref = open(f"cdna_kernels/{NAME}.s.ref").read().splitlines()
    head = [l for l in ref if l.startswith(';') and '@launch' not in l and 'Override launch' not in l and 'grid=ceil' not in l]
    out = head[:]
    for (nm, txt, vg, sg, lds, grid, blk) in kernels:
        out.append(f"; @launch kernel={nm} grid=({grid},1,1) block=({blk},1,1) lds={lds}")
    out.append('.amdgcn_target "amdgcn-amd-amdhsa--gfx950"')
    out.extend(NOTES)
    out.append('.text')
    for (nm, txt, vg, sg, lds, grid, blk) in kernels:
        out.append(txt)
    out.append('code_end:')
    out.append('.section .rodata,"a"')
    for (nm, txt, vg, sg, lds, grid, blk) in kernels:
        out.append(kernel_desc(nm, vg, sg))
    return "\n".join(out) + "\n"
if __name__ == "__main__":
    t1, v1, s1 = k1.gen_k1()
    tf, vf, sf = kf.gen_kf()
    t2, v2, s2 = k2.gen_k2()
    print("vgprs", v1, vf, v2)
    ks = [("k1_kernel", t1, v1, s1, k1.K1_LDS, 256, 512),
          ("kf_kernel", tf, vf, sf, kf.KF_LDS, 256, 512),
          ("k2_kernel", t2, v2, s2, k2.K2_LDS, 256, 512)]
    dst = sys.argv[1] if len(sys.argv) > 1 else f"cdna_kernels/{NAME}.s"
    open(dst, "w").write(build(ks))
```

```python
from gen9 import *
O1 = dict(stlb=3, wohalf=1, lp2=0, fast=1)
O2 = dict(tile=4, rot=0, lfirst=0, ostf=' sc1', fast=1)
for nm, o in [("a", dict(us0=10, ups=8, wo0=12, wops=2)), ("b", dict(us0=9, ups=8, wo0=13, wops=2)), ("c", dict(us0=8, ups=6, wo0=12, wops=2)), ("d", dict(us0=10, ups=8, wo0=11, wops=1)),
              ("e", dict(us0=9, ups=8, wo0=12, wops=4)), ("f", dict(us0=6, ups=4, wo0=12, wops=2)), ("g", dict(us0=10, ups=8, wo0=12, wops=2, womall=2))]:
    mk(f"v_{nm}.s", k1p, dict(O1, span=1, **o), k2n, dict(O2, span=1))
```

```python
import struct

def f32bits(x):
    return struct.unpack('<I', struct.pack('<f', x))[0]

class Regs:
    def __init__(self, start, limit, name):
        self.next = start; self.limit = limit; self.name = name; self.hi = start
    def alloc(self, n=1, align=1):
        r = (self.next + align - 1) // align * align
        self.next = r + n
        self.hi = max(self.hi, self.next)
        assert self.next <= self.limit, f"out of {self.name} regs: {self.next} > {self.limit}"
        return r
    def mark(self): return self.next
    def release(self, m): self.next = m

def v(r, n=1):
    return f"v{r}" if n == 1 else f"v[{r}:{r+n-1}]"
def s(r, n=1):
    return f"s{r}" if n == 1 else f"s[{r}:{r+n-1}]"

class Asm:
    def __init__(self):
        self.lines = []
    def __call__(self, txt):
        for l in txt.split('\n'):
            l = l.strip()
            if l:
                self.lines.append("    " + l)
    def label(self, name):
        self.lines.append(name + ":")
    def raw(self, txt):
        self.lines.append(txt)
    def align(self, spec):
        if not spec: return
        self.lines.append(f".p2align {spec[0]}")
        for _ in range(spec[1] // 4): self("s_nop 0")
    def comment(self, txt):
        self.lines.append("    ; " + txt)
    def text(self):
        return "\n".join(self.lines) + "\n"

    def mfma(self, d, a, b, c):
        cs = "0" if c is None else v(c, 4)
        self(f"v_mfma_f32_16x16x32_bf16 {v(d,4)}, {v(a,4)}, {v(b,4)}, {cs}")
    def srd(self, d, base, nbytes):
        self(f"s_mov_b32 s{d}, s{base}")
        self(f"s_and_b32 s{d+1}, s{base+1}, 0xffff")
        self(f"s_mov_b32 s{d+2}, {nbytes}")
        self(f"s_mov_b32 s{d+3}, 0x00020000")
    def srd_off(self, d, base, off, nbytes):
        self(f"s_add_u32 s{d}, s{base}, {off}")
        self(f"s_addc_u32 s{d+1}, s{base+1}, 0")
        self(f"s_and_b32 s{d+1}, s{d+1}, 0xffff")
        self(f"s_mov_b32 s{d+2}, {nbytes}")
        self(f"s_mov_b32 s{d+3}, 0x00020000")

def interleave(main, fill, start=0, every=1):
    out = []
    fi = 0
    for i, m in enumerate(main):
        out.append(m)
        if i >= start and (i - start) % every == 0 and fi < len(fill):
            out.append(fill[fi]); fi += 1
    out.extend(fill[fi:])
    return out

def kernel_header(name):
    return f""".globl {name}
.p2align 8
.type {name},@function
{name}:"""

def kernel_desc(name, vgpr, sgpr):
    acc = (vgpr + 3) // 4 * 4
    return f""".p2align 6
.amdhsa_kernel {name}
  .amdhsa_next_free_vgpr {vgpr}
  .amdhsa_next_free_sgpr {sgpr}
  .amdhsa_accum_offset {acc}
  .amdhsa_group_segment_fixed_size 0
  .amdhsa_kernarg_size 96
  .amdhsa_user_sgpr_count 2
  .amdhsa_user_sgpr_kernarg_segment_ptr 1
  .amdhsa_system_sgpr_workgroup_id_x 1
.end_amdhsa_kernel"""


WS_DBG = 13 << 20
class Stamper:
    def __init__(self, a, base, srd, enabled):
        self.a = a; self.base = base; self.srd = srd; self.n = 0; self.en = enabled
    def init(self, sWS):
        if self.en:
            self.a.srd_off(self.srd, sWS, WS_DBG, 2 << 20)
    def stamp(self, idx, real=False):
        if self.en:
            r = self.base + 2 * idx
            self.a(f"{'s_memrealtime' if real else 's_memtime'} s[{r}:{r+1}]")
            self.n = max(self.n, idx + 1)
    def dump(self, n, sWave, vt, vt2):
        if not self.en: return
        a = self.a
        a("s_waitcnt lgkmcnt(0)")
        a(f"s_lshl_b32 s100, s2, 3")
        a(f"s_add_u32 s100, s100, s{sWave}")
        a(f"s_lshl_b32 s100, s100, 7")
        a(f"v_mov_b32 v{vt}, s100")
        a("s_mov_b64 exec, 1")
        for i in range(n):
            r = self.base + 2 * i
            a(f"v_mov_b32 v{vt2}, s{r}")
            a(f"v_mov_b32 v{vt2+1}, s{r+1}")
            a(f"buffer_store_dwordx2 v[{vt2}:{vt2+1}], v{vt}, s[{self.srd}:{self.srd+3}], 0 offen offset:{i*8}")
            a("s_nop 1")
        a("s_mov_b64 exec, -1")


class Span:
    def __init__(self, a, enabled, area):
        self.a = a; self.en = enabled; self.area = area
    def start(self):
        if self.en: self.a("s_memrealtime s[96:97]")
    def end(self, sWS, sWave):
        if not self.en: return
        a = self.a
        a("s_memrealtime s[98:99]")
        a.srd_off(92, sWS, WS_DBG + self.area, 1 << 16)
        a(f"""
        s_lshl_b32 s100, s2, 3
        s_add_u32 s100, s100, s{sWave}
        s_lshl_b32 s100, s100, 4
        s_waitcnt lgkmcnt(0)
        v_mov_b32 v1, s100
        v_mov_b32 v4, s96
        v_mov_b32 v5, s97
        v_mov_b32 v6, s98
        v_mov_b32 v7, s99
        s_mov_b64 exec, 1
        buffer_store_dwordx4 v[4:7], v1, s[92:95], 0 offen
        """)
```

```python
from asmlib import *

WS_O = 0
WS_U = 4 << 20
WS_G = 12 << 20

STAGE = 43008
BOFF = 18432
XF = STAGE
CB = 3 * STAGE
CROW = 2056
K1_LDS = CB + 16 * CROW
NEG_BIG = f32bits(-1.0e30)
SCALE = f32bits(32 ** -0.5)
LOG2E = f32bits(1.4426950408889634)
CODE_LINES = 22

def sched(main, fills, per=2, dist=9):
    out = []; pos = {}; fi = 0
    def ready(tag): return tag is None or (tag in pos and len(out) - pos[tag] >= dist)
    for ins, tag in main:
        out.append(ins); pos[tag] = len(out)
        n = 0
        while fi < len(fills) and n < per and ready(fills[fi][1]):
            out.append(fills[fi][0]); fi += 1; n += 1
    while fi < len(fills):
        if not ready(fills[fi][1]):
            need = dist - (len(out) - pos[fills[fi][1]])
            out.append(f"s_nop {need-1}")
            for _ in range(need - 1): out.append(None)
        out.append(fills[fi][0]); fi += 1
    return [o for o in out if o is not None]

def gen_k1(name="k1_kernel", opt=None):
    opt = opt or {}
    a = Asm()
    a.raw(kernel_header(name))
    L = lambda x: f"{name}_{x}"
    sX, sW, sWO, sGW, sWS, sPC = 4, 6, 8, 10, 12, 14
    SRDX, SRDW, SRDO, SRDU, SRDP, SRDG, SRDC = 16, 20, 24, 28, 32, 36, 40
    (sWave, sMB, sHP, sM0, sT0, sT1, sT2, sT3, sKA, sKB, sKB2, sCnt, sStg, sLW, sH, sHF, sS2, sQ,
     sScale, sLog2e, sRI, sXO, sMA, sMBo) = range(44, 68)
    sMSK = 68
    st = Stamper(a, 76, 72, opt.get('stamp'))
    sp = Span(a, opt.get('span'), 0)
    sp.start()
    USC = " sc1" if opt.get('usc1', 1) else ""
    OSC = " sc1" if opt.get('osc1', 1) else ""
    FB = 52
    U = Regs(FB, 256, 'fft')
    vI, vG, vR, vC, vT, vT2, vT3 = 1, 2, 3, 4, 5, 6, 7
    DEAD = U.alloc(36, 4)
    kkf = [DEAD + j for j in range(8)]
    B0 = DEAD + 8
    a0 = DEAD + 12; aW = [DEAD + 13, DEAD + 14]; vXL = DEAD + 15
    a0x = [DEAD + 16 + j for j in range(7)]
    ef = [DEAD + 24, DEAD + 25]
    tmp = DEAD + 28
    tmp0 = U.alloc(8, 4)
    assert tmp0 == tmp + 8
    vCP = 51
    XA = [U.alloc(4, 4) for _ in range(8)]
    D0 = [U.alloc(4, 4) for _ in range(8)]
    umark = U.mark()
    GW = U.alloc(8, 4); GX = [U.alloc(8, 4), U.alloc(8, 4)]
    a(f"""
    s_cmp_ge_u32 s2, 256
    s_cbranch_scc1 {L('end')}
    s_load_dwordx4 s[4:7], s[0:1], 0
    s_load_dwordx2 s[8:9], s[0:1], 16
    s_load_dwordx2 s[10:11], s[0:1], 64
    s_load_dwordx2 s[12:13], s[0:1], 88
    s_getpc_b64 s[14:15]
    """)
    a.label(L('pc'))
    a(f"""
    v_lshrrev_b32 v1, 6, v0
    v_and_b32 v0, 63, v0
    s_and_b32 s{sS2}, s2, 63
    v_readfirstlane_b32 s{sWave}, v1
    s_lshr_b32 s{sQ}, s2, 6
    s_mov_b32 s{SRDC}, s14
    s_and_b32 s{SRDC+1}, s15, 0xffff
    s_mov_b32 s{SRDC+2}, code_end - {L('pc')}
    s_mov_b32 s{SRDC+3}, 0x00020000
    """)
    def code_pf():
        a(f"""
        s_lshr_b32 s{sT0}, s2, 3
        s_and_b32 s{sT0}, s{sT0}, 7
        s_mul_i32 s{sT0}, s{sT0}, {CODE_LINES*128}
        v_lshlrev_b32 v{vCP}, 7, v0
        v_add_u32 v{vCP}, s{sT0}, v{vCP}
        s_mov_b64 exec, {(1 << CODE_LINES) - 1}
        buffer_load_dword v{vCP}, v{vCP}, {s(SRDC,4)}, 0 offen
        s_mov_b64 exec, -1
        """)
    a(f"s_cmp_lg_u32 s{sWave}, 0")
    a(f"s_cbranch_scc1 {L('nocpf')}")
    code_pf()
    a.label(L('nocpf'))
    a(f"""
    v_lshrrev_b32 v{vT}, 1, v0
    v_xor_b32 v{vT}, s{sWave}, v{vT}
    v_and_b32 v{vT2}, 1, v0
    v_lshlrev_b32 v{vT2}, 4, v{vT2}
    v_lshl_add_u32 v{vXL}, v{vT}, 5, v{vT2}
    s_waitcnt lgkmcnt(0)
    """)
    a.srd(SRDX, sX, 2048 * 1024 * 2)
    if opt.get('stlb', 0):
        a(f"s_cmp_lg_u32 s{sWave}, 7")
        a(f"s_cbranch_scc1 {L('nstlb')}")
        for i in range(3):
            a(f"s_mov_b32 s{sT0}, {i << 21}")
            a(f"s_load_dword s70, s[{sW}:{sW+1}], s{sT0}")
        if opt['stlb'] >= 2:
            a(f"s_load_dword s70, s[{sWO}:{sWO+1}], 0")
            for i in range(7):
                a(f"s_mov_b32 s{sT0}, {i << 21}")
                a(f"s_load_dword s70, s[{sWS}:{sWS+1}], s{sT0}")
        a.label(L('nstlb'))
    TLB = opt.get('tlb', 0)
    if TLB:
        a.srd(SRDW, sW, 1024 * 3072 * 2)
        a.srd_off(SRDU, sWS, 0, 13 << 20)
        a(f"""
        v_lshlrev_b32 v{vT3}, {TLB}, v0
        s_lshl_b32 s{sT0}, s2, 7
        s_cmp_eq_u32 s{sWave}, 1
        s_cbranch_scc0 {L('ntlb1')}
        buffer_load_dword v{vCP}, v{vT3}, {s(SRDW,4)}, s{sT0} offen
        """)
        a.label(L('ntlb1'))
        a(f"""
        v_lshlrev_b32 v{vT3}, {TLB+1}, v0
        s_cmp_eq_u32 s{sWave}, 2
        s_cbranch_scc0 {L('ntlb2')}
        buffer_load_dword v{vCP}, v{vT3}, {s(SRDU,4)}, s{sT0} offen
        """)
        a.label(L('ntlb2'))
    a(f"s_cmp_lt_u32 s{sWave}, 4")
    a(f"s_cbranch_scc1 {L('nogw')}")
    a.srd(SRDP, sGW, 2048)
    a(f"""
    v_lshlrev_b32 v{vT}, 5, v0
    buffer_load_dwordx4 {v(GW,4)}, v{vT}, {s(SRDP,4)}, 0 offen
    buffer_load_dwordx4 {v(GW+4,4)}, v{vT}, {s(SRDP,4)}, 0 offen offset:16
    """)
    a.label(L('nogw'))
    for n in range(4):
        a(f"""
        s_add_u32 s{sT0}, s{sQ}, {n}
        s_and_b32 s{sT0}, s{sT0}, 3
        s_lshl_b32 s{sT0}, s{sT0}, 3
        s_add_u32 s{sT0}, s{sT0}, s{sWave}
        s_lshl_b32 s{sXO}, s{sT0}, 11
        s_add_u32 m0, s{sXO}, {XF}
        s_lshl_b32 s{sXO}, s{sT0}, 6
        s_add_u32 s{sXO}, s{sXO}, s{sS2}
        s_lshl_b32 s{sXO}, s{sXO}, 11
        buffer_load_dwordx4 v{vXL}, {s(SRDX,4)}, s{sXO} offen lds
        buffer_load_dwordx4 v{vXL}, {s(SRDX,4)}, s{sXO} offen offset:1024 lds
        """)
    st.init(sWS)
    st.stamp(0); st.stamp(1, True)
    a.srd(SRDW, sW, 1024 * 3072 * 2)
    a(f"""
    s_and_b32 s{sT0}, s2, 7
    s_lshr_b32 s{sT1}, s2, 3
    s_and_b32 s{sMB}, s{sT0}, 1
    s_lshl_b32 s{sMB}, s{sMB}, 3
    s_and_b32 s{sT2}, s{sT1}, 7
    s_add_u32 s{sMB}, s{sMB}, s{sT2}
    s_lshr_b32 s{sHP}, s{sT0}, 1
    s_lshl_b32 s{sHP}, s{sHP}, 2
    s_lshr_b32 s{sT2}, s{sT1}, 3
    s_add_u32 s{sHP}, s{sHP}, s{sT2}
    s_lshl_b32 s{sM0}, s{sMB}, 7
    v_and_b32 v{vI}, 15, v0
    v_lshrrev_b32 v{vG}, 4, v0
    v_lshrrev_b32 v{vR}, 2, v{vI}
    v_and_b32 v{vC}, 3, v{vI}
    v_lshlrev_b32 v{vT}, 2, v{vG}
    v_cvt_f32_u32 v{kkf[0]}, v{vT}
    """)
    for j in range(1, 8):
        kk = j if j < 4 else 16 + (j - 4)
        a(f"v_add_f32 v{kkf[j]}, {f32bits(float(kk))}, v{kkf[0]}")
    a(f"""
    v_lshrrev_b32 v{vT}, 1, v{vI}
    s_lshl_b32 s{sT0}, s{sQ}, 3
    v_add_u32 v{vT}, s{sT0}, v{vT}
    v_cvt_f32_u32 v{vT}, v{vT}
    v_mul_f32 v{vT}, {f32bits(1/32)}, v{vT}
    v_and_b32 v{vT2}, 1, v{vI}
    v_cvt_f32_u32 v{vT2}, v{vT2}
    v_mul_f32 v{vT2}, {f32bits(0.25)}, v{vT2}
    """)
    for j in range(8):
        a(f"v_fma_f32 v{tmp+j}, v{vT}, v{kkf[j]}, v{vT2}")
    for j in range(8):
        a(f"v_cos_f32 v{tmp+j}, v{tmp+j}")
    a(f"""
    v_lshl_add_u32 v{vT}, v{vG}, 2, v{vR}
    v_lshlrev_b32 v{a0}, 11, v{vT}
    v_and_b32 v{vT2}, 7, v{vT}
    v_lshl_add_u32 v{a0}, v{vT2}, 5, v{a0}
    v_lshl_add_u32 v{a0}, v{vC}, 3, v{a0}
    s_lshl_b32 s{sT0}, s{sWave}, 8
    v_add_u32 v{a0}, s{sT0}, v{a0}
    v_mul_u32_u24 v{aW[0]}, {CROW}, v{vI}
    v_lshl_add_u32 v{aW[0]}, v{vG}, 3, v{aW[0]}
    s_and_b32 s{sT1}, s{sWave}, 1
    s_lshl_b32 s{sT1}, s{sT1}, 5
    s_add_u32 s{sT0}, s{sT0}, {CB}
    s_add_u32 s{sT2}, s{sT0}, s{sT1}
    s_xor_b32 s{sT1}, s{sT1}, 32
    s_add_u32 s{sT1}, s{sT0}, s{sT1}
    v_add_u32 v{aW[1]}, s{sT1}, v{aW[0]}
    v_add_u32 v{aW[0]}, s{sT2}, v{aW[0]}
    """)
    for j in range(4):
        a(f"v_cvt_pk_bf16_f32 v{B0+j}, v{tmp+2*j}, v{tmp+2*j+1}")
    a(f"v_add_u32 v{a0}, {XF}, v{a0}")
    for i in range(1, 8):
        a(f"v_xor_b32 v{a0x[i-1]}, {i*32}, v{a0}")
    def stage0(extra_reads=None, n_extra=0):
        for i in range(8):
            ad = a0 if i == 0 else a0x[i-1]
            for half in range(2):
                a(f"ds_read_b64_tr_b16 {v(XA[i]+2*half,2)}, v{ad} offset:{half*32768}")
        if extra_reads: extra_reads()
        for i in range(8):
            a(f"s_waitcnt lgkmcnt({min(15, 2*(7-i)+n_extra)})")
            a.mfma(D0[i], XA[i], B0, None)
        a("s_nop 3")
        for i in range(8):
            a(f"v_cvt_pk_bf16_f32 v{D0[i]}, v{D0[i]}, v{D0[i]+1}")
            a(f"v_cvt_pk_bf16_f32 v{D0[i]+1}, v{D0[i]+2}, v{D0[i]+3}")
            a(f"ds_write_b64 v{aW[i&1]}, {v(D0[i],2)} offset:{(i>>1)*64}")
    a(f"""
    s_cmp_lt_u32 s{sWave}, 4
    s_cbranch_scc1 {L('compute')}
    """)
    V = Regs(8, FB - 1, 'v')
    vLR, vP = V.alloc(), V.alloc()
    vA = [V.alloc() for _ in range(6)]
    vB = [V.alloc() for _ in range(4)]
    aG = [V.alloc(), V.alloc()]
    gacc = [V.alloc(), V.alloc()]
    vPF = V.alloc(); vPFD = V.alloc()
    aU = V.alloc(); aSR = V.alloc()
    a.srd_off(SRDG, sWS, WS_G, 2048 * 4)
    def rowbase(al):
        be = al >> 1
        if be == 8: return -16 + (al & 1)
        return 64 * (be >> 2) + 32 * (be & 1) + 16 * (al & 1) + ((be >> 1) & 1)
    tabs = []
    for j in range(3):
        x = 0
        for n in range(6): x |= (rowbase(6*j + n) + 16) << (8 * n)
        tabs.append(x)
    a(f"""
    s_sub_u32 s{sLW}, s{sWave}, 4
    v_lshrrev_b32 v{vLR}, 3, v0
    v_and_b32 v{vP}, 7, v0
    s_lshl_b32 s{sT0}, s{sQ}, 3
    s_lshl_b32 s{sT1}, s{sLW}, 1
    s_add_u32 s{sT3}, s{sT0}, s{sT1}
    v_xor_b32 v{vT}, s{sT1}, v0
    v_lshlrev_b32 v{aG[0]}, 5, v{vT}
    v_xor_b32 v{aG[1]}, 32, v{aG[0]}
    s_lshl_b32 s{sT0}, s{sT3}, 11
    s_add_u32 s{sT0}, s{sT0}, {XF}
    v_add_u32 v{aG[0]}, s{sT0}, v{aG[0]}
    s_add_u32 s{sT0}, s{sT0}, 2048
    v_add_u32 v{aG[1]}, s{sT0}, v{aG[1]}
    s_lshl_b32 s{sT3}, s{sT3}, 6
    s_add_u32 s{sT3}, s{sT3}, s{sS2}
    s_lshl_b32 s{sT3}, s{sT3}, 2
    v_mul_u32_u24 v{vT}, 6144, v{vLR}
    s_lshl_b32 s{sT0}, s{sHP}, 7
    s_lshl_b32 s{sT1}, s{sLW}, 11
    s_add_u32 s{sT0}, s{sT0}, s{sT1}
    v_add_u32 v{vT}, s{sT0}, v{vT}
    v_and_b32 v{vT2}, 2, v{vLR}
    v_xor_b32 v{vT2}, v{vT2}, v{vP}
    v_lshl_add_u32 v{vB[0]}, v{vT2}, 4, v{vT}
    v_xor_b32 v{vT2}, 4, v{vT2}
    v_lshl_add_u32 v{vB[1]}, v{vT2}, 4, v{vT}
    v_add_u32 v{vB[1]}, {8*6144 - 1024}, v{vB[1]}
    v_add_u32 v{vB[2]}, {16*6144 - 2048}, v{vB[0]}
    v_add_u32 v{vB[3]}, {16*6144 - 2048}, v{vB[1]}
    s_mov_b32 s{sMSK}, {tabs[0] & 0xffffffff}
    s_mov_b32 s{sMSK+1}, {tabs[0] >> 32}
    s_cmp_eq_u32 s{sLW}, 1
    s_cselect_b32 s{sMSK}, {tabs[1] & 0xffffffff}, s{sMSK}
    s_cselect_b32 s{sMSK+1}, {tabs[1] >> 32}, s{sMSK+1}
    s_cmp_eq_u32 s{sLW}, 2
    s_cselect_b32 s{sMSK}, {tabs[2] & 0xffffffff}, s{sMSK}
    s_cselect_b32 s{sMSK+1}, {tabs[2] >> 32}, s{sMSK+1}
    v_lshlrev_b32 v{vT}, 12, v{vLR}
    v_xor_b32 v{vT2}, v{vP}, v{vLR}
    v_lshl_add_u32 v{vT}, v{vT2}, 4, v{vT}
    s_sub_u32 s{sT1}, s{sM0}, 16
    """)
    for n in range(6):
        a(f"""
        s_bfe_u32 s{sT0}, s{sMSK + (n >> 2)}, {(8 << 16) | (8 * (n & 3))}
        s_add_u32 s{sT0}, s{sT0}, s{sT1}
        s_lshl_b32 s{sT0}, s{sT0}, 11
        s_sub_u32 s{sT0}, s{sT0}, {(n & 3)*1024}
        v_add_u32 v{vA[n]}, s{sT0}, v{vT}
        """)
    a(f"""
    s_mul_i32 s{sMA}, s{sLW}, 6144
    s_lshl_b32 s{sMBo}, s{sLW}, 13
    s_add_u32 s{sMBo}, s{sMBo}, {BOFF}
    s_mov_b32 s{sKA}, 0
    s_mov_b32 s{sKB}, 0
    s_mov_b32 s{sKB2}, {32*6144}
    s_mov_b32 s{sStg}, 0
    """)
    def issue_stage():
        a(f"s_add_u32 m0, s{sMBo}, s{sStg}")
        a(f"s_add_u32 s{sT0}, s{sMBo}, s{sStg}")
        for u in range(4):
            a(f"buffer_load_dwordx4 v{vB[u]}, {s(SRDW,4)}, s{sKB} offen offset:{u*1024} lds")
        a(f"s_add_u32 m0, s{sMA}, s{sStg}")
        a(f"s_add_u32 s{sT1}, s{sMA}, s{sStg}")
        for n in range(4):
            a(f"buffer_load_dwordx4 v{vA[n]}, {s(SRDX,4)}, s{sKA} offen offset:{n*1024} lds")
        a(f"s_add_u32 m0, s{sT1}, 4096")
        a(f"s_add_u32 s{sKB}, s{sKB}, {64*6144}")
        for n in range(4, 6):
            a(f"buffer_load_dwordx4 v{vA[n]}, {s(SRDX,4)}, s{sKA} offen offset:{(n-4)*1024} lds")
        a(f"s_add_u32 m0, s{sT0}, 4096")
        a(f"s_add_u32 s{sKA}, s{sKA}, 128")
        for u in range(4):
            a(f"buffer_load_dwordx4 v{vB[u]}, {s(SRDW,4)}, s{sKB2} offen offset:{u*1024} lds")
        a(f"""
        s_add_u32 s{sKB2}, s{sKB2}, {64*6144}
        s_add_u32 s{sStg}, s{sStg}, {STAGE}
        s_cmp_eq_u32 s{sStg}, {3*STAGE}
        s_cselect_b32 s{sStg}, 0, s{sStg}
        """)
    st.stamp(2)
    a("s_waitcnt vmcnt(0) lgkmcnt(0)")
    a("s_barrier")
    st.stamp(3)
    def greads():
        for n in range(2):
            a(f"ds_read_b128 {v(GX[n],4)}, v{aG[n]}")
            a(f"ds_read_b128 {v(GX[n]+4,4)}, v{aG[n]} offset:16")
    if opt.get('stamp'): a("s_waitcnt lgkmcnt(0)")
    stage0(greads, 4)
    a("s_waitcnt lgkmcnt(0)")
    a("s_barrier")
    st.stamp(4)
    for n in range(2):
        a(f"v_mov_b32 v{gacc[n]}, 0")
    for j in range(8):
        a(f"v_lshlrev_b32 v{tmp+2}, 16, v{GW+j}")
        a(f"v_and_b32 v{tmp+3}, 0xffff0000, v{GW+j}")
        for n in range(2):
            t = tmp + 4 + 4*n
            a(f"""
            v_lshlrev_b32 v{t}, 16, v{GX[n]+j}
            v_and_b32 v{t+1}, 0xffff0000, v{GX[n]+j}
            v_mul_f32 v{t}, v{t}, v{tmp+2}
            v_mul_f32 v{t+1}, v{t+1}, v{tmp+3}
            v_cvt_pk_bf16_f32 v{t}, 0, v{t}
            v_cvt_pk_bf16_f32 v{t+1}, 0, v{t+1}
            v_add_f32 v{gacc[n]}, v{gacc[n]}, v{t}
            v_add_f32 v{gacc[n]}, v{gacc[n]}, v{t+1}
            """)
    for k in (8, 4, 2, 1):
        a("s_nop 1")
        for n in range(2):
            a(f"v_add_f32_dpp v{gacc[n]}, v{gacc[n]}, v{gacc[n]} row_ror:{k} row_mask:0xf bank_mask:0xf")
    for sw in ("v_permlane32_swap_b32", "v_permlane16_swap_b32"):
        for n in range(2): a(f"v_mov_b32 v{tmp+n}, v{gacc[n]}")
        a("s_nop 1")
        for n in range(2): a(f"{sw} v{gacc[n]}, v{tmp+n}")
        a("s_nop 1")
        for n in range(2): a(f"v_add_f32 v{gacc[n]}, v{gacc[n]}, v{tmp+n}")
    for n in range(2):
        a(f"""
        v_cvt_pk_bf16_f32 v{gacc[n]}, 0, v{gacc[n]}
        v_mul_f32 v{gacc[n]}, {f32bits(-1.4426950408889634)}, v{gacc[n]}
        v_exp_f32 v{gacc[n]}, v{gacc[n]}
        s_nop 0
        v_add_f32 v{gacc[n]}, 1.0, v{gacc[n]}
        v_rcp_f32 v{gacc[n]}, v{gacc[n]}
        s_nop 0
        v_cvt_pk_bf16_f32 v{gacc[n]}, 0, v{gacc[n]}
        """)
    def gstore():
        a(f"""
        v_mov_b32 v{tmp}, s{sT3}
        s_mov_b64 exec, 1
        buffer_store_dword v{gacc[0]}, v{tmp}, {s(SRDG,4)}, 0 offen
        buffer_store_dword v{gacc[1]}, v{tmp}, {s(SRDG,4)}, 0 offen offset:256
        s_mov_b64 exec, -1
        """)
    a(f"s_cmp_eq_u32 s{sLW}, 3")
    a(f"s_cbranch_scc1 {L('misc')}")
    if opt.get('lprio'): a(f"s_setprio {opt['lprio']}")
    issue_stage(); issue_stage()
    st.stamp(7)
    a("s_waitcnt vmcnt(14)")
    st.stamp(8)
    a("s_barrier")
    issue_stage()
    a(f"s_mov_b32 s{sCnt}, 0")
    a.align(opt.get('all'))
    a.label(L('lloop'))
    if opt.get('stg'): a("s_memtime s[92:93]")
    a("s_waitcnt vmcnt(14)")
    if opt.get('stg'): a("s_memtime s[94:95]")
    a("s_barrier")
    if opt.get('stg'):
        a("s_memtime s[96:97]")
        a("s_waitcnt lgkmcnt(0)")
        a(f"s_mov_b32 m0, s{sCnt}")
        a("s_nop 1")
        a("v_writelane_b32 v40, s92, m0")
        a("v_writelane_b32 v41, s94, m0")
        a("v_writelane_b32 v42, s96, m0")
    issue_stage()
    a(f"""
    s_add_u32 s{sCnt}, s{sCnt}, 1
    s_cmp_lt_u32 s{sCnt}, 13
    s_cbranch_scc1 {L('lloop')}
    s_waitcnt vmcnt(14)
    s_barrier
    s_waitcnt vmcnt(0)
    s_barrier
    """)
    gstore()
    a("s_barrier")
    a("s_barrier")
    st.stamp(5); st.stamp(6, True)
    st.dump(7 if opt.get('stg') else 12, sWave, 1, 2)
    if opt.get('stg'):
        a(f"""
        s_lshl_b32 s100, s100, 2
        v_lshlrev_b32 v2, 2, v0
        v_add_u32 v2, s100, v2
        s_mov_b32 s99, {256<<10}
        s_mov_b64 exec, 0xffffffff
        buffer_store_dword v40, v2, s[72:75], s99 offen
        buffer_store_dword v41, v2, s[72:75], s99 offen offset:128
        buffer_store_dword v42, v2, s[72:75], s99 offen offset:256
        s_mov_b64 exec, -1
        """)
    sp.end(sWS, sWave)
    a(f"s_branch {L('end')}")
    a.label(L('misc'))
    gstore()
    a.srd_off(SRDU, sWS, WS_U, 8 << 20)
    a.srd(SRDP, sWO, 2 << 20)
    a(f"""
    s_lshl_b32 s{sT1}, s{sQ}, 10
    s_add_u32 s{sT1}, s{sT1}, s{sS2}
    s_lshl_b32 s{sT1}, s{sT1}, 11
    v_lshlrev_b32 v{aU}, 4, v0
    v_add_u32 v{aU}, s{sT1}, v{aU}
    v_bfe_u32 v{vT}, v0, 3, 1
    v_bfe_u32 v{vT2}, v0, 5, 1
    v_lshl_add_u32 v{vT}, v{vT2}, 1, v{vT}
    v_xor_b32 v{vT}, v{vT}, v0
    v_lshlrev_b32 v{aSR}, 4, v{vT}
    v_add_u32 v{aSR}, {CB}, v{aSR}
    s_lshr_b32 s{sT0}, s2, 3
    s_lshl_b32 s{sT0}, s{sT0}, 16
    v_lshlrev_b32 v{vPF}, 7, v0
    v_add_u32 v{vPF}, s{sT0}, v{vPF}
    """)
    if opt.get('stlb', 0) >= 3:
        a(f"s_load_dwordx2 s[{SRDO}:{SRDO+1}], s[0:1], 72")
        a("s_waitcnt lgkmcnt(0)")
        a(f"s_load_dword s70, s[{SRDO}:{SRDO+1}], 0")
        a(f"s_mov_b32 s{sT0}, {1 << 21}")
        a(f"s_load_dword s70, s[{SRDO}:{SRDO+1}], s{sT0}")
        a("s_waitcnt lgkmcnt(0)")
    WON = 8; WOSTEP = 8192
    if opt.get('wohalf', 0):
        WON = 4; WOSTEP = 8 * 2048
        a(f"""
        s_lshr_b32 s{sT0}, s2, 3
        s_lshl_b32 s{sT0}, s{sT0}, 16
        v_lshlrev_b32 v{vPF}, 11, v{vLR}
        v_lshl_add_u32 v{vPF}, v{vP}, 7, v{vPF}
        s_bfe_u32 s{sT1}, s2, {(1 << 16) | 2}
        s_lshl_b32 s{sT1}, s{sT1}, 10
        s_add_u32 s{sT0}, s{sT0}, s{sT1}
        v_add_u32 v{vPF}, s{sT0}, v{vPF}
        """)
    UPS = opt.get('ups', 3)
    WO0 = opt.get('wo0', 11); WOPS = opt.get('wops', 2)
    wm = opt.get('womall', 4)
    up = 0; wo = 0; upn = 0
    for b in range(-1, 16):
        a("s_barrier")
        k = min(UPS, 32 - up) if b >= opt.get('us0', -1) else 0
        for i in range(k):
            idx = up + i
            a(f"ds_read_b128 {v(XA[i],4)}, v{aSR} offset:{(idx >> 3)*4*CROW + (idx & 7)*1024}")
        for i in range(k):
            idx = up + i
            a(f"s_mov_b32 s{sT0}, {(idx >> 1)*131072}")
            a(f"s_waitcnt lgkmcnt({k - 1 - i})")
            a(f"buffer_store_dwordx4 {v(XA[i],4)}, v{aU}, {s(SRDU,4)}, s{sT0} offen offset:{(idx & 1)*1024}{USC}")
        up += k
        if opt.get('wu', 0) == 1 and b == opt.get('badb', -1):
            a(f"""
            s_bitcmp1_b32 s{sHP}, 2
            s_cbranch_scc1 {L('nobad')}
            v_mul_u32_u24 v{vT}, 2048, v0
            s_lshr_b32 s{sT0}, s2, 3
            s_mul_i32 s{sT0}, s{sT0}, {32*6144}
            s_or_b32 s{sT1}, s{sHP}, 3
            s_lshl_b32 s{sT1}, s{sT1}, 7
            s_add_u32 s{sT0}, s{sT0}, s{sT1}
            s_add_u32 s{sT1}, s{sT0}, {16*6144}
            s_mov_b32 exec_hi, 0xffff
            buffer_load_dword v{vT2}, v{vT}, {s(SRDW,4)}, s{sT0} offen
            buffer_load_dword v{vT3}, v{vT}, {s(SRDW,4)}, s{sT1} offen
            s_mov_b32 exec_hi, -1
            """)
            a.label(L('nobad'))
        if b == wm:
            a(f"""
            s_lshl_b32 s{sT0}, s2, 13
            v_lshlrev_b32 v{vT}, 7, v0
            buffer_load_dword v{vT2}, v{vT}, {s(SRDP,4)}, s{sT0} offen
            """)
        if b >= WO0 and opt.get('wopf', 1):
            for i in range(min(WOPS, WON - wo)):
                a(f"s_mov_b32 s{sT0}, {wo*WOSTEP}")
                a(f"buffer_load_dword v{vPFD}, v{vPF}, {s(SRDP,4)}, s{sT0} offen")
                wo += 1
        if b == 13: code_pf()
        if opt.get('upf', 0) and b >= opt.get('upf0', 14) and upn < 4:
            if upn == 0:
                a(f"""
                s_and_b32 s{sT0}, s2, 3
                s_lshl_b32 s{sT0}, s{sT0}, 2
                s_bfe_u32 s{sT1}, s2, {(2 << 16) | 3}
                s_add_u32 s{sT0}, s{sT0}, s{sT1}
                s_lshl_b32 s{sKA}, s{sT0}, 19
                s_bfe_u32 s{sT0}, s2, {(1 << 16) | 2}
                s_lshl_b32 s{sT0}, s{sT0}, 3
                s_lshr_b32 s{sT1}, s2, 5
                s_add_u32 s{sT0}, s{sT0}, s{sT1}
                s_lshl_b32 s{sT0}, s{sT0}, 7
                s_add_u32 s{sKA}, s{sKA}, s{sT0}
                v_lshlrev_b32 v{vA[0]}, 11, v0
                """)
            for i in range(opt.get('upfs', 2)):
                if upn < 4:
                    a(f"s_add_u32 s{sT0}, s{sKA}, {upn*131072}")
                    a(f"buffer_load_dword v{vA[1]}, v{vA[0]}, {s(SRDU,4)}, s{sT0} offen")
                    upn += 1
    assert up == 32
    a("s_barrier")
    st.stamp(5); st.stamp(6, True)
    st.dump(12, sWave, 1, 2)
    sp.end(sWS, sWave)
    a(f"s_branch {L('end')}")
    a.label(L('compute'))
    if opt.get('prio'): a(f"s_setprio {opt['prio']}")
    U.release(umark)
    V = Regs(8, FB - 1, 'v')
    bA = [V.alloc(), V.alloc()]; bH = [V.alloc(), V.alloc()]; bB = [V.alloc(), V.alloc()]
    cA = [V.alloc(), V.alloc()]; cH = [V.alloc(), V.alloc()]; cB = [V.alloc(), V.alloc()]
    vO = V.alloc(); vLane16 = V.alloc(); vLane8 = V.alloc()
    mCur = V.alloc(2, 2); mPrev = V.alloc(2, 2); mFirst = [V.alloc(2, 2), V.alloc(2, 2)]
    biasCur = V.alloc(4, 4); biasPrev = V.alloc(4, 4); biasFirst = [V.alloc(4, 4), V.alloc(4, 4)]
    vWP = V.alloc(); vWD = V.alloc(2)
    G = Regs(FB, 256, 'gemm')
    QT = [[[G.alloc(4, 4) for db in range(2)] for b in range(2)] for par in range(2)]
    KT = [[[G.alloc(4, 4) for db in range(2)] for b in range(2)] for par in range(2)]
    VV = [[[G.alloc(4, 4) for db in range(2)] for b in range(2)] for par in range(2)]
    HH = [G.alloc(4, 4) for db in range(2)]
    acc0 = QT[0][0][0]
    F = [None, None]; fr = [0, 0]
    for f in (1, 0):
        fr[f] = G.mark()
        F[f] = dict(XA=[[G.alloc(4, 4) for b in range(2)] for par in range(2)], XH=G.alloc(4, 4),
                    WB=[[G.alloc(4, 4) for db in range(2)] for seg in range(3)])
    COS = [U.alloc(4, 4) for _ in range(2)]
    SIN = [U.alloc(4, 4) for _ in range(2)]
    NSIN = [U.alloc(4, 4) for _ in range(2)]
    TWC = [[U.alloc(4) for eb in range(2)] for db2 in range(2)]
    TWS = [[U.alloc(4) for eb in range(2)] for db2 in range(2)]
    a1 = [U.alloc(), U.alloc()]; aSW = U.alloc()
    a.srd_off(SRDO, sWS, WS_O, 4 << 20)
    a(f"""
    s_mov_b32 s{sRI}, 131072
    v_lshl_add_u32 v{vT}, v{vR}, 3, v{vC}
    v_cvt_f32_u32 v{ef[0]}, v{vT}
    v_add_f32 v{ef[1]}, 4.0, v{ef[0]}
    """)
    for eb in range(2):
        a(f"v_mul_f32 v{vT}, {f32bits(1/32)}, v{ef[eb]}")
        for j in range(8):
            a(f"v_mul_f32 v{tmp+j}, v{vT}, v{kkf[j]}")
        for j in range(8):
            a(f"v_sin_f32 v{tmp+8+j}, v{tmp+j}")
        for j in range(8):
            a(f"v_cos_f32 v{tmp+j}, v{tmp+j}")
        a("s_nop 0")
        for j in range(4):
            a(f"v_cvt_pk_bf16_f32 v{SIN[eb]+j}, v{tmp+8+2*j}, v{tmp+8+2*j+1}")
            a(f"v_cvt_pk_bf16_f32 v{COS[eb]+j}, v{tmp+2*j}, v{tmp+2*j+1}")
            a(f"v_xor_b32 v{NSIN[eb]+j}, 0x80008000, v{SIN[eb]+j}")
    for eb in range(2):
        a(f"v_mul_f32 v{vT}, {f32bits(1/1024)}, v{ef[eb]}")
        for db2 in range(2):
            for r in range(4):
                a(f"v_mul_f32 v{TWC[db2][eb]+r}, v{vT}, v{kkf[4*db2+r]}")
            for r in range(4):
                a(f"v_sin_f32 v{TWS[db2][eb]+r}, v{TWC[db2][eb]+r}")
            for r in range(4):
                a(f"v_cos_f32 v{TWC[db2][eb]+r}, v{TWC[db2][eb]+r}")
    a(f"""
    """)
    WU = opt.get('wu', 0)
    if WU:
        a(f"""
        s_lshl_b32 s{sT0}, s{sWave}, 21
        s_lshl_b32 s{sT1}, s2, 13
        s_add_u32 s{sT0}, s{sT0}, s{sT1}
        v_lshlrev_b32 v{vWP}, 7, v0
        v_add_u32 v{vWP}, s{sT0}, v{vWP}
        """)
    else:
        a(f"""
    ; W prefetch into this XCD's L2: rows 32*idx + 8*wave + l/12 (+4), line l%12
    v_mul_u32_u24 v{vT}, 43, v0
    v_lshrrev_b32 v{vT}, 9, v{vT}
    v_mul_u32_u24 v{vT2}, 12, v{vT}
    v_sub_u32 v{vT2}, v0, v{vT2}
    v_mul_u32_u24 v{vWP}, 6144, v{vT}
    v_lshrrev_b32 v{vT}, 2, v{vT2}
    v_lshl_add_u32 v{vWP}, v{vT}, 11, v{vWP}
    v_and_b32 v{vT}, 3, v{vT2}
    v_lshl_add_u32 v{vWP}, v{vT}, 7, v{vWP}
    s_lshr_b32 s{sT0}, s2, 3
    s_lshl_b32 s{sT0}, s{sT0}, 2
    s_add_u32 s{sT0}, s{sT0}, s{sWave}
    s_mul_i32 s{sT0}, s{sT0}, {8*6144}
    s_lshr_b32 s{sT1}, s{sHP}, 2
    s_lshl_b32 s{sT1}, s{sT1}, 9
    s_add_u32 s{sT0}, s{sT0}, s{sT1}
    v_add_u32 v{vWP}, s{sT0}, v{vWP}
        """)
    a(f"""
    s_and_b32 s{sH}, s{sWave}, 1
    s_lshr_b32 s{sHF}, s{sWave}, 1
    s_mov_b32 s{sScale}, {SCALE}
    s_mov_b32 s{sLog2e}, {f32bits(1.4426950408889634 * 32 ** -0.5) if opt.get('fast', 0) else LOG2E}
    v_lshl_add_u32 v{vT}, v{vG}, 2, v{vR}
    v_lshlrev_b32 v{a1[0]}, 6, v{vT}
    v_lshl_add_u32 v{a1[0]}, v{vC}, 3, v{a1[0]}
    v_and_b32 v{vT2}, 1, v{vG}
    v_lshl_add_u32 v{a1[0]}, v{vT2}, 5, v{a1[0]}
    v_xor_b32 v{a1[1]}, 32, v{a1[0]}
    s_mul_i32 s{sT0}, s{sWave}, {4*CROW}
    s_add_u32 s{sT0}, s{sT0}, {CB}
    v_add_u32 v{a1[0]}, s{sT0}, v{a1[0]}
    v_add_u32 v{a1[1]}, s{sT0}, v{a1[1]}
    v_lshrrev_b32 v{vT}, 1, v{vC}
    v_and_b32 v{vT2}, 1, v{vR}
    v_lshl_add_u32 v{vT}, v{vT2}, 1, v{vT}
    v_xor_b32 v{vT}, v{vT}, v{vG}
    v_lshl_add_u32 v{aSW}, v{vR}, 3, v{vC}
    v_lshlrev_b32 v{aSW}, 6, v{aSW}
    v_lshl_add_u32 v{aSW}, v{vT}, 4, v{aSW}
    v_add_u32 v{aSW}, s{sT0}, v{aSW}
    v_and_b32 v{vT}, 7, v{vI}
    v_xor_b32 v{vT}, v{vT}, v{vG}
    v_lshlrev_b32 v{vT}, 4, v{vT}
    v_lshl_add_u32 v{vT}, v{vI}, 7, v{vT}
    s_lshl_b32 s{sT0}, s{sHF}, 13
    v_add_u32 v{bA[0]}, s{sT0}, v{vT}
    v_xor_b32 v{bA[1]}, 64, v{bA[0]}
    v_add_u32 v{bH[0]}, 16384, v{vT}
    v_xor_b32 v{bH[1]}, 64, v{bH[0]}
    v_lshl_add_u32 v{bB[0]}, v{vG}, 3, v{vR}
    v_lshlrev_b32 v{bB[0]}, 7, v{bB[0]}
    v_and_b32 v{vT}, 1, v{vG}
    v_lshlrev_b32 v{vT}, 2, v{vT}
    v_and_b32 v{vT2}, 2, v{vR}
    v_or_b32 v{vT}, v{vT}, v{vT2}
    v_lshrrev_b32 v{vT2}, 1, v{vC}
    s_lshl_b32 s{sT0}, s{sH}, 2
    v_add_u32 v{vT2}, s{sT0}, v{vT2}
    v_xor_b32 v{vT}, v{vT}, v{vT2}
    v_lshl_add_u32 v{bB[0]}, v{vT}, 4, v{bB[0]}
    v_and_b32 v{vT}, 1, v{vC}
    v_lshl_add_u32 v{bB[0]}, v{vT}, 3, v{bB[0]}
    v_add_u32 v{bB[0]}, {BOFF}, v{bB[0]}
    v_xor_b32 v{bB[1]}, 32, v{bB[0]}
    v_lshlrev_b32 v{vO}, 18, v{vI}
    v_and_b32 v{vT}, 1, v{vG}
    v_lshl_add_u32 v{vO}, v{vT}, 5, v{vO}
    v_lshrrev_b32 v{vT}, 1, v{vG}
    v_lshl_add_u32 v{vO}, v{vT}, 4, v{vO}
    s_lshl_b32 s{sT0}, s{sHP}, 13
    s_lshl_b32 s{sT1}, s{sMB}, 9
    s_add_u32 s{sT0}, s{sT0}, s{sT1}
    s_lshl_b32 s{sT1}, s{sHF}, 8
    s_add_u32 s{sT0}, s{sT0}, s{sT1}
    s_lshl_b32 s{sT1}, s{sH}, 6
    s_add_u32 s{sT0}, s{sT0}, s{sT1}
    v_add_u32 v{vO}, s{sT0}, v{vO}
    s_mul_i32 s{sT0}, s{sH}, 5120
    v_lshlrev_b32 v{vLane16}, 4, v0
    v_add_u32 v{vLane16}, s{sT0}, v{vLane16}
    v_lshlrev_b32 v{vLane8}, 3, v0
    v_add_u32 v{vLane8}, s{sT0}, v{vLane8}
    """)
    a(f"v_lshlrev_b32 v{vT}, 2, v{vG}")
    a(f"v_sub_u32 v{vT}, v{vI}, v{vT}")
    a(f"v_mov_b32 v{vT3}, {NEG_BIG}")
    MS = s(sMSK, 2)
    for r in range(4):
        a(f"v_subrev_u32 v{vT2}, {r}, v{vT}")
        a(f"v_cmp_gt_u32 vcc, 8, v{vT2}")
        a(f"v_cmp_gt_i32 {MS}, -8, v{vT2}")
        a("s_nop 0")
        a(f"v_cndmask_b32_e64 v{biasCur+r}, v{vT3}, 0, vcc")
        a(f"v_cndmask_b32_e64 v{biasPrev+r}, v{vT3}, 0, {MS}")
        a(f"v_mov_b32 v{biasFirst[1]+r}, v{biasPrev+r}")
        a(f"v_mov_b32 v{biasFirst[0]+r}, v{biasPrev+r}")
    a(f"""
    s_cmp_lg_u32 s{sHF}, 0
    s_cbranch_scc1 {L('maskdone')}
    v_cmp_gt_u32 {MS}, 2, v{vG}
    """)
    for r in range(4):
        a(f"v_subrev_u32 v{vT2}, {r}, v{vT}")
        a(f"v_cmp_gt_i32 vcc, 0, v{vT2}")
        a("s_nop 1")
        a(f"s_and_b64 vcc, vcc, {MS}")
        a("s_nop 1")
        a(f"v_cndmask_b32_e64 v{biasFirst[0]+r}, v{vT3}, 0, vcc")
    a(f"""
    s_cmp_lg_u32 s{sMB}, 0
    s_cbranch_scc1 {L('maskdone')}
    """)
    for r in range(4):
        a(f"v_mov_b32 v{biasFirst[0]+r}, v{vT3}")
        a(f"v_mov_b32 v{biasFirst[1]+r}, v{vT3}")
    a.label(L('maskdone'))
    def mk_mask(m, bias):
        for h2 in range(2):
            a(f"v_ashrrev_i32 v{vT}, 31, v{bias+2*h2}")
            a(f"v_ashrrev_i32 v{vT2}, 31, v{bias+2*h2+1}")
            a(f"v_and_b32 v{vT}, 0xffff, v{vT}")
            a(f"v_and_b32 v{vT2}, 0xffff0000, v{vT2}")
            a(f"v_or_b32 v{vT}, v{vT}, v{vT2}")
            a(f"v_not_b32 v{m+h2}, v{vT}")
    mk_mask(mCur, biasCur); mk_mask(mPrev, biasPrev); mk_mask(mFirst[0], biasFirst[0]); mk_mask(mFirst[1], biasFirst[1])
    st.stamp(2)
    a("s_waitcnt vmcnt(0)")
    if opt.get('wpfpos', 4) == 4: a("s_barrier")
    if WU:
        a(f"buffer_load_dword v{vWD}, v{vWP}, {s(SRDW,4)}, 0 offen")
    else:
        a(f"""
        s_mov_b32 s{sT0}, {4*6144}
        s_mov_b32 exec_hi, 0xffff
        buffer_load_dword v{vWD}, v{vWP}, {s(SRDW,4)}, 0 offen
        buffer_load_dword v{vWD+1}, v{vWP}, {s(SRDW,4)}, s{sT0} offen
        s_mov_b32 exec_hi, -1
        """)
    if opt.get('wpfpos', 4) == 3: a("s_barrier")
    st.stamp(3)
    if opt.get('stamp'): a("s_waitcnt lgkmcnt(0)")
    stage0()
    a("s_waitcnt lgkmcnt(0)")
    a("s_barrier")
    st.stamp(4)
    if opt.get('stamp'): a("s_waitcnt lgkmcnt(0)")
    AR2 = [U.alloc(4, 4) for _ in range(4)]
    Cfs = [[[XA[0], XA[1]], [XA[2], XA[3]]], [[XA[4], XA[5]], [XA[6], XA[7]]]]
    for task in range(2):
        for ri in range(2):
            for db2 in range(2):
                for half in range(2):
                    a(f"ds_read_b64_tr_b16 {v(Cfs[task][ri][db2]+2*half,2)}, v{a1[db2]} offset:{half*1024 + (2*task+ri)*CROW}")
    TB = [DEAD + 4*j for j in range(8)]
    Ts = [D0, TB]
    As = [AR2, [XA[0], XA[1], XA[2], XA[3]]]
    Os = [[XA[4], XA[5], XA[6], XA[7]], AR2]
    def mf(d, x, y, c): return f"v_mfma_f32_16x16x32_bf16 {v(d,4)}, {v(x,4)}, {v(y,4)}, {'0' if c is None else v(c,4)}"
    def S1(task):
        T = Ts[task]; Cf = Cfs[task]; out = []
        for db2 in range(2):
            for eb in range(2):
                out.append(mf(T[2*db2+eb], Cf[0][db2], COS[eb], None))
                out.append(mf(T[4+2*db2+eb], Cf[0][db2], NSIN[eb], None))
        for db2 in range(2):
            for eb in range(2):
                out.append(mf(T[2*db2+eb], Cf[1][db2], SIN[eb], T[2*db2+eb]))
                out.append(mf(T[4+2*db2+eb], Cf[1][db2], COS[eb], T[4+2*db2+eb]))
        return out
    def TW(task):
        T = Ts[task]; A_ = As[task]; out = []
        for db2 in range(2):
            for eb in range(2):
                trb, tib = T[2*db2+eb], T[4+2*db2+eb]
                for r in range(4):
                    out.append(f"v_mul_f32 v{tmp0+r}, v{trb+r}, v{TWC[db2][eb]+r}")
                    out.append(f"v_mul_f32 v{tmp0+4+r}, v{trb+r}, v{TWS[db2][eb]+r}")
                for r in range(4):
                    out.append(f"v_fma_f32 v{tmp0+r}, v{tib+r}, v{TWS[db2][eb]+r}, v{tmp0+r}")
                    out.append(f"v_fma_f32 v{tmp0+4+r}, -v{tib+r}, v{TWC[db2][eb]+r}, v{tmp0+4+r}")
                for h2 in range(2):
                    out.append(f"v_cvt_pk_bf16_f32 v{A_[eb]+2*db2+h2}, v{tmp0+2*h2}, v{tmp0+2*h2+1}")
                    out.append(f"v_cvt_pk_bf16_f32 v{A_[2+eb]+2*db2+h2}, v{tmp0+4+2*h2}, v{tmp0+4+2*h2+1}")
        return out
    def S2(task):
        T = Ts[task]; A_ = As[task]; out = []
        for eb2 in range(2):
            for eb in range(2):
                out.append(mf(T[2*eb+eb2], A_[eb], COS[eb2], None))
                out.append(mf(T[4+2*eb+eb2], A_[eb], SIN[eb2], None))
        for eb2 in range(2):
            for eb in range(2):
                out.append(mf(T[2*eb+eb2], A_[2+eb], NSIN[eb2], T[2*eb+eb2]))
                out.append(mf(T[4+2*eb+eb2], A_[2+eb], COS[eb2], T[4+2*eb+eb2]))
        return out
    def OUT(task):
        T = Ts[task]; out = []; k = 0
        for eb2 in range(2):
            for ri in range(2):
                o = Os[task][k]; k += 1
                for eb in range(2):
                    w = T[4*ri+2*eb+eb2]
                    out.append(f"v_cvt_pk_bf16_f32 v{o+2*eb}, v{w}, v{w+1}")
                    out.append(f"v_cvt_pk_bf16_f32 v{o+2*eb+1}, v{w+2}, v{w+3}")
                out.append(f"ds_write_b128 v{aSW}, {v(o,4)} offset:{(2*task+ri)*2048 + eb2*256}")
        return out
    def iln(main, fill, n, skip=0):
        out = []; fi = 0
        for i, m in enumerate(main):
            out.append(m)
            if i >= skip:
                for _ in range(n):
                    if fi < len(fill):
                        out.append(fill[fi]); fi += 1
        return out + fill[fi:]
    a("s_waitcnt lgkmcnt(12)")
    s1a = S1(0)
    for l in s1a[:8]: a(l)
    a("s_waitcnt lgkmcnt(8)")
    for l in s1a[8:]: a(l)
    a("s_waitcnt lgkmcnt(0)")
    for l in iln(S1(1), TW(0), 6, 2): a(l)
    a("s_nop 1")
    for l in iln(S2(0), TW(1), 6, 2): a(l)
    a("s_nop 1")
    for l in iln(S2(1), OUT(0), 2, 4): a(l)
    a("s_nop 3")
    for l in OUT(1): a(l)
    st.stamp(7)

    def reads(f, kh, aA, aH, aB):
        out = []
        fs = F[f]
        def rb(seg, db):
            r = fs['WB'][seg][db]
            for half in range(2):
                out.append(f"ds_read_b64_tr_b16 {v(r+2*half,2)}, v{aB[db]} offset:{kh*4096 + seg*8192 + half*512}")
        def ra(par, b):
            out.append(f"ds_read_b128 {v(fs['XA'][par][b],4)}, v{aA} offset:{(par*2 + b)*2048}")
        ra(0, 0); rb(0, 0); rb(0, 1); ra(0, 1); ra(1, 0); ra(1, 1)
        rb(1, 0); rb(1, 1)
        out.append(f"ds_read_b128 {v(fs['XH'],4)}, v{aH}")
        rb(2, 0); rb(2, 1)
        return out
    def mparts(f, hf, first=False):
        fs = F[f]
        def m(d, x, y): return f"v_mfma_f32_16x16x32_bf16 {v(d,4)}, {v(x,4)}, {v(y,4)}, {'0' if first else v(d,4)}"
        idx = [(par, b, db) for par in range(2) for b in range(2) for db in range(2)]
        if opt.get('mord', 0) == 1:
            idx = [(par, b, db) for db in range(2) for par in range(2) for b in range(2)]
        Q = [(m(QT[p][b][d], fs['WB'][0][d], fs['XA'][p][b]), ('Q', p, b, d)) for p, b, d in idx]
        K = [(m(KT[p][b][d], fs['WB'][1][d], fs['XA'][p][b]), ('K', p, b, d)) for p, b, d in idx]
        Vv = [(m(VV[p][b][d], fs['XA'][p][b], fs['WB'][2][d]), ('V', p, b, d)) for p, b, d in idx]
        if hf == 0: H = [(m(HH[d], fs['WB'][1][d], fs['XH']), ('H', d)) for d in range(2)]
        else: H = [(m(HH[d], fs['XH'], fs['WB'][2][d]), ('H', d)) for d in range(2)]
        return Q, K, Vv, H
    def mfmas(f, hf, first=False):
        Q, K, Vv, H = mparts(f, hf, first)
        seq = Q + K + H + Vv if hf == 0 else Q + K + Vv + H
        if opt.get('mord', 0) == 2:
            seq = []
            for par in range(2):
                for b in range(2):
                    seq += [x for x in Q + K + Vv if x[1][1] == par and x[1][2] == b]
            seq += H
        return [x[0] for x in seq]
    a("s_waitcnt lgkmcnt(0)")
    a("s_barrier")
    st.stamp(8)
    if opt.get('clk'): st.stamp(10, True)
    if opt.get('stamp'): a("s_waitcnt lgkmcnt(0)")
    for l in reads(0, 0, bA[0], bH[0], bB): a(l)
    a(f"""
    v_mov_b32 v{cA[1]}, v{bA[1]}
    v_mov_b32 v{cH[1]}, v{bH[1]}
    v_mov_b32 v{cB[0]}, v{bB[0]}
    v_mov_b32 v{cB[1]}, v{bB[1]}
    s_mov_b32 s{sStg}, 0
    s_mov_b32 s{sCnt}, 0
    s_waitcnt lgkmcnt(0)
    s_cmp_eq_u32 s{sHF}, 0
    s_cbranch_scc0 {L('first1')}
    """)
    P0 = Regs(fr[0], 256, 'pk0')
    Kp = [[P0.alloc(4, 4) for sl in range(3)] for par in range(2)]
    Vp = [[P0.alloc(6, 2) for db in range(2)] for par in range(2)]
    VHp = P0.alloc(4, 2)
    P1 = Regs(fr[1], fr[0], 'pk1')
    Qp = [[P1.alloc(4, 4) for b in range(2)] for par in range(2)]
    def pkl(d, src, tag):
        return [(f"v_cvt_pk_bf16_f32 v{d}, v{src}, v{src+1}", tag), (f"v_cvt_pk_bf16_f32 v{d+1}, v{src+2}, v{src+3}", tag)]
    def pk(d, src):
        for l, _ in pkl(d, src, None): a(l)
    upd = [f"s_add_u32 s{sStg}, s{sStg}, {STAGE}",
           f"s_cmp_eq_u32 s{sStg}, {3*STAGE}",
           f"s_cselect_b32 s{sStg}, 0, s{sStg}"]
    upd2 = [f"v_add_u32 v{cA[0]}, s{sStg}, v{bA[0]}",
            f"v_add_u32 v{cH[0]}, s{sStg}, v{bH[0]}",
            f"v_add_u32 v{cB[0]}, s{sStg}, v{bB[0]}",
            f"v_add_u32 v{cB[1]}, s{sStg}, v{bB[1]}",
            f"v_add_u32 v{cA[1]}, s{sStg}, v{bA[1]}",
            f"v_add_u32 v{cH[1]}, s{sStg}, v{bH[1]}"]
    for hf in range(2):
        a.label(L(f'first{hf}'))
        for l in interleave(mfmas(0, hf, True), reads(1, 1, cA[1], cH[1], cB) + upd + upd2): a(l)
        a.align(opt.get('al1'))
        a.label(L(f'loop{hf}'))
        a("s_waitcnt lgkmcnt(0)")
        a("s_barrier")
        for l in interleave(mfmas(1, hf), reads(0, 0, cA[0], cH[0], cB) + [f"s_add_u32 s{sCnt}, s{sCnt}, 1"]): a(l)
        a("s_waitcnt lgkmcnt(0)")
        if opt.get('lp2', 1):
            m0_ = mfmas(0, hf)
            fl = reads(1, 1, cA[1], cH[1], cB)
            body = iln(m0_[:4], fl[:8], 2) + interleave(m0_[4:], fl[8:] + upd + upd2 + [f"s_cmp_lt_u32 s{sCnt}, 15"])
            for l in body: a(l)
        else:
            body = interleave(mfmas(0, hf), reads(1, 1, cA[1], cH[1], cB) + upd + upd2)
            for l in body: a(l)
            a(f"s_cmp_lt_u32 s{sCnt}, 15")
        a(f"s_cbranch_scc1 {L(f'loop{hf}')}")
        a("s_waitcnt lgkmcnt(0)")
        a("s_barrier")
        st.stamp(9)
        if opt.get('clk'): st.stamp(11, True)
        Q, K, Vv, H = mparts(1, hf)
        K1 = [x for x in K if x[1][2] == 1]; K0 = [x for x in K if x[1][2] == 0]
        V1 = [x for x in Vv if x[1][2] == 1]; V0 = [x for x in Vv if x[1][2] == 0]
        fills = []
        if hf == 0:
            seq = K1 + V1 + H + K0 + Q + V0
            for par in range(2):
                for db in range(2): fills += pkl(Kp[par][2] + 2*db, KT[par][1][db], ('K', par, 1, db))
                fills.append((f"ds_write_b128 v{vLane16}, {v(Kp[par][2],4)} offset:{par*1024}", None))
            for par in range(2):
                for db in range(2):
                    fills += pkl(Vp[par][db] + 4, VV[par][1][db], ('V', par, 1, db))
                    fills.append((f"ds_write_b64 v{vLane8}, {v(Vp[par][db]+4,2)} offset:{2048 + (par*2+db)*512}", None))
            for par in range(2):
                for db in range(2): fills += pkl(Kp[par][0] + 2*db, HH[db], ('H', db))
        else:
            seq = H + K1 + V1 + K0 + Q + V0
            for db in range(2):
                fills += pkl(VHp + 2*db, HH[db], ('H', db))
                fills.append((f"ds_write_b64 v{vLane8}, {v(VHp+2*db,2)} offset:{4096 + db*512}", None))
            for par in range(2):
                for db in range(2): fills += pkl(Kp[par][2] + 2*db, KT[par][1][db], ('K', par, 1, db))
            for par in range(2):
                for db in range(2): fills += pkl(Vp[par][db] + 4, VV[par][1][db], ('V', par, 1, db))
        for par in range(2):
            for db in range(2): fills += pkl(Kp[par][1] + 2*db, KT[par][0][db], ('K', par, 0, db))
        for l in sched(seq, fills): a(l)
        a("s_waitcnt lgkmcnt(0)")
        a("s_barrier")
        if hf == 0:
            for par in range(2):
                for db in range(2):
                    a(f"ds_read_b64 {v(Vp[par][db],2)}, v{vLane8} offset:{4096 + db*512}")
            a(f"s_branch {L('attn')}")
        else:
            for par in range(2):
                a(f"ds_read_b128 {v(Kp[par][0],4)}, v{vLane16} offset:{par*1024}")
            for par in range(2):
                for db in range(2):
                    a(f"ds_read_b64 {v(Vp[par][db],2)}, v{vLane8} offset:{2048 + (par*2+db)*512}")
    a.label(L('attn'))
    for par in range(2):
        for b in (1, 0):
            for db in range(2):
                pk(Qp[par][b] + 2*db, QT[par][b][db])
    A = Regs(acc0, VV[0][0][0], 'acc')
    combos = [(par, b) for par in range(2) for b in range(2)]
    Sp = {c: A.alloc(4, 4) for c in combos}
    Sc = {c: A.alloc(4, 4) for c in combos}
    Pp = {c: A.alloc(4, 4) for c in combos}
    mx = {c: A.alloc() for c in combos}
    tt = {c: A.alloc() for c in combos}
    OT = {(par, b): VV[par][b] for (par, b) in combos}
    a("s_nop 1")
    for par in range(2):
        a.mfma(Sc[(par, 1)], Kp[par][2], Qp[par][1], biasCur)
        a.mfma(Sp[(par, 1)], Kp[par][1], Qp[par][1], biasPrev)
    for par in range(2):
        a.mfma(Sc[(par, 0)], Kp[par][1], Qp[par][0], biasCur)
    a("s_waitcnt lgkmcnt(4)")
    if not opt.get('clk'): st.stamp(10)
    for par in range(2):
        a.mfma(Sp[(par, 0)], Kp[par][0], Qp[par][0], biasFirst[par])
    for par in range(2):
        for db in range(2):
            pk(Vp[par][db] + 2, VV[par][0][db])
    order = [(0, 1), (1, 1), (0, 0), (1, 0)]
    for c in order:
        for r in range(4):
            a(f"v_max_f32 v{Sc[c]+r}, v{Sc[c]+r}, v{Sp[c]+r}")
        if not opt.get('fast', 0):
            for r in range(4):
                a(f"v_cvt_pk_bf16_f32 v{Sc[c]+r}, 0, v{Sc[c]+r}")
            for r in range(4):
                a(f"v_mul_f32 v{Sc[c]+r}, s{sScale}, v{Sc[c]+r}")
            for r in range(4):
                a(f"v_cvt_pk_bf16_f32 v{Sc[c]+r}, 0, v{Sc[c]+r}")
        a(f"v_max_f32 v{mx[c]}, v{Sc[c]}, v{Sc[c]+1}")
        a(f"v_max3_f32 v{mx[c]}, v{Sc[c]+2}, v{Sc[c]+3}, v{mx[c]}")
    def allreduce(val, op):
        for sw in ("v_permlane32_swap_b32", "v_permlane16_swap_b32"):
            for c in order: a(f"v_mov_b32 v{tt[c]}, v{val[c]}")
            a("s_nop 0")
            for c in order: a(f"{sw} v{val[c]}, v{tt[c]}")
            for c in order: a(f"{op} v{val[c]}, v{val[c]}, v{tt[c]}")
    allreduce(mx, "v_max_f32")
    for c in order:
        a(f"v_mul_f32 v{mx[c]}, s{sLog2e}, v{mx[c]}")
    for c in order:
        for r in range(4):
            a(f"v_fma_f32 v{Sc[c]+r}, v{Sc[c]+r}, s{sLog2e}, -v{mx[c]}")
        for r in range(4):
            a(f"v_exp_f32 v{Sc[c]+r}, v{Sc[c]+r}")
    a("s_nop 0")
    for c in order:
        a(f"v_add_f32 v{mx[c]}, v{Sc[c]}, v{Sc[c]+1}")
        a(f"v_add_f32 v{tt[c]}, v{Sc[c]+2}, v{Sc[c]+3}")
        a(f"v_add_f32 v{mx[c]}, v{mx[c]}, v{tt[c]}")
    allreduce(mx, "v_add_f32")
    for c in order:
        a(f"v_rcp_f32 v{mx[c]}, v{mx[c]}")
    a("s_waitcnt lgkmcnt(0)")
    if not opt.get('clk'): st.stamp(11)
    for c in order:
        par, b = c
        for r in range(4):
            a(f"v_mul_f32 v{Sc[c]+r}, v{Sc[c]+r}, v{mx[c]}")
        pk(Sp[c], Sc[c])
        mp = mPrev if b == 1 else mFirst[par]
        a(f"v_and_b32 v{Pp[c]}, v{Sp[c]}, v{mp}")
        a(f"v_and_b32 v{Pp[c]+1}, v{Sp[c]+1}, v{mp+1}")
        a(f"v_and_b32 v{Pp[c]+2}, v{Sp[c]}, v{mCur}")
        a(f"v_and_b32 v{Pp[c]+3}, v{Sp[c]+1}, v{mCur+1}")
        a("s_nop 1")
        for db in range(2):
            a.mfma(OT[c][db], Vp[par][db] + 2*b, Pp[c], None)
    for n, c in enumerate(order):
        par, b = c
        o = Sc[c]
        for db in range(2):
            pk(o + 2*db, OT[c][db])
        a("s_nop 1")
        a(f"v_permlane16_swap_b32 v{o}, v{o+2}")
        a(f"v_permlane16_swap_b32 v{o+1}, v{o+3}")
        so = f"s{sRI}" if par == 1 else "0"
        a(f"buffer_store_dwordx4 {v(o,4)}, v{vO}, {s(SRDO,4)}, {so} offen offset:{b*128}{OSC}")
    st.stamp(5); st.stamp(6, True)
    st.dump(12, sWave, 1, 2)
    sp.end(sWS, sWave)
    a.label(L('end'))
    a("s_endpgm")
    return a.text(), max(U.hi, G.hi, P0.hi), 102
```

```python
from asmlib import *

WS_O = 0
WS_U = 4 << 20
WS_G = 12 << 20

STAGE = 43008
BOFF = 18432
XF = STAGE
CB = 3 * STAGE
CROW = 2056
K1_LDS = CB + 16 * CROW
NEG_BIG = f32bits(-1.0e30)
SCALE = f32bits(32 ** -0.5)
LOG2E = f32bits(1.4426950408889634)
CODE_LINES = 22

def sched(main, fills, per=2, dist=9):
    out = []; pos = {}; fi = 0
    def ready(tag): return tag is None or (tag in pos and len(out) - pos[tag] >= dist)
    for ins, tag in main:
        out.append(ins); pos[tag] = len(out)
        n = 0
        while fi < len(fills) and n < per and ready(fills[fi][1]):
            out.append(fills[fi][0]); fi += 1; n += 1
    while fi < len(fills):
        if not ready(fills[fi][1]):
            need = dist - (len(out) - pos[fills[fi][1]])
            out.append(f"s_nop {need-1}")
            for _ in range(need - 1): out.append(None)
        out.append(fills[fi][0]); fi += 1
    return [o for o in out if o is not None]

def gen_k1(name="k1_kernel", opt=None):
    opt = opt or {}
    a = Asm()
    a.raw(kernel_header(name))
    L = lambda x: f"{name}_{x}"
    sX, sW, sWO, sGW, sWS, sPC = 4, 6, 8, 10, 12, 14
    SRDX, SRDW, SRDO, SRDU, SRDP, SRDG, SRDC = 16, 20, 24, 28, 32, 36, 40
    (sWave, sMB, sHP, sM0, sT0, sT1, sT2, sT3, sKA, sKB, sKB2, sCnt, sStg, sLW, sH, sHF, sS2, sQ,
     sScale, sLog2e, sRI, sXO, sMA, sMBo) = range(44, 68)
    sMSK = 68
    st = Stamper(a, 76, 72, opt.get('stamp'))
    sp = Span(a, opt.get('span'), 0)
    sp.start()
    USC = opt.get('usf', " sc1" if opt.get('usc1', 1) else "")
    OSC = opt.get('osf', " sc1" if opt.get('osc1', 1) else "")
    FB = 52
    U = Regs(FB, 256, 'fft')
    vI, vG, vR, vC, vT, vT2, vT3 = 1, 2, 3, 4, 5, 6, 7
    DEAD = U.alloc(36, 4)
    kkf = [DEAD + j for j in range(8)]
    B0 = DEAD + 8
    a0 = DEAD + 12; aW = [DEAD + 13, DEAD + 14]; vXL = DEAD + 15
    a0x = [DEAD + 16 + j for j in range(7)]
    ef = [DEAD + 24, DEAD + 25]
    tmp = DEAD + 28
    tmp0 = U.alloc(8, 4)
    assert tmp0 == tmp + 8
    vCP = 51
    XA = [U.alloc(4, 4) for _ in range(8)]
    D0 = [U.alloc(4, 4) for _ in range(8)]
    umark = U.mark()
    GW = U.alloc(8, 4); GX = [U.alloc(8, 4), U.alloc(8, 4)]
    a(f"""
    s_cmp_ge_u32 s2, 256
    s_cbranch_scc1 {L('end')}
    s_load_dwordx4 s[4:7], s[0:1], 0
    s_load_dwordx2 s[8:9], s[0:1], 16
    s_load_dwordx2 s[10:11], s[0:1], 64
    s_load_dwordx2 s[12:13], s[0:1], 88
    s_getpc_b64 s[14:15]
    """)
    a.label(L('pc'))
    a(f"""
    v_lshrrev_b32 v1, 6, v0
    v_and_b32 v0, 63, v0
    s_and_b32 s{sS2}, s2, 63
    v_readfirstlane_b32 s{sWave}, v1
    s_lshr_b32 s{sQ}, s2, 6
    s_mov_b32 s{SRDC}, s14
    s_and_b32 s{SRDC+1}, s15, 0xffff
    s_mov_b32 s{SRDC+2}, code_end - {L('pc')}
    s_mov_b32 s{SRDC+3}, 0x00020000
    """)
    def code_pf():
        a(f"""
        s_lshr_b32 s{sT0}, s2, 3
        s_and_b32 s{sT0}, s{sT0}, 7
        s_mul_i32 s{sT0}, s{sT0}, {CODE_LINES*128}
        v_lshlrev_b32 v{vCP}, 7, v0
        v_add_u32 v{vCP}, s{sT0}, v{vCP}
        s_mov_b64 exec, {(1 << CODE_LINES) - 1}
        buffer_load_dword v{vCP}, v{vCP}, {s(SRDC,4)}, 0 offen
        s_mov_b64 exec, -1
        """)
    a(f"s_cmp_lg_u32 s{sWave}, 0")
    a(f"s_cbranch_scc1 {L('nocpf')}")
    code_pf()
    a.label(L('nocpf'))
    a(f"""
    v_lshrrev_b32 v{vT}, 1, v0
    v_xor_b32 v{vT}, s{sWave}, v{vT}
    v_and_b32 v{vT2}, 1, v0
    v_lshlrev_b32 v{vT2}, 4, v{vT2}
    v_lshl_add_u32 v{vXL}, v{vT}, 5, v{vT2}
    s_waitcnt lgkmcnt(0)
    """)
    a.srd(SRDX, sX, 2048 * 1024 * 2)
    if opt.get('stlb', 0):
        a(f"s_cmp_lg_u32 s{sWave}, 7")
        a(f"s_cbranch_scc1 {L('nstlb')}")
        for i in range(3):
            a(f"s_mov_b32 s{sT0}, {i << 21}")
            a(f"s_load_dword s70, s[{sW}:{sW+1}], s{sT0}")
        if opt['stlb'] >= 2:
            a(f"s_load_dword s70, s[{sWO}:{sWO+1}], 0")
            for i in range(7):
                a(f"s_mov_b32 s{sT0}, {i << 21}")
                a(f"s_load_dword s70, s[{sWS}:{sWS+1}], s{sT0}")
        a.label(L('nstlb'))
    TLB = opt.get('tlb', 0)
    if TLB:
        a.srd(SRDW, sW, 1024 * 3072 * 2)
        a.srd_off(SRDU, sWS, 0, 13 << 20)
        a(f"""
        v_lshlrev_b32 v{vT3}, {TLB}, v0
        s_lshl_b32 s{sT0}, s2, 7
        s_cmp_eq_u32 s{sWave}, 1
        s_cbranch_scc0 {L('ntlb1')}
        buffer_load_dword v{vCP}, v{vT3}, {s(SRDW,4)}, s{sT0} offen
        """)
        a.label(L('ntlb1'))
        a(f"""
        v_lshlrev_b32 v{vT3}, {TLB+1}, v0
        s_cmp_eq_u32 s{sWave}, 2
        s_cbranch_scc0 {L('ntlb2')}
        buffer_load_dword v{vCP}, v{vT3}, {s(SRDU,4)}, s{sT0} offen
        """)
        a.label(L('ntlb2'))
    a(f"s_cmp_lt_u32 s{sWave}, 4")
    a(f"s_cbranch_scc1 {L('nogw')}")
    a.srd(SRDP, sGW, 2048)
    a(f"""
    v_lshlrev_b32 v{vT}, 5, v0
    buffer_load_dwordx4 {v(GW,4)}, v{vT}, {s(SRDP,4)}, 0 offen
    buffer_load_dwordx4 {v(GW+4,4)}, v{vT}, {s(SRDP,4)}, 0 offen offset:16
    """)
    a.label(L('nogw'))
    for n in range(4):
        a(f"""
        s_add_u32 s{sT0}, s{sQ}, {n}
        s_and_b32 s{sT0}, s{sT0}, 3
        s_lshl_b32 s{sT0}, s{sT0}, 3
        s_add_u32 s{sT0}, s{sT0}, s{sWave}
        s_lshl_b32 s{sXO}, s{sT0}, 11
        s_add_u32 m0, s{sXO}, {XF}
        s_lshl_b32 s{sXO}, s{sT0}, 6
        s_add_u32 s{sXO}, s{sXO}, s{sS2}
        s_lshl_b32 s{sXO}, s{sXO}, 11
        buffer_load_dwordx4 v{vXL}, {s(SRDX,4)}, s{sXO} offen{opt.get('xflag', '')} lds
        buffer_load_dwordx4 v{vXL}, {s(SRDX,4)}, s{sXO} offen offset:1024{opt.get('xflag', '')} lds
        """)
    a.srd(SRDW, sW, 1024 * 3072 * 2)
    LPF = opt.get('lpf', 0)
    if LPF:
        a(f"""
        s_cmp_lt_u32 s{sWave}, 4
        s_cbranch_scc1 {L('nolpf')}
        v_mul_u32_u24 v{vT}, 43, v0
        v_lshrrev_b32 v{vT}, 9, v{vT}
        v_mul_u32_u24 v{vT2}, 12, v{vT}
        v_sub_u32 v{vT2}, v0, v{vT2}
        v_mul_u32_u24 v{vT3}, 6144, v{vT}
        v_lshrrev_b32 v{vT}, 2, v{vT2}
        v_lshl_add_u32 v{vT3}, v{vT}, 11, v{vT3}
        v_and_b32 v{vT}, 3, v{vT2}
        v_lshl_add_u32 v{vT3}, v{vT}, 7, v{vT3}
        s_lshr_b32 s{sT0}, s2, 3
        s_lshl_b32 s{sT0}, s{sT0}, 2
        s_add_u32 s{sT0}, s{sT0}, s{sWave}
        s_sub_u32 s{sT0}, s{sT0}, 4
        s_mul_i32 s{sT0}, s{sT0}, {8*6144}
        s_bfe_u32 s{sT1}, s2, {(2 << 16) | 1}
        s_lshl_b32 s{sT1}, s{sT1}, 9
        s_add_u32 s{sT0}, s{sT0}, s{sT1}
        s_add_u32 s{sT1}, s{sT0}, {4*6144}
        s_mov_b32 exec_hi, 0xffff
        buffer_load_dword v49, v{vT3}, {s(SRDW,4)}, s{sT0} offen
        """)
        if LPF == 2:
            a(f"buffer_load_dword v50, v{vT3}, {s(SRDW,4)}, s{sT1} offen")
        a("s_mov_b32 exec_hi, -1")
        a.label(L('nolpf'))
    F0 = opt.get('f0', 0)
    if F0:
        a(f"s_cmp_lt_u32 s{sWave}, 4")
        a(f"s_cbranch_scc1 {L('nof0')}")
        a("s_barrier")
        a.label(L('nof0'))
    st.init(sWS)
    st.stamp(0); st.stamp(1, True)
    a(f"""
    s_and_b32 s{sT0}, s2, 7
    s_lshr_b32 s{sT1}, s2, 3
    s_and_b32 s{sMB}, s{sT0}, 1
    s_lshl_b32 s{sMB}, s{sMB}, 3
    s_and_b32 s{sT2}, s{sT1}, 7
    s_add_u32 s{sMB}, s{sMB}, s{sT2}
    s_lshr_b32 s{sHP}, s{sT0}, 1
    s_lshl_b32 s{sHP}, s{sHP}, 2
    s_lshr_b32 s{sT2}, s{sT1}, 3
    s_add_u32 s{sHP}, s{sHP}, s{sT2}
    s_lshl_b32 s{sM0}, s{sMB}, 7
    v_and_b32 v{vI}, 15, v0
    v_lshrrev_b32 v{vG}, 4, v0
    v_lshrrev_b32 v{vR}, 2, v{vI}
    v_and_b32 v{vC}, 3, v{vI}
    v_lshlrev_b32 v{vT}, 2, v{vG}
    v_cvt_f32_u32 v{kkf[0]}, v{vT}
    """)
    for j in range(1, 8):
        kk = j if j < 4 else 16 + (j - 4)
        a(f"v_add_f32 v{kkf[j]}, {f32bits(float(kk))}, v{kkf[0]}")
    a(f"""
    v_lshrrev_b32 v{vT}, 1, v{vI}
    s_lshl_b32 s{sT0}, s{sQ}, 3
    v_add_u32 v{vT}, s{sT0}, v{vT}
    v_cvt_f32_u32 v{vT}, v{vT}
    v_mul_f32 v{vT}, {f32bits(1/32)}, v{vT}
    v_and_b32 v{vT2}, 1, v{vI}
    v_cvt_f32_u32 v{vT2}, v{vT2}
    v_mul_f32 v{vT2}, {f32bits(0.25)}, v{vT2}
    """)
    for j in range(8):
        a(f"v_fma_f32 v{tmp+j}, v{vT}, v{kkf[j]}, v{vT2}")
    for j in range(8):
        a(f"v_cos_f32 v{tmp+j}, v{tmp+j}")
    a(f"""
    v_lshl_add_u32 v{vT}, v{vG}, 2, v{vR}
    v_lshlrev_b32 v{a0}, 11, v{vT}
    v_and_b32 v{vT2}, 7, v{vT}
    v_lshl_add_u32 v{a0}, v{vT2}, 5, v{a0}
    v_lshl_add_u32 v{a0}, v{vC}, 3, v{a0}
    s_lshl_b32 s{sT0}, s{sWave}, 8
    v_add_u32 v{a0}, s{sT0}, v{a0}
    v_mul_u32_u24 v{aW[0]}, {CROW}, v{vI}
    v_lshl_add_u32 v{aW[0]}, v{vG}, 3, v{aW[0]}
    s_and_b32 s{sT1}, s{sWave}, 1
    s_lshl_b32 s{sT1}, s{sT1}, 5
    s_add_u32 s{sT0}, s{sT0}, {CB}
    s_add_u32 s{sT2}, s{sT0}, s{sT1}
    s_xor_b32 s{sT1}, s{sT1}, 32
    s_add_u32 s{sT1}, s{sT0}, s{sT1}
    v_add_u32 v{aW[1]}, s{sT1}, v{aW[0]}
    v_add_u32 v{aW[0]}, s{sT2}, v{aW[0]}
    """)
    for j in range(4):
        a(f"v_cvt_pk_bf16_f32 v{B0+j}, v{tmp+2*j}, v{tmp+2*j+1}")
    a(f"v_add_u32 v{a0}, {XF}, v{a0}")
    for i in range(1, 8):
        a(f"v_xor_b32 v{a0x[i-1]}, {i*32}, v{a0}")
    def stage0(extra_reads=None, n_extra=0):
        for i in range(8):
            ad = a0 if i == 0 else a0x[i-1]
            for half in range(2):
                a(f"ds_read_b64_tr_b16 {v(XA[i]+2*half,2)}, v{ad} offset:{half*32768}")
        if extra_reads: extra_reads()
        for i in range(8):
            a(f"s_waitcnt lgkmcnt({min(15, 2*(7-i)+n_extra)})")
            a.mfma(D0[i], XA[i], B0, None)
        a("s_nop 3")
        for i in range(8):
            a(f"v_cvt_pk_bf16_f32 v{D0[i]}, v{D0[i]}, v{D0[i]+1}")
            a(f"v_cvt_pk_bf16_f32 v{D0[i]+1}, v{D0[i]+2}, v{D0[i]+3}")
            a(f"ds_write_b64 v{aW[i&1]}, {v(D0[i],2)} offset:{(i>>1)*64}")
    a(f"""
    s_cmp_lt_u32 s{sWave}, 4
    s_cbranch_scc1 {L('compute')}
    """)
    V = Regs(8, FB - 1, 'v')
    vLR, vP = V.alloc(), V.alloc()
    vA = [V.alloc() for _ in range(6)]
    vB = [V.alloc() for _ in range(4)]
    aG = [V.alloc(), V.alloc()]
    gacc = [V.alloc(), V.alloc()]
    vPF = V.alloc(); vPFD = V.alloc()
    aU = V.alloc(); aSR = V.alloc()
    a.srd_off(SRDG, sWS, WS_G, 2048 * 4)
    def rowbase(al):
        be = al >> 1
        if be == 8: return -16 + (al & 1)
        return 64 * (be >> 2) + 32 * (be & 1) + 16 * (al & 1) + ((be >> 1) & 1)
    tabs = []
    for j in range(3):
        x = 0
        for n in range(6): x |= (rowbase(6*j + n) + 16) << (8 * n)
        tabs.append(x)
    a(f"""
    s_sub_u32 s{sLW}, s{sWave}, 4
    v_lshrrev_b32 v{vLR}, 3, v0
    v_and_b32 v{vP}, 7, v0
    s_lshl_b32 s{sT0}, s{sQ}, 3
    s_lshl_b32 s{sT1}, s{sLW}, 1
    s_add_u32 s{sT3}, s{sT0}, s{sT1}
    v_xor_b32 v{vT}, s{sT1}, v0
    v_lshlrev_b32 v{aG[0]}, 5, v{vT}
    v_xor_b32 v{aG[1]}, 32, v{aG[0]}
    s_lshl_b32 s{sT0}, s{sT3}, 11
    s_add_u32 s{sT0}, s{sT0}, {XF}
    v_add_u32 v{aG[0]}, s{sT0}, v{aG[0]}
    s_add_u32 s{sT0}, s{sT0}, 2048
    v_add_u32 v{aG[1]}, s{sT0}, v{aG[1]}
    s_lshl_b32 s{sT3}, s{sT3}, 6
    s_add_u32 s{sT3}, s{sT3}, s{sS2}
    s_lshl_b32 s{sT3}, s{sT3}, 2
    v_mul_u32_u24 v{vT}, 6144, v{vLR}
    s_lshl_b32 s{sT0}, s{sHP}, 7
    s_lshl_b32 s{sT1}, s{sLW}, 11
    s_add_u32 s{sT0}, s{sT0}, s{sT1}
    v_add_u32 v{vT}, s{sT0}, v{vT}
    v_and_b32 v{vT2}, 2, v{vLR}
    v_xor_b32 v{vT2}, v{vT2}, v{vP}
    v_lshl_add_u32 v{vB[0]}, v{vT2}, 4, v{vT}
    v_xor_b32 v{vT2}, 4, v{vT2}
    v_lshl_add_u32 v{vB[1]}, v{vT2}, 4, v{vT}
    v_add_u32 v{vB[1]}, {8*6144 - 1024}, v{vB[1]}
    v_add_u32 v{vB[2]}, {16*6144 - 2048}, v{vB[0]}
    v_add_u32 v{vB[3]}, {16*6144 - 2048}, v{vB[1]}
    s_mov_b32 s{sMSK}, {tabs[0] & 0xffffffff}
    s_mov_b32 s{sMSK+1}, {tabs[0] >> 32}
    s_cmp_eq_u32 s{sLW}, 1
    s_cselect_b32 s{sMSK}, {tabs[1] & 0xffffffff}, s{sMSK}
    s_cselect_b32 s{sMSK+1}, {tabs[1] >> 32}, s{sMSK+1}
    s_cmp_eq_u32 s{sLW}, 2
    s_cselect_b32 s{sMSK}, {tabs[2] & 0xffffffff}, s{sMSK}
    s_cselect_b32 s{sMSK+1}, {tabs[2] >> 32}, s{sMSK+1}
    v_lshlrev_b32 v{vT}, 12, v{vLR}
    v_xor_b32 v{vT2}, v{vP}, v{vLR}
    v_lshl_add_u32 v{vT}, v{vT2}, 4, v{vT}
    s_sub_u32 s{sT1}, s{sM0}, 16
    """)
    for n in range(6):
        a(f"""
        s_bfe_u32 s{sT0}, s{sMSK + (n >> 2)}, {(8 << 16) | (8 * (n & 3))}
        s_add_u32 s{sT0}, s{sT0}, s{sT1}
        s_lshl_b32 s{sT0}, s{sT0}, 11
        s_sub_u32 s{sT0}, s{sT0}, {(n & 3)*1024}
        v_add_u32 v{vA[n]}, s{sT0}, v{vT}
        """)
    a(f"""
    s_mul_i32 s{sMA}, s{sLW}, 6144
    s_lshl_b32 s{sMBo}, s{sLW}, 13
    s_add_u32 s{sMBo}, s{sMBo}, {BOFF}
    s_mov_b32 s{sKA}, 0
    s_mov_b32 s{sKB}, 0
    s_mov_b32 s{sKB2}, {32*6144}
    s_mov_b32 s{sStg}, 0
    """)
    def issue_stage():
        a(f"s_add_u32 m0, s{sMBo}, s{sStg}")
        a(f"s_add_u32 s{sT0}, s{sMBo}, s{sStg}")
        for u in range(4):
            a(f"buffer_load_dwordx4 v{vB[u]}, {s(SRDW,4)}, s{sKB} offen offset:{u*1024} lds")
        a(f"s_add_u32 m0, s{sMA}, s{sStg}")
        a(f"s_add_u32 s{sT1}, s{sMA}, s{sStg}")
        for n in range(4):
            a(f"buffer_load_dwordx4 v{vA[n]}, {s(SRDX,4)}, s{sKA} offen offset:{n*1024} lds")
        a(f"s_add_u32 m0, s{sT1}, 4096")
        a(f"s_add_u32 s{sKB}, s{sKB}, {64*6144}")
        for n in range(4, 6):
            a(f"buffer_load_dwordx4 v{vA[n]}, {s(SRDX,4)}, s{sKA} offen offset:{(n-4)*1024} lds")
        a(f"s_add_u32 m0, s{sT0}, 4096")
        a(f"s_add_u32 s{sKA}, s{sKA}, 128")
        for u in range(4):
            a(f"buffer_load_dwordx4 v{vB[u]}, {s(SRDW,4)}, s{sKB2} offen offset:{u*1024} lds")
        a(f"""
        s_add_u32 s{sKB2}, s{sKB2}, {64*6144}
        s_add_u32 s{sStg}, s{sStg}, {STAGE}
        s_cmp_eq_u32 s{sStg}, {3*STAGE}
        s_cselect_b32 s{sStg}, 0, s{sStg}
        """)
    st.stamp(2)
    a(f"s_waitcnt vmcnt({LPF}) lgkmcnt(0)")
    a("s_barrier")
    st.stamp(3)
    def greads():
        for n in range(2):
            a(f"ds_read_b128 {v(GX[n],4)}, v{aG[n]}")
            a(f"ds_read_b128 {v(GX[n]+4,4)}, v{aG[n]} offset:16")
    if opt.get('stamp'): a("s_waitcnt lgkmcnt(0)")
    stage0(greads, 4)
    a("s_waitcnt lgkmcnt(0)")
    a("s_barrier")
    st.stamp(4)
    for n in range(2):
        a(f"v_mov_b32 v{gacc[n]}, 0")
    if opt.get('fgate', 0):
        for j in range(8):
            for n in range(2):
                a(f"v_dot2_f32_bf16 v{gacc[n]}, v{GX[n]+j}, v{GW+j}, v{gacc[n]}")
        a("s_nop 2")
    else:
        for j in range(8):
            a(f"v_lshlrev_b32 v{tmp+2}, 16, v{GW+j}")
            a(f"v_and_b32 v{tmp+3}, 0xffff0000, v{GW+j}")
            for n in range(2):
                t = tmp + 4 + 4*n
                a(f"""
                v_lshlrev_b32 v{t}, 16, v{GX[n]+j}
                v_and_b32 v{t+1}, 0xffff0000, v{GX[n]+j}
                v_mul_f32 v{t}, v{t}, v{tmp+2}
                v_mul_f32 v{t+1}, v{t+1}, v{tmp+3}
                v_cvt_pk_bf16_f32 v{t}, 0, v{t}
                v_cvt_pk_bf16_f32 v{t+1}, 0, v{t+1}
                v_add_f32 v{gacc[n]}, v{gacc[n]}, v{t}
                v_add_f32 v{gacc[n]}, v{gacc[n]}, v{t+1}
                """)
    for k in (8, 4, 2, 1):
        a("s_nop 1")
        for n in range(2):
            a(f"v_add_f32_dpp v{gacc[n]}, v{gacc[n]}, v{gacc[n]} row_ror:{k} row_mask:0xf bank_mask:0xf")
    for sw in ("v_permlane32_swap_b32", "v_permlane16_swap_b32"):
        for n in range(2): a(f"v_mov_b32 v{tmp+n}, v{gacc[n]}")
        a("s_nop 1")
        for n in range(2): a(f"{sw} v{gacc[n]}, v{tmp+n}")
        a("s_nop 1")
        for n in range(2): a(f"v_add_f32 v{gacc[n]}, v{gacc[n]}, v{tmp+n}")
    for n in range(2):
        a(f"""
        v_cvt_pk_bf16_f32 v{gacc[n]}, 0, v{gacc[n]}
        v_mul_f32 v{gacc[n]}, {f32bits(-1.4426950408889634)}, v{gacc[n]}
        v_exp_f32 v{gacc[n]}, v{gacc[n]}
        s_nop 0
        v_add_f32 v{gacc[n]}, 1.0, v{gacc[n]}
        v_rcp_f32 v{gacc[n]}, v{gacc[n]}
        s_nop 0
        v_cvt_pk_bf16_f32 v{gacc[n]}, 0, v{gacc[n]}
        """)
    def gstore():
        a(f"""
        v_mov_b32 v{tmp}, s{sT3}
        s_mov_b64 exec, 1
        buffer_store_dword v{gacc[0]}, v{tmp}, {s(SRDG,4)}, 0 offen
        buffer_store_dword v{gacc[1]}, v{tmp}, {s(SRDG,4)}, 0 offen offset:256
        s_mov_b64 exec, -1
        """)
    a(f"s_cmp_eq_u32 s{sLW}, 3")
    a(f"s_cbranch_scc1 {L('misc')}")
    if opt.get('lprio'): a(f"s_setprio {opt['lprio']}")
    issue_stage(); issue_stage()
    st.stamp(7)
    a("s_waitcnt vmcnt(14)")
    st.stamp(8)
    a("s_barrier")
    issue_stage()
    a(f"s_mov_b32 s{sCnt}, 0")
    a.align(opt.get('all'))
    a.label(L('lloop'))
    if opt.get('stg'): a("s_memtime s[92:93]")
    a("s_waitcnt vmcnt(14)")
    if opt.get('stg'): a("s_memtime s[94:95]")
    a("s_barrier")
    if opt.get('stg'):
        a("s_memtime s[96:97]")
        a("s_waitcnt lgkmcnt(0)")
        a(f"s_mov_b32 m0, s{sCnt}")
        a("s_nop 1")
        a("v_writelane_b32 v40, s92, m0")
        a("v_writelane_b32 v41, s94, m0")
        a("v_writelane_b32 v42, s96, m0")
    issue_stage()
    a(f"""
    s_add_u32 s{sCnt}, s{sCnt}, 1
    s_cmp_lt_u32 s{sCnt}, 13
    s_cbranch_scc1 {L('lloop')}
    s_waitcnt vmcnt(14)
    s_barrier
    s_waitcnt vmcnt(0)
    s_barrier
    """)
    gstore()
    a("s_barrier")
    a("s_barrier")
    st.stamp(5); st.stamp(6, True)
    st.dump(7 if opt.get('stg') else 12, sWave, 1, 2)
    if opt.get('stg'):
        a(f"""
        s_lshl_b32 s100, s100, 2
        v_lshlrev_b32 v2, 2, v0
        v_add_u32 v2, s100, v2
        s_mov_b32 s99, {256<<10}
        s_mov_b64 exec, 0xffffffff
        buffer_store_dword v40, v2, s[72:75], s99 offen
        buffer_store_dword v41, v2, s[72:75], s99 offen offset:128
        buffer_store_dword v42, v2, s[72:75], s99 offen offset:256
        s_mov_b64 exec, -1
        """)
    sp.end(sWS, sWave)
    a(f"s_branch {L('end')}")
    a.label(L('misc'))
    gstore()
    a.srd_off(SRDU, sWS, WS_U, 8 << 20)
    a.srd(SRDP, sWO, 2 << 20)
    a(f"""
    s_lshl_b32 s{sT1}, s{sQ}, 10
    s_add_u32 s{sT1}, s{sT1}, s{sS2}
    s_lshl_b32 s{sT1}, s{sT1}, 11
    v_lshlrev_b32 v{aU}, 4, v0
    v_add_u32 v{aU}, s{sT1}, v{aU}
    v_bfe_u32 v{vT}, v0, 3, 1
    v_bfe_u32 v{vT2}, v0, 5, 1
    v_lshl_add_u32 v{vT}, v{vT2}, 1, v{vT}
    v_xor_b32 v{vT}, v{vT}, v0
    v_lshlrev_b32 v{aSR}, 4, v{vT}
    v_add_u32 v{aSR}, {CB}, v{aSR}
    s_lshr_b32 s{sT0}, s2, 3
    s_lshl_b32 s{sT0}, s{sT0}, 16
    v_lshlrev_b32 v{vPF}, 7, v0
    v_add_u32 v{vPF}, s{sT0}, v{vPF}
    """)
    if opt.get('stlb', 0) >= 3:
        a(f"s_load_dwordx2 s[{SRDO}:{SRDO+1}], s[0:1], 72")
        a("s_waitcnt lgkmcnt(0)")
        a(f"s_load_dword s70, s[{SRDO}:{SRDO+1}], 0")
        a(f"s_mov_b32 s{sT0}, {1 << 21}")
        a(f"s_load_dword s70, s[{SRDO}:{SRDO+1}], s{sT0}")
        a("s_waitcnt lgkmcnt(0)")
    WON = 8; WOSTEP = 8192
    if opt.get('wohalf', 0):
        WON = 4; WOSTEP = 8 * 2048
        a(f"""
        s_lshr_b32 s{sT0}, s2, 3
        s_lshl_b32 s{sT0}, s{sT0}, 16
        v_lshlrev_b32 v{vPF}, 11, v{vLR}
        v_lshl_add_u32 v{vPF}, v{vP}, 7, v{vPF}
        s_bfe_u32 s{sT1}, s2, {(1 << 16) | 2}
        s_lshl_b32 s{sT1}, s{sT1}, 10
        s_add_u32 s{sT0}, s{sT0}, s{sT1}
        v_add_u32 v{vPF}, s{sT0}, v{vPF}
        """)
    UPS = opt.get('ups', 3)
    WO0 = opt.get('wo0', 11); WOPS = opt.get('wops', 2)
    wm = opt.get('womall', 4)
    up = 0; wo = 0; upn = 0
    for b in range(-1, 16):
        a("s_barrier")
        k = min(UPS, 32 - up) if b >= opt.get('us0', -1) else 0
        for i in range(k):
            idx = up + i
            a(f"ds_read_b128 {v(XA[i],4)}, v{aSR} offset:{(idx >> 3)*4*CROW + (idx & 7)*1024}")
        for i in range(k):
            idx = up + i
            a(f"s_mov_b32 s{sT0}, {(idx >> 1)*131072}")
            a(f"s_waitcnt lgkmcnt({k - 1 - i})")
            a(f"buffer_store_dwordx4 {v(XA[i],4)}, v{aU}, {s(SRDU,4)}, s{sT0} offen offset:{(idx & 1)*1024}{USC}")
        up += k
        if opt.get('wu', 0) == 1 and b == opt.get('badb', -1):
            a(f"""
            s_bitcmp1_b32 s{sHP}, 2
            s_cbranch_scc1 {L('nobad')}
            v_mul_u32_u24 v{vT}, 2048, v0
            s_lshr_b32 s{sT0}, s2, 3
            s_mul_i32 s{sT0}, s{sT0}, {32*6144}
            s_or_b32 s{sT1}, s{sHP}, 3
            s_lshl_b32 s{sT1}, s{sT1}, 7
            s_add_u32 s{sT0}, s{sT0}, s{sT1}
            s_add_u32 s{sT1}, s{sT0}, {16*6144}
            s_mov_b32 exec_hi, 0xffff
            buffer_load_dword v{vT2}, v{vT}, {s(SRDW,4)}, s{sT0} offen
            buffer_load_dword v{vT3}, v{vT}, {s(SRDW,4)}, s{sT1} offen
            s_mov_b32 exec_hi, -1
            """)
            a.label(L('nobad'))
        if b == wm:
            a(f"""
            s_lshl_b32 s{sT0}, s2, 13
            v_lshlrev_b32 v{vT}, 7, v0
            buffer_load_dword v{vT2}, v{vT}, {s(SRDP,4)}, s{sT0} offen
            """)
        if b >= WO0 and opt.get('wopf', 1):
            for i in range(min(WOPS, WON - wo)):
                a(f"s_mov_b32 s{sT0}, {wo*WOSTEP}")
                a(f"buffer_load_dword v{vPFD}, v{vPF}, {s(SRDP,4)}, s{sT0} offen")
                wo += 1
        if b == 13: code_pf()
        if opt.get('upf', 0) and b >= opt.get('upf0', 14) and upn < 4:
            if upn == 0:
                a(f"""
                s_and_b32 s{sT0}, s2, 3
                s_lshl_b32 s{sT0}, s{sT0}, 2
                s_bfe_u32 s{sT1}, s2, {(2 << 16) | 3}
                s_add_u32 s{sT0}, s{sT0}, s{sT1}
                s_lshl_b32 s{sKA}, s{sT0}, 19
                s_bfe_u32 s{sT0}, s2, {(1 << 16) | 2}
                s_lshl_b32 s{sT0}, s{sT0}, 3
                s_lshr_b32 s{sT1}, s2, 5
                s_add_u32 s{sT0}, s{sT0}, s{sT1}
                s_lshl_b32 s{sT0}, s{sT0}, 7
                s_add_u32 s{sKA}, s{sKA}, s{sT0}
                v_lshlrev_b32 v{vA[0]}, 11, v0
                """)
            for i in range(opt.get('upfs', 2)):
                if upn < 4:
                    a(f"s_add_u32 s{sT0}, s{sKA}, {upn*131072}")
                    a(f"buffer_load_dword v{vA[1]}, v{vA[0]}, {s(SRDU,4)}, s{sT0} offen")
                    upn += 1
    assert up == 32
    a("s_barrier")
    st.stamp(5); st.stamp(6, True)
    st.dump(12, sWave, 1, 2)
    sp.end(sWS, sWave)
    a(f"s_branch {L('end')}")
    a.label(L('compute'))
    if opt.get('prio'): a(f"s_setprio {opt['prio']}")
    U.release(umark)
    V = Regs(8, FB - 1, 'v')
    bA = [V.alloc(), V.alloc()]; bH = [V.alloc(), V.alloc()]; bB = [V.alloc(), V.alloc()]
    cA = [V.alloc(), V.alloc()]; cH = [V.alloc(), V.alloc()]; cB = [V.alloc(), V.alloc()]
    vO = V.alloc(); vLane16 = V.alloc(); vLane8 = V.alloc()
    mCur = V.alloc(2, 2); mPrev = V.alloc(2, 2); mFirst = [V.alloc(2, 2), V.alloc(2, 2)]
    biasCur = V.alloc(4, 4); biasPrev = V.alloc(4, 4); biasFirst = [V.alloc(4, 4), V.alloc(4, 4)]
    vWP = V.alloc(); vWD = V.alloc(2)
    G = Regs(FB, 256, 'gemm')
    QT = [[[G.alloc(4, 4) for db in range(2)] for b in range(2)] for par in range(2)]
    KT = [[[G.alloc(4, 4) for db in range(2)] for b in range(2)] for par in range(2)]
    VV = [[[G.alloc(4, 4) for db in range(2)] for b in range(2)] for par in range(2)]
    HH = [G.alloc(4, 4) for db in range(2)]
    acc0 = QT[0][0][0]
    F = [None, None]; fr = [0, 0]
    for f in (1, 0):
        fr[f] = G.mark()
        F[f] = dict(XA=[[G.alloc(4, 4) for b in range(2)] for par in range(2)], XH=G.alloc(4, 4),
                    WB=[[G.alloc(4, 4) for db in range(2)] for seg in range(3)])
    COS = [U.alloc(4, 4) for _ in range(2)]
    SIN = [U.alloc(4, 4) for _ in range(2)]
    NSIN = [U.alloc(4, 4) for _ in range(2)]
    TWC = [[U.alloc(4) for eb in range(2)] for db2 in range(2)]
    TWS = [[U.alloc(4) for eb in range(2)] for db2 in range(2)]
    a1 = [U.alloc(), U.alloc()]; aSW = U.alloc()
    a.srd_off(SRDO, sWS, WS_O, 4 << 20)
    a(f"""
    s_mov_b32 s{sRI}, 131072
    v_lshl_add_u32 v{vT}, v{vR}, 3, v{vC}
    v_cvt_f32_u32 v{ef[0]}, v{vT}
    v_add_f32 v{ef[1]}, 4.0, v{ef[0]}
    """)
    for eb in range(2):
        a(f"v_mul_f32 v{vT}, {f32bits(1/32)}, v{ef[eb]}")
        for j in range(8):
            a(f"v_mul_f32 v{tmp+j}, v{vT}, v{kkf[j]}")
        for j in range(8):
            a(f"v_sin_f32 v{tmp+8+j}, v{tmp+j}")
        for j in range(8):
            a(f"v_cos_f32 v{tmp+j}, v{tmp+j}")
        a("s_nop 0")
        for j in range(4):
            a(f"v_cvt_pk_bf16_f32 v{SIN[eb]+j}, v{tmp+8+2*j}, v{tmp+8+2*j+1}")
            a(f"v_cvt_pk_bf16_f32 v{COS[eb]+j}, v{tmp+2*j}, v{tmp+2*j+1}")
            a(f"v_xor_b32 v{NSIN[eb]+j}, 0x80008000, v{SIN[eb]+j}")
    for eb in range(2):
        a(f"v_mul_f32 v{vT}, {f32bits(1/1024)}, v{ef[eb]}")
        for db2 in range(2):
            for r in range(4):
                a(f"v_mul_f32 v{TWC[db2][eb]+r}, v{vT}, v{kkf[4*db2+r]}")
            for r in range(4):
                a(f"v_sin_f32 v{TWS[db2][eb]+r}, v{TWC[db2][eb]+r}")
            for r in range(4):
                a(f"v_cos_f32 v{TWC[db2][eb]+r}, v{TWC[db2][eb]+r}")
    a(f"""
    """)
    WU = opt.get('wu', 0)
    if WU:
        a(f"""
        s_lshl_b32 s{sT0}, s{sWave}, 21
        s_lshl_b32 s{sT1}, s2, 13
        s_add_u32 s{sT0}, s{sT0}, s{sT1}
        v_lshlrev_b32 v{vWP}, 7, v0
        v_add_u32 v{vWP}, s{sT0}, v{vWP}
        """)
    else:
        a(f"""
    ; W prefetch into this XCD's L2: rows 32*idx + 8*wave + l/12 (+4), line l%12
    v_mul_u32_u24 v{vT}, 43, v0
    v_lshrrev_b32 v{vT}, 9, v{vT}
    v_mul_u32_u24 v{vT2}, 12, v{vT}
    v_sub_u32 v{vT2}, v0, v{vT2}
    v_mul_u32_u24 v{vWP}, 6144, v{vT}
    v_lshrrev_b32 v{vT}, 2, v{vT2}
    v_lshl_add_u32 v{vWP}, v{vT}, 11, v{vWP}
    v_and_b32 v{vT}, 3, v{vT2}
    v_lshl_add_u32 v{vWP}, v{vT}, 7, v{vWP}
    s_lshr_b32 s{sT0}, s2, 3
    s_lshl_b32 s{sT0}, s{sT0}, 2
    s_add_u32 s{sT0}, s{sT0}, s{sWave}
    s_mul_i32 s{sT0}, s{sT0}, {8*6144}
    s_lshr_b32 s{sT1}, s{sHP}, 2
    s_lshl_b32 s{sT1}, s{sT1}, 9
    s_add_u32 s{sT0}, s{sT0}, s{sT1}
    v_add_u32 v{vWP}, s{sT0}, v{vWP}
        """)
    a(f"""
    s_and_b32 s{sH}, s{sWave}, 1
    s_lshr_b32 s{sHF}, s{sWave}, 1
    s_mov_b32 s{sScale}, {SCALE}
    s_mov_b32 s{sLog2e}, {f32bits(1.4426950408889634 * 32 ** -0.5) if opt.get('fast', 0) else LOG2E}
    v_lshl_add_u32 v{vT}, v{vG}, 2, v{vR}
    v_lshlrev_b32 v{a1[0]}, 6, v{vT}
    v_lshl_add_u32 v{a1[0]}, v{vC}, 3, v{a1[0]}
    v_and_b32 v{vT2}, 1, v{vG}
    v_lshl_add_u32 v{a1[0]}, v{vT2}, 5, v{a1[0]}
    v_xor_b32 v{a1[1]}, 32, v{a1[0]}
    s_mul_i32 s{sT0}, s{sWave}, {4*CROW}
    s_add_u32 s{sT0}, s{sT0}, {CB}
    v_add_u32 v{a1[0]}, s{sT0}, v{a1[0]}
    v_add_u32 v{a1[1]}, s{sT0}, v{a1[1]}
    v_lshrrev_b32 v{vT}, 1, v{vC}
    v_and_b32 v{vT2}, 1, v{vR}
    v_lshl_add_u32 v{vT}, v{vT2}, 1, v{vT}
    v_xor_b32 v{vT}, v{vT}, v{vG}
    v_lshl_add_u32 v{aSW}, v{vR}, 3, v{vC}
    v_lshlrev_b32 v{aSW}, 6, v{aSW}
    v_lshl_add_u32 v{aSW}, v{vT}, 4, v{aSW}
    v_add_u32 v{aSW}, s{sT0}, v{aSW}
    v_and_b32 v{vT}, 7, v{vI}
    v_xor_b32 v{vT}, v{vT}, v{vG}
    v_lshlrev_b32 v{vT}, 4, v{vT}
    v_lshl_add_u32 v{vT}, v{vI}, 7, v{vT}
    s_lshl_b32 s{sT0}, s{sHF}, 13
    v_add_u32 v{bA[0]}, s{sT0}, v{vT}
    v_xor_b32 v{bA[1]}, 64, v{bA[0]}
    v_add_u32 v{bH[0]}, 16384, v{vT}
    v_xor_b32 v{bH[1]}, 64, v{bH[0]}
    v_lshl_add_u32 v{bB[0]}, v{vG}, 3, v{vR}
    v_lshlrev_b32 v{bB[0]}, 7, v{bB[0]}
    v_and_b32 v{vT}, 1, v{vG}
    v_lshlrev_b32 v{vT}, 2, v{vT}
    v_and_b32 v{vT2}, 2, v{vR}
    v_or_b32 v{vT}, v{vT}, v{vT2}
    v_lshrrev_b32 v{vT2}, 1, v{vC}
    s_lshl_b32 s{sT0}, s{sH}, 2
    v_add_u32 v{vT2}, s{sT0}, v{vT2}
    v_xor_b32 v{vT}, v{vT}, v{vT2}
    v_lshl_add_u32 v{bB[0]}, v{vT}, 4, v{bB[0]}
    v_and_b32 v{vT}, 1, v{vC}
    v_lshl_add_u32 v{bB[0]}, v{vT}, 3, v{bB[0]}
    v_add_u32 v{bB[0]}, {BOFF}, v{bB[0]}
    v_xor_b32 v{bB[1]}, 32, v{bB[0]}
    v_lshlrev_b32 v{vO}, 18, v{vI}
    v_and_b32 v{vT}, 1, v{vG}
    v_lshl_add_u32 v{vO}, v{vT}, 5, v{vO}
    v_lshrrev_b32 v{vT}, 1, v{vG}
    v_lshl_add_u32 v{vO}, v{vT}, 4, v{vO}
    s_lshl_b32 s{sT0}, s{sHP}, 13
    s_lshl_b32 s{sT1}, s{sMB}, 9
    s_add_u32 s{sT0}, s{sT0}, s{sT1}
    s_lshl_b32 s{sT1}, s{sHF}, 8
    s_add_u32 s{sT0}, s{sT0}, s{sT1}
    s_lshl_b32 s{sT1}, s{sH}, 6
    s_add_u32 s{sT0}, s{sT0}, s{sT1}
    v_add_u32 v{vO}, s{sT0}, v{vO}
    s_mul_i32 s{sT0}, s{sH}, 5120
    v_lshlrev_b32 v{vLane16}, 4, v0
    v_add_u32 v{vLane16}, s{sT0}, v{vLane16}
    v_lshlrev_b32 v{vLane8}, 3, v0
    v_add_u32 v{vLane8}, s{sT0}, v{vLane8}
    """)
    a(f"v_lshlrev_b32 v{vT}, 2, v{vG}")
    a(f"v_sub_u32 v{vT}, v{vI}, v{vT}")
    a(f"v_mov_b32 v{vT3}, {NEG_BIG}")
    MS = s(sMSK, 2)
    for r in range(4):
        a(f"v_subrev_u32 v{vT2}, {r}, v{vT}")
        a(f"v_cmp_gt_u32 vcc, 8, v{vT2}")
        a(f"v_cmp_gt_i32 {MS}, -8, v{vT2}")
        a("s_nop 0")
        a(f"v_cndmask_b32_e64 v{biasCur+r}, v{vT3}, 0, vcc")
        a(f"v_cndmask_b32_e64 v{biasPrev+r}, v{vT3}, 0, {MS}")
        a(f"v_mov_b32 v{biasFirst[1]+r}, v{biasPrev+r}")
        a(f"v_mov_b32 v{biasFirst[0]+r}, v{biasPrev+r}")
    a(f"""
    s_cmp_lg_u32 s{sHF}, 0
    s_cbranch_scc1 {L('maskdone')}
    v_cmp_gt_u32 {MS}, 2, v{vG}
    """)
    for r in range(4):
        a(f"v_subrev_u32 v{vT2}, {r}, v{vT}")
        a(f"v_cmp_gt_i32 vcc, 0, v{vT2}")
        a("s_nop 1")
        a(f"s_and_b64 vcc, vcc, {MS}")
        a("s_nop 1")
        a(f"v_cndmask_b32_e64 v{biasFirst[0]+r}, v{vT3}, 0, vcc")
    a(f"""
    s_cmp_lg_u32 s{sMB}, 0
    s_cbranch_scc1 {L('maskdone')}
    """)
    for r in range(4):
        a(f"v_mov_b32 v{biasFirst[0]+r}, v{vT3}")
        a(f"v_mov_b32 v{biasFirst[1]+r}, v{vT3}")
    a.label(L('maskdone'))
    def mk_mask(m, bias):
        for h2 in range(2):
            a(f"v_ashrrev_i32 v{vT}, 31, v{bias+2*h2}")
            a(f"v_ashrrev_i32 v{vT2}, 31, v{bias+2*h2+1}")
            a(f"v_and_b32 v{vT}, 0xffff, v{vT}")
            a(f"v_and_b32 v{vT2}, 0xffff0000, v{vT2}")
            a(f"v_or_b32 v{vT}, v{vT}, v{vT2}")
            a(f"v_not_b32 v{m+h2}, v{vT}")
    mk_mask(mCur, biasCur); mk_mask(mPrev, biasPrev); mk_mask(mFirst[0], biasFirst[0]); mk_mask(mFirst[1], biasFirst[1])
    st.stamp(2)
    if F0:
        a("s_barrier")
    else:
        a("s_waitcnt vmcnt(0)")
        if opt.get('wpfpos', 4) == 4: a("s_barrier")
    if LPF == 2:
        pass
    elif LPF == 1:
        a(f"""
        s_mov_b32 s{sT0}, {4*6144}
        s_mov_b32 exec_hi, 0xffff
        buffer_load_dword v{vWD+1}, v{vWP}, {s(SRDW,4)}, s{sT0} offen
        s_mov_b32 exec_hi, -1
        """)
    elif WU:
        a(f"buffer_load_dword v{vWD}, v{vWP}, {s(SRDW,4)}, 0 offen")
    else:
        a(f"""
        s_mov_b32 s{sT0}, {4*6144}
        s_mov_b32 exec_hi, 0xffff
        buffer_load_dword v{vWD}, v{vWP}, {s(SRDW,4)}, 0 offen{opt.get('wflag', '')}
        buffer_load_dword v{vWD+1}, v{vWP}, {s(SRDW,4)}, s{sT0} offen{opt.get('wflag', '')}
        s_mov_b32 exec_hi, -1
        """)
    if F0:
        a("s_waitcnt vmcnt(2)")
        a("s_barrier")
    elif opt.get('wpfpos', 4) == 3: a("s_barrier")
    st.stamp(3)
    if opt.get('stamp'): a("s_waitcnt lgkmcnt(0)")
    stage0()
    a("s_waitcnt lgkmcnt(0)")
    a("s_barrier")
    st.stamp(4)
    if opt.get('stamp'): a("s_waitcnt lgkmcnt(0)")
    AR2 = [U.alloc(4, 4) for _ in range(4)]
    Cfs = [[[XA[0], XA[1]], [XA[2], XA[3]]], [[XA[4], XA[5]], [XA[6], XA[7]]]]
    for task in range(2):
        for ri in range(2):
            for db2 in range(2):
                for half in range(2):
                    a(f"ds_read_b64_tr_b16 {v(Cfs[task][ri][db2]+2*half,2)}, v{a1[db2]} offset:{half*1024 + (2*task+ri)*CROW}")
    TB = [DEAD + 4*j for j in range(8)]
    Ts = [D0, TB]
    As = [AR2, [XA[0], XA[1], XA[2], XA[3]]]
    Os = [[XA[4], XA[5], XA[6], XA[7]], AR2]
    def mf(d, x, y, c): return f"v_mfma_f32_16x16x32_bf16 {v(d,4)}, {v(x,4)}, {v(y,4)}, {'0' if c is None else v(c,4)}"
    def S1(task):
        T = Ts[task]; Cf = Cfs[task]; out = []
        for db2 in range(2):
            for eb in range(2):
                out.append(mf(T[2*db2+eb], Cf[0][db2], COS[eb], None))
                out.append(mf(T[4+2*db2+eb], Cf[0][db2], NSIN[eb], None))
        for db2 in range(2):
            for eb in range(2):
                out.append(mf(T[2*db2+eb], Cf[1][db2], SIN[eb], T[2*db2+eb]))
                out.append(mf(T[4+2*db2+eb], Cf[1][db2], COS[eb], T[4+2*db2+eb]))
        return out
    def TW(task):
        T = Ts[task]; A_ = As[task]; out = []
        for db2 in range(2):
            for eb in range(2):
                trb, tib = T[2*db2+eb], T[4+2*db2+eb]
                for r in range(4):
                    out.append(f"v_mul_f32 v{tmp0+r}, v{trb+r}, v{TWC[db2][eb]+r}")
                    out.append(f"v_mul_f32 v{tmp0+4+r}, v{trb+r}, v{TWS[db2][eb]+r}")
                for r in range(4):
                    out.append(f"v_fma_f32 v{tmp0+r}, v{tib+r}, v{TWS[db2][eb]+r}, v{tmp0+r}")
                    out.append(f"v_fma_f32 v{tmp0+4+r}, -v{tib+r}, v{TWC[db2][eb]+r}, v{tmp0+4+r}")
                for h2 in range(2):
                    out.append(f"v_cvt_pk_bf16_f32 v{A_[eb]+2*db2+h2}, v{tmp0+2*h2}, v{tmp0+2*h2+1}")
                    out.append(f"v_cvt_pk_bf16_f32 v{A_[2+eb]+2*db2+h2}, v{tmp0+4+2*h2}, v{tmp0+4+2*h2+1}")
        return out
    def S2(task):
        T = Ts[task]; A_ = As[task]; out = []
        for eb2 in range(2):
            for eb in range(2):
                out.append(mf(T[2*eb+eb2], A_[eb], COS[eb2], None))
                out.append(mf(T[4+2*eb+eb2], A_[eb], SIN[eb2], None))
        for eb2 in range(2):
            for eb in range(2):
                out.append(mf(T[2*eb+eb2], A_[2+eb], NSIN[eb2], T[2*eb+eb2]))
                out.append(mf(T[4+2*eb+eb2], A_[2+eb], COS[eb2], T[4+2*eb+eb2]))
        return out
    def OUT(task):
        T = Ts[task]; out = []; k = 0
        for eb2 in range(2):
            for ri in range(2):
                o = Os[task][k]; k += 1
                for eb in range(2):
                    w = T[4*ri+2*eb+eb2]
                    out.append(f"v_cvt_pk_bf16_f32 v{o+2*eb}, v{w}, v{w+1}")
                    out.append(f"v_cvt_pk_bf16_f32 v{o+2*eb+1}, v{w+2}, v{w+3}")
                out.append(f"ds_write_b128 v{aSW}, {v(o,4)} offset:{(2*task+ri)*2048 + eb2*256}")
        return out
    def iln(main, fill, n, skip=0):
        out = []; fi = 0
        for i, m in enumerate(main):
            out.append(m)
            if i >= skip:
                for _ in range(n):
                    if fi < len(fill):
                        out.append(fill[fi]); fi += 1
        return out + fill[fi:]
    a("s_waitcnt lgkmcnt(12)")
    s1a = S1(0)
    for l in s1a[:8]: a(l)
    a("s_waitcnt lgkmcnt(8)")
    for l in s1a[8:]: a(l)
    a("s_waitcnt lgkmcnt(0)")
    for l in iln(S1(1), TW(0), 6, 2): a(l)
    a("s_nop 1")
    for l in iln(S2(0), TW(1), 6, 2): a(l)
    a("s_nop 1")
    for l in iln(S2(1), OUT(0), 2, 4): a(l)
    a("s_nop 3")
    for l in OUT(1): a(l)
    st.stamp(7)

    def reads(f, kh, aA, aH, aB):
        out = []
        fs = F[f]
        def rb(seg, db):
            r = fs['WB'][seg][db]
            for half in range(2):
                out.append(f"ds_read_b64_tr_b16 {v(r+2*half,2)}, v{aB[db]} offset:{kh*4096 + seg*8192 + half*512}")
        def ra(par, b):
            out.append(f"ds_read_b128 {v(fs['XA'][par][b],4)}, v{aA} offset:{(par*2 + b)*2048}")
        ra(0, 0); rb(0, 0); rb(0, 1); ra(0, 1); ra(1, 0); ra(1, 1)
        rb(1, 0); rb(1, 1)
        out.append(f"ds_read_b128 {v(fs['XH'],4)}, v{aH}")
        rb(2, 0); rb(2, 1)
        return out
    def mparts(f, hf, first=False):
        fs = F[f]
        def m(d, x, y): return f"v_mfma_f32_16x16x32_bf16 {v(d,4)}, {v(x,4)}, {v(y,4)}, {'0' if first else v(d,4)}"
        idx = [(par, b, db) for par in range(2) for b in range(2) for db in range(2)]
        if opt.get('mord', 0) == 1:
            idx = [(par, b, db) for db in range(2) for par in range(2) for b in range(2)]
        Q = [(m(QT[p][b][d], fs['WB'][0][d], fs['XA'][p][b]), ('Q', p, b, d)) for p, b, d in idx]
        K = [(m(KT[p][b][d], fs['WB'][1][d], fs['XA'][p][b]), ('K', p, b, d)) for p, b, d in idx]
        Vv = [(m(VV[p][b][d], fs['XA'][p][b], fs['WB'][2][d]), ('V', p, b, d)) for p, b, d in idx]
        if hf == 0: H = [(m(HH[d], fs['WB'][1][d], fs['XH']), ('H', d)) for d in range(2)]
        else: H = [(m(HH[d], fs['XH'], fs['WB'][2][d]), ('H', d)) for d in range(2)]
        return Q, K, Vv, H
    def mfmas(f, hf, first=False):
        Q, K, Vv, H = mparts(f, hf, first)
        seq = Q + K + H + Vv if hf == 0 else Q + K + Vv + H
        if opt.get('mord', 0) == 2:
            seq = []
            for par in range(2):
                for b in range(2):
                    seq += [x for x in Q + K + Vv if x[1][1] == par and x[1][2] == b]
            seq += H
        return [x[0] for x in seq]
    a("s_waitcnt lgkmcnt(0)")
    a("s_barrier")
    st.stamp(8)
    if opt.get('clk'): st.stamp(10, True)
    if opt.get('stamp'): a("s_waitcnt lgkmcnt(0)")
    for l in reads(0, 0, bA[0], bH[0], bB): a(l)
    a(f"""
    v_mov_b32 v{cA[1]}, v{bA[1]}
    v_mov_b32 v{cH[1]}, v{bH[1]}
    v_mov_b32 v{cB[0]}, v{bB[0]}
    v_mov_b32 v{cB[1]}, v{bB[1]}
    s_mov_b32 s{sStg}, 0
    s_mov_b32 s{sCnt}, 0
    s_waitcnt lgkmcnt(0)
    s_cmp_eq_u32 s{sHF}, 0
    s_cbranch_scc0 {L('first1')}
    """)
    P0 = Regs(fr[0], 256, 'pk0')
    Kp = [[P0.alloc(4, 4) for sl in range(3)] for par in range(2)]
    Vp = [[P0.alloc(6, 2) for db in range(2)] for par in range(2)]
    VHp = P0.alloc(4, 2)
    P1 = Regs(fr[1], fr[0], 'pk1')
    Qp = [[P1.alloc(4, 4) for b in range(2)] for par in range(2)]
    def pkl(d, src, tag):
        return [(f"v_cvt_pk_bf16_f32 v{d}, v{src}, v{src+1}", tag), (f"v_cvt_pk_bf16_f32 v{d+1}, v{src+2}, v{src+3}", tag)]
    def pk(d, src):
        for l, _ in pkl(d, src, None): a(l)
    upd = [f"s_add_u32 s{sStg}, s{sStg}, {STAGE}",
           f"s_cmp_eq_u32 s{sStg}, {3*STAGE}",
           f"s_cselect_b32 s{sStg}, 0, s{sStg}"]
    upd2 = [f"v_add_u32 v{cA[0]}, s{sStg}, v{bA[0]}",
            f"v_add_u32 v{cH[0]}, s{sStg}, v{bH[0]}",
            f"v_add_u32 v{cB[0]}, s{sStg}, v{bB[0]}",
            f"v_add_u32 v{cB[1]}, s{sStg}, v{bB[1]}",
            f"v_add_u32 v{cA[1]}, s{sStg}, v{bA[1]}",
            f"v_add_u32 v{cH[1]}, s{sStg}, v{bH[1]}"]
    for hf in range(2):
        a.label(L(f'first{hf}'))
        for l in interleave(mfmas(0, hf, True), reads(1, 1, cA[1], cH[1], cB) + upd + upd2): a(l)
        a.align(opt.get('al1'))
        a.label(L(f'loop{hf}'))
        a("s_waitcnt lgkmcnt(0)")
        a("s_barrier")
        for l in interleave(mfmas(1, hf), reads(0, 0, cA[0], cH[0], cB) + [f"s_add_u32 s{sCnt}, s{sCnt}, 1"]): a(l)
        a("s_waitcnt lgkmcnt(0)")
        if opt.get('lp2', 1):
            m0_ = mfmas(0, hf)
            fl = reads(1, 1, cA[1], cH[1], cB)
            body = iln(m0_[:4], fl[:8], 2) + interleave(m0_[4:], fl[8:] + upd + upd2 + [f"s_cmp_lt_u32 s{sCnt}, 15"])
            for l in body: a(l)
        else:
            body = interleave(mfmas(0, hf), reads(1, 1, cA[1], cH[1], cB) + upd + upd2)
            for l in body: a(l)
            a(f"s_cmp_lt_u32 s{sCnt}, 15")
        a(f"s_cbranch_scc1 {L(f'loop{hf}')}")
        a("s_waitcnt lgkmcnt(0)")
        a("s_barrier")
        st.stamp(9)
        if opt.get('clk'): st.stamp(11, True)
        Q, K, Vv, H = mparts(1, hf)
        K1 = [x for x in K if x[1][2] == 1]; K0 = [x for x in K if x[1][2] == 0]
        V1 = [x for x in Vv if x[1][2] == 1]; V0 = [x for x in Vv if x[1][2] == 0]
        fills = []
        if hf == 0:
            seq = K1 + V1 + H + K0 + Q + V0
            for par in range(2):
                for db in range(2): fills += pkl(Kp[par][2] + 2*db, KT[par][1][db], ('K', par, 1, db))
                fills.append((f"ds_write_b128 v{vLane16}, {v(Kp[par][2],4)} offset:{par*1024}", None))
            for par in range(2):
                for db in range(2):
                    fills += pkl(Vp[par][db] + 4, VV[par][1][db], ('V', par, 1, db))
                    fills.append((f"ds_write_b64 v{vLane8}, {v(Vp[par][db]+4,2)} offset:{2048 + (par*2+db)*512}", None))
            for par in range(2):
                for db in range(2): fills += pkl(Kp[par][0] + 2*db, HH[db], ('H', db))
        else:
            seq = H + K1 + V1 + K0 + Q + V0
            for db in range(2):
                fills += pkl(VHp + 2*db, HH[db], ('H', db))
                fills.append((f"ds_write_b64 v{vLane8}, {v(VHp+2*db,2)} offset:{4096 + db*512}", None))
            for par in range(2):
                for db in range(2): fills += pkl(Kp[par][2] + 2*db, KT[par][1][db], ('K', par, 1, db))
            for par in range(2):
                for db in range(2): fills += pkl(Vp[par][db] + 4, VV[par][1][db], ('V', par, 1, db))
        for par in range(2):
            for db in range(2): fills += pkl(Kp[par][1] + 2*db, KT[par][0][db], ('K', par, 0, db))
        for l in sched(seq, fills): a(l)
        a("s_waitcnt lgkmcnt(0)")
        a("s_barrier")
        if hf == 0:
            for par in range(2):
                for db in range(2):
                    a(f"ds_read_b64 {v(Vp[par][db],2)}, v{vLane8} offset:{4096 + db*512}")
            a(f"s_branch {L('attn')}")
        else:
            for par in range(2):
                a(f"ds_read_b128 {v(Kp[par][0],4)}, v{vLane16} offset:{par*1024}")
            for par in range(2):
                for db in range(2):
                    a(f"ds_read_b64 {v(Vp[par][db],2)}, v{vLane8} offset:{2048 + (par*2+db)*512}")
    a.label(L('attn'))
    for par in range(2):
        for b in (1, 0):
            for db in range(2):
                pk(Qp[par][b] + 2*db, QT[par][b][db])
    A = Regs(acc0, VV[0][0][0], 'acc')
    combos = [(par, b) for par in range(2) for b in range(2)]
    Sp = {c: A.alloc(4, 4) for c in combos}
    Sc = {c: A.alloc(4, 4) for c in combos}
    Pp = {c: A.alloc(4, 4) for c in combos}
    mx = {c: A.alloc() for c in combos}
    tt = {c: A.alloc() for c in combos}
    OT = {(par, b): VV[par][b] for (par, b) in combos}
    a("s_nop 1")
    for par in range(2):
        a.mfma(Sc[(par, 1)], Kp[par][2], Qp[par][1], biasCur)
        a.mfma(Sp[(par, 1)], Kp[par][1], Qp[par][1], biasPrev)
    for par in range(2):
        a.mfma(Sc[(par, 0)], Kp[par][1], Qp[par][0], biasCur)
    a("s_waitcnt lgkmcnt(4)")
    if not opt.get('clk'): st.stamp(10)
    for par in range(2):
        a.mfma(Sp[(par, 0)], Kp[par][0], Qp[par][0], biasFirst[par])
    for par in range(2):
        for db in range(2):
            pk(Vp[par][db] + 2, VV[par][0][db])
    order = [(0, 1), (1, 1), (0, 0), (1, 0)]
    for c in order:
        for r in range(4):
            a(f"v_max_f32 v{Sc[c]+r}, v{Sc[c]+r}, v{Sp[c]+r}")
        if not opt.get('fast', 0):
            for r in range(4):
                a(f"v_cvt_pk_bf16_f32 v{Sc[c]+r}, 0, v{Sc[c]+r}")
            for r in range(4):
                a(f"v_mul_f32 v{Sc[c]+r}, s{sScale}, v{Sc[c]+r}")
            for r in range(4):
                a(f"v_cvt_pk_bf16_f32 v{Sc[c]+r}, 0, v{Sc[c]+r}")
        a(f"v_max_f32 v{mx[c]}, v{Sc[c]}, v{Sc[c]+1}")
        a(f"v_max3_f32 v{mx[c]}, v{Sc[c]+2}, v{Sc[c]+3}, v{mx[c]}")
    def allreduce(val, op):
        for sw in ("v_permlane32_swap_b32", "v_permlane16_swap_b32"):
            for c in order: a(f"v_mov_b32 v{tt[c]}, v{val[c]}")
            a("s_nop 0")
            for c in order: a(f"{sw} v{val[c]}, v{tt[c]}")
            for c in order: a(f"{op} v{val[c]}, v{val[c]}, v{tt[c]}")
    allreduce(mx, "v_max_f32")
    for c in order:
        a(f"v_mul_f32 v{mx[c]}, s{sLog2e}, v{mx[c]}")
    for c in order:
        for r in range(4):
            a(f"v_fma_f32 v{Sc[c]+r}, v{Sc[c]+r}, s{sLog2e}, -v{mx[c]}")
        for r in range(4):
            a(f"v_exp_f32 v{Sc[c]+r}, v{Sc[c]+r}")
    a("s_nop 0")
    for c in order:
        a(f"v_add_f32 v{mx[c]}, v{Sc[c]}, v{Sc[c]+1}")
        a(f"v_add_f32 v{tt[c]}, v{Sc[c]+2}, v{Sc[c]+3}")
        a(f"v_add_f32 v{mx[c]}, v{mx[c]}, v{tt[c]}")
    allreduce(mx, "v_add_f32")
    for c in order:
        a(f"v_rcp_f32 v{mx[c]}, v{mx[c]}")
    a("s_waitcnt lgkmcnt(0)")
    if not opt.get('clk'): st.stamp(11)
    for c in order:
        par, b = c
        for r in range(4):
            a(f"v_mul_f32 v{Sc[c]+r}, v{Sc[c]+r}, v{mx[c]}")
        pk(Sp[c], Sc[c])
        mp = mPrev if b == 1 else mFirst[par]
        a(f"v_and_b32 v{Pp[c]}, v{Sp[c]}, v{mp}")
        a(f"v_and_b32 v{Pp[c]+1}, v{Sp[c]+1}, v{mp+1}")
        a(f"v_and_b32 v{Pp[c]+2}, v{Sp[c]}, v{mCur}")
        a(f"v_and_b32 v{Pp[c]+3}, v{Sp[c]+1}, v{mCur+1}")
        a("s_nop 1")
        for db in range(2):
            a.mfma(OT[c][db], Vp[par][db] + 2*b, Pp[c], None)
    for n, c in enumerate(order):
        par, b = c
        o = Sc[c]
        for db in range(2):
            pk(o + 2*db, OT[c][db])
        a("s_nop 1")
        a(f"v_permlane16_swap_b32 v{o}, v{o+2}")
        a(f"v_permlane16_swap_b32 v{o+1}, v{o+3}")
        so = f"s{sRI}" if par == 1 else "0"
        a(f"buffer_store_dwordx4 {v(o,4)}, v{vO}, {s(SRDO,4)}, {so} offen offset:{b*128}{OSC}")
    st.stamp(5); st.stamp(6, True)
    st.dump(12, sWave, 1, 2)
    sp.end(sWS, sWave)
    a.label(L('end'))
    a("s_endpgm")
    return a.text(), max(U.hi, G.hi, P0.hi), 102
```

```python
from gen9 import *
O1 = dict(us0=12, ups=8, wo0=13, wops=4, stlb=3, wohalf=1, lp2=0)
O2 = dict(tile=4, rot=0, lfirst=0, ostf=' sc1', la0=3)
for nm, o, o2 in [("z", {}, {}), ("a", {}, dict(uf=' nt')), ("b", {}, dict(uf=' nt', of=' nt')), ("c", dict(usf=' sc1 nt'), dict(uf=' nt')), ("d", dict(usf=' sc1 nt', osf=' sc1 nt'), dict(uf=' nt')), ("e", {}, dict(ostf=' sc1 nt')), ("f", dict(usf=' sc0 sc1', osf=' sc0 sc1'), {})]:
    mk(f"v_{nm}.s", k1p, dict(O1, span=1, **o), k2n, dict(O2, span=1, **o2))
```
